```python
import torch

def _softmax(x, axis=-1):
    return torch.softmax(x, dim=axis)
def _gelu(x):
    return torch.nn.functional.gelu(x, approximate="tanh")
def _silu(x):
    return torch.nn.functional.silu(x)
def _sigmoid(x):
    return torch.sigmoid(x)
def _layernorm(x, axis=-1, eps=1e-5):
    m = x.mean(dim=axis, keepdim=True)
    v = x.var(dim=axis, keepdim=True, unbiased=False)
    return (x - m) / torch.sqrt(v + eps)
def _scatter_add(tgt, idx, src, axis=0):
    return tgt.clone().index_add_(axis, idx, src)
def _segment_sum(src, seg, n):
    out = torch.zeros((n,) + src.shape[1:], dtype=src.dtype)
    return out.index_add_(0, seg, src)
def _pad(x, pw):
    flat = tuple(v for pair in reversed(pw) for v in pair)
    return torch.nn.functional.pad(x, flat)

kernel_name = 'standalone__edge_featured_mpnn_mpnn__graph'

def setup_inputs():

    _w = (lambda a: (lambda t: t.to(torch.bfloat16) if t.is_floating_point() else t)(torch.as_tensor(a)))
    N, deg, D, De = 25000, 16, 128, max(0, 1)
    E = N * deg
    H = 2 * D
    return {
        "x": _w((lambda *s: torch.randn(*s, dtype=torch.bfloat16) * 0.05)(N, D)),
        "e_attr": _w((lambda *s: torch.randn(*s, dtype=torch.bfloat16) * 1.6)(E, De)),
        "src": _w((lambda lo, hi, *s: torch.randint(lo, hi, s))(0, N, E).to(torch.int64)),
        "dst": _w((lambda lo, hi, *s: torch.randint(lo, hi, s))(0, N, E).to(torch.int64)),
        "w1": _w((lambda *s: torch.randn(*s, dtype=torch.bfloat16) * 1.6)(2 * D + De, H) * (1.0 / (2 * D + De) ** 0.5)),
        "b1": _w((lambda *s: torch.randn(*s, dtype=torch.bfloat16) * 1.6)(H) * 0.01),
        "w2": _w((lambda *s: torch.randn(*s, dtype=torch.bfloat16) * 0.05)(H, D) * (1.0 / H ** 0.5)),
        "b2": _w((lambda *s: torch.randn(*s, dtype=torch.bfloat16) * 0.05)(D) * 0.01),
    }

def reference(x, e_attr, src, dst, w1, b1, w2, b2):
    N, D = x.shape
    h_src = x[src]
    h_dst = x[dst]
    m_in = torch.concatenate([h_src, h_dst, e_attr], axis=-1)
    h = _silu(m_in @ w1 + b1)
    msg = h @ w2 + b2
    return _segment_sum(msg, dst, N)
```

```python
import re

TRANS = ('v_exp_f32','v_rcp_f32','v_log_f32','v_rsq_f32','v_sqrt_f32','v_sin_f32','v_cos_f32')

def regs_of(tok):
    tok = tok.strip()
    tok = tok.lstrip('-')
    m = re.match(r'^\|(.*)\|$', tok)
    if m: tok = m.group(1)
    m = re.match(r'^abs\((.*)\)$', tok)
    if m: tok = m.group(1)
    m = re.match(r'^([vs])(\d+)$', tok)
    if m: return [(m.group(1), int(m.group(2)))]
    m = re.match(r'^([vs])\[(\d+):(\d+)\]$', tok)
    if m: return [(m.group(1), i) for i in range(int(m.group(2)), int(m.group(3))+1)]
    if tok == 'vcc': return [('s', 106), ('s', 107)]
    if tok == 'vcc_lo': return [('s', 106)]
    if tok == 'vcc_hi': return [('s', 107)]
    if tok == 'exec': return [('s', 126), ('s', 127)]
    if tok == 'exec_lo': return [('s', 126)]
    if tok == 'exec_hi': return [('s', 127)]
    if tok == 'm0': return [('s', 124)]
    return []

class Ins:
    def __init__(self, text):
        self.text = text
        t = text.split(';')[0].strip()
        self.label = None
        self.op = None
        if t.endswith(':'):
            self.label = t[:-1]; return
        if not t or t.startswith('.'):
            return
        parts = t.split(None, 1)
        self.op = op = parts[0]
        rest = parts[1] if len(parts) > 1 else ''
        ops = []; cur = ''; d = 0
        for ch in rest:
            if ch == '[': d += 1
            if ch == ']': d -= 1
            if ch == ',' and d == 0: ops.append(cur.strip()); cur = ''
            else: cur += ch
        if cur.strip(): ops.append(cur.strip())
        mods = ''
        if ops:
            last = ops[-1].split(None, 1)
            ops[-1] = last[0]
            mods = last[1] if len(last) > 1 else ''
        self.ops = ops; self.mods = mods
        self.valu = op.startswith('v_') and not op.startswith('v_mfma')
        self.mfma = op.startswith('v_mfma')
        self.salu = op.startswith('s_')
        self.ds = op.startswith('ds_')
        self.vmem = op.startswith('buffer_') or op.startswith('global_')
        self.dpp = ('row_' in mods or 'quad_perm' in mods or 'wave_' in mods)
        self.trans = any(op.startswith(x) for x in TRANS)
        self.lds_dma = self.vmem and re.search(r'\blds\b', mods) is not None
        R = [regs_of(o) for o in ops]
        dst = []; src = []
        if self.mfma:
            dst = R[0]; self.A = R[1]; self.B = R[2]; self.C = R[3]; src = R[1]+R[2]+R[3]
            self.passes = 2 if '4x4x4' in op else (4 if '16x16' in op else 8)
        elif self.valu:
            nd = 1
            if re.match(r'v_(add|sub|subrev|addc|subb|subbrev)_co_', op): nd = 2
            if op.startswith('v_nop'): nd = 0
            for r in R[:nd]: dst += r
            for r in R[nd:]: src += r
            if op.startswith('v_cmpx'): dst += regs_of('exec')
            if op.startswith(('v_fmac','v_mac','v_writelane','v_pk_fmac','v_dot2c')) or self.dpp: src += R[0]
            if op.startswith('v_cndmask') and len(ops) == 3: src += regs_of('vcc')
            if op.startswith(('v_permlane','v_swap')): dst += R[1]; src += R[0]
        elif self.ds:
            if op.startswith(('ds_read','ds_bpermute','ds_permute','ds_swizzle')) or '_rtn' in op:
                dst = R[0]
                for r in R[1:]: src += r
            else:
                for r in R: src += r
        elif self.vmem:
            if ('load' in op and not self.lds_dma):
                dst = R[0]
                for r in R[1:]: src += r
            elif 'atomic' in op and 'sc0' in mods:
                dst = R[0]
                for r in R: src += r
            else:
                for r in R: src += r
            self.wide_store = ('store' in op and ('x3' in op or 'x4' in op))
            if self.wide_store:
                self.sdata = R[0] if op.startswith('buffer_') else R[1]
        elif self.salu:
            if op.startswith(('s_cmp','s_cbranch','s_branch','s_waitcnt','s_nop','s_barrier','s_setprio','s_sleep','s_endpgm','s_bitcmp','s_setpc')):
                for r in R: src += r
            else:
                dst = R[0] if R else []
                for r in R[1:]: src += r
                if 'saveexec' in op: dst = dst + regs_of('exec')
        self.dst = set(dst); self.src = set(src)
    def states(self):
        if self.op == 's_nop': return int(self.ops[0], 0) + 1
        return 1

EXEC = {('s',126),('s',127)}
M0 = ('s',124)

def need(p, c):
    n = 0
    if p.valu:
        sd = {r for r in p.dst if r[0] == 's'}
        vd = {r for r in p.dst if r[0] == 'v'}
        if sd:
            csr = {r for r in c.src if r[0] == 's'}
            if c.valu and (sd & csr):
                n = max(n, 2)
                if c.op.startswith(('v_readlane','v_writelane')) and (sd & set(regs_of(c.ops[2]))): n = max(n, 4)
            if c.vmem and (sd & csr): n = max(n, 5)
            if sd & EXEC:
                if c.dpp: n = max(n, 5)
                if c.op.startswith(('v_readlane','v_readfirstlane','v_writelane','v_permlane')): n = max(n, 4)
                if c.mfma: n = max(n, 4)
            if c.op in ('s_cbranch_vccz','s_cbranch_vccnz') and (('s',106) in sd): n = max(n, 1)
        if vd:
            if c.valu and c.dpp and (vd & c.src): n = max(n, 2)
            if c.op.startswith(('v_readlane','v_readfirstlane')) and (vd & c.src): n = max(n, 1)
            if c.op.startswith('v_permlane') and (vd & c.src): n = max(n, 2)
            if p.trans and c.valu and not c.trans and (vd & c.src): n = max(n, 1)
            if p.trans and (c.vmem or c.ds or c.mfma) and (vd & c.src): n = max(n, 1)
            if c.mfma and (vd & c.src): n = max(n, 2)
            if ('op_sel' in p.mods and not p.op.startswith('v_pk')) or 'dst_sel' in p.mods:
                if c.valu and (vd & (c.src | c.dst)): n = max(n, 1)
    if p.mfma:
        i = {2:0,4:1,8:2}[p.passes]
        if c.mfma:
            if p.dst & set(c.C):
                if set(c.C) == p.dst and c.passes == p.passes: n = max(n, (2,0,0)[i])
                else: n = max(n, (4,6,10)[i])
            if p.dst & (set(c.A) | set(c.B)): n = max(n, (5,8,12)[i])
            if (p.dst & c.dst) and not (set(c.C) == p.dst): n = max(n, (5,8,12)[i])
        elif c.valu or c.vmem or c.ds:
            if p.dst & (c.src | c.dst): n = max(n, (5,8,12)[i])
            if c.valu and (set(p.C) & c.dst): n = max(n, (1,3,7)[i])
    if p.salu and M0 in p.dst:
        if c.lds_dma or (c.op or '').startswith(('s_movrel','v_movrel')) or 'addtid' in (c.op or ''): n = max(n, 1)
    if p.vmem and getattr(p, 'wide_store', False):
        if set(p.sdata) & c.dst: n = max(n, 2 if c.valu or c.mfma else 1)
    return n

MAXD = 13

def pad(lines, verbose=False):
    ins = [Ins(l) for l in lines]
    changed = True; total = 0
    while changed:
        changed = False
        lab = {x.label: i for i, x in enumerate(ins) if x.label}
        preds = [[] for _ in ins]
        for i, x in enumerate(ins):
            fall = True
            if x.op in ('s_branch','s_endpgm','s_setpc_b64'): fall = False
            if fall and i+1 < len(ins): preds[i+1].append(i)
            if x.op and (x.op == 's_branch' or x.op.startswith('s_cbranch')):
                preds[lab[x.ops[0]]].append(i)
        for i, c in enumerate(ins):
            if not c.op: continue
            worst = 0
            stack = [(j, 0) for j in preds[i]]; seen = {}
            while stack:
                j, d = stack.pop()
                if seen.get(j, 99) <= d: continue
                seen[j] = d
                p = ins[j]
                if p.op:
                    k = need(p, c) - d
                    if k > worst: worst = k; why = p.text
                    d2 = d + p.states()
                else: d2 = d
                if d2 < MAXD:
                    for q in preds[j]: stack.append((q, d2))
            if worst > 0:
                if verbose: print(f"pad {worst} before '{c.text.strip()}' due to '{why.strip()}'")
                ins.insert(i, Ins(f"    s_nop {worst-1}"))
                total += 1
                changed = True
                break
    return [x.text for x in ins], total
```

```python
import sys, os, struct
sys.path.insert(0, os.path.dirname(os.path.abspath(__file__)))
from asmlib import *

OPT = dict(TS=0, SAFEADDR=0, FORCE_SAFE=0, FORCE_RECOV=0, FORCE_GUARD=0, POLLMAX=6000, SC='sc1', PSC='sc1')
for a in sys.argv[1:]:
    k, v = a.split('=')
    OPT[k] = int(v) if v.lstrip('-').isdigit() else v
TS = OPT['TS']; SAFEADDR = OPT['SAFEADDR']; POLLMAX = OPT['POLLMAX']
SC = OPT['SC']; PSC = OPT['PSC'].replace('+', ' ')
KN = "standalone__edge_featured_mpnn_mpnn__graph_kernel"

def f32(x): return "0x%08x" % struct.unpack('<I', struct.pack('<f', x))[0]
NLOG2E = f32(-1.4426950408889634); NLN2 = f32(-0.6931471805599453)

N = 25000; E = 400000; CH = 1564
WS_REC = 0x1000000; REC_STRIDE = 12544; WS_OFF = 0x1400000; WS_PF = 0x1480000; WS_TS = 0x1500000; WS_SIZE = 0x2000000
QBLK = 14336; QROW = 144
STG = 114688; CNT = 127232; START = 128256; KEY = 129280; NODEOF = 129792; ASG = 130304; CTR = 130816
XB = 131072; LW = 1792; CAPE = 208; CNT2 = 159744; LDS = 161792
HSB = 65536; HROW = 528
R = 4; NS = 7; S = 4
SB0 = 44
def Q(k): return SB0 + 12*k
def Nn(k): return SB0 + 12*k + 4
def Dd(k): return SB0 + 12*k + 8

L = []
def A(s):
    for line in s.strip('\n').split('\n'):
        line = line.strip()
        if not line: continue
        L.append(line if line.endswith(':') or line.startswith(('.', ';')) else "    " + line)
def srd(r, lo, size, w3="0x00020000"):
    A(f"s_mov_b32 s{r}, s{lo}\ns_mov_b32 s{r+1}, s{lo+1}\ns_mov_b32 s{r+2}, {size}\ns_mov_b32 s{r+3}, {w3}")
def ts(i):
    if TS: A(f"s_memrealtime s[100:101]\ns_waitcnt lgkmcnt(0)\nv_writelane_b32 v41, s100, {i}")
def bar(): A("s_barrier")
uid = [0]
def lab(p):
    uid[0] += 1; return f"L_{p}_{uid[0]}"
def scan(v, full):
    for sh in (1, 2, 4, 8):
        A(f"v_add_u32_dpp v{v}, v{v}, v{v} row_shr:{sh} row_mask:0xf bank_mask:0xf bound_ctrl:0")
    A(f"v_add_u32_dpp v{v}, v{v}, v{v} row_bcast:15 row_mask:0xa bank_mask:0xf")
    if full: A(f"v_add_u32_dpp v{v}, v{v}, v{v} row_bcast:31 row_mask:0xc bank_mask:0xf")
def bucket_range(cur, b, n0, n1):
    A(f"""
    s_and_b32 s{b}, s{cur}, 7
    s_lshl_b32 s{b}, s{b}, 5
    s_lshr_b32 s27, s{cur}, 3
    s_or_b32 s{b}, s{b}, s27
    s_mul_i32 s{n0}, s{b}, 6400845
    s_add_u32 s{n0}, s{n0}, 65535
    s_add_u32 s{n1}, s{n0}, 6400845
    s_lshr_b32 s{n0}, s{n0}, 16
    s_lshr_b32 s{n1}, s{n1}, 16
    s_min_u32 s{n1}, s{n1}, {N}
    """)
def foff(v, t):
    A(f"""
    v_lshrrev_b32 v{v}, 3, v0
    v_lshlrev_b32 v{v}, 6, v{v}
    v_and_b32 v{t}, 1, v0
    v_lshl_add_u32 v{v}, v{t}, 5, v{v}
    v_bfe_u32 v{t}, v0, 1, 2
    v_lshl_add_u32 v{v}, v{t}, 3, v{v}
    """)
def lds_or(off, val):
    A(f"v_mov_b32 v42, {CTR}\nv_mov_b32 v43, {val}\nds_or_b32 v42, v43 offset:{off}")

A(f"""
{KN}:
s_cmp_ge_u32 s2, 256
s_cbranch_scc1 L_end
s_load_dwordx16 s[4:19], s[0:1], 0
s_load_dwordx4 s[20:23], s[0:1], 64
s_load_dwordx2 s[24:25], s[0:1], 80
v_lshrrev_b32 v1, 6, v0
v_and_b32 v0, 63, v0
v_readfirstlane_b32 s3, v1
s_mov_b32 s26, 0xffff0000
s_mov_b32 s54, 0
s_mov_b32 s55, 0
s_mov_b32 s48, s2
v_mov_b32 v41, 0
""")
bucket_range(2, 53, 51, 52)
A("s_sub_u32 s52, s52, s51")
foff(1, 2)
A("v_add_u32 v2, 0x20000, v1\ns_waitcnt lgkmcnt(0)")
ts(0)
A("global_load_dwordx2 v[36:37], v2, s[12:13]\nglobal_load_dwordx2 v[38:39], v1, s[14:15]")
srd(44, 24, WS_SIZE)
if SAFEADDR:
    srd(40, 24, N*512)
else:
    A("s_mov_b32 s40, s24\ns_and_b32 s41, s25, 0xffff\ns_or_b32 s41, s41, 0x00080000\ns_mov_b32 s42, 64\ns_mov_b32 s43, 0x00800000")
A("L_phaseA:")
bucket_range(48, 56, 49, 50)
A("s_cmp_ge_u32 s3, 8\ns_cbranch_scc1 L_Lteam")

srd(28, 12, 257*512)
A(f"""
v_lshrrev_b32 v1, 2, v0
v_lshlrev_b32 v1, 9, v1
v_lshrrev_b32 v2, 5, v0
v_lshlrev_b32 v2, 1, v2
v_and_b32 v3, 3, v0
v_xor_b32 v2, v2, v3
v_lshl_add_u32 v1, v2, 4, v1
s_lshl_b32 s56, s3, 6
v_add_u32 v1, s56, v1
s_mul_i32 s57, s3, {QBLK}
""")
def wdma(base):
    A(f"s_mov_b32 m0, s57\ns_mov_b32 s56, {base}")
    for i in range(8):
        A(f"buffer_load_dwordx4 v1, s[28:31], s56 offen lds")
        if i < 7: A("s_add_u32 m0, m0, 1024\ns_add_u32 s56, s56, 8192")
wdma(0)
A(f"""
v_lshrrev_b32 v4, 4, v0
v_bfe_u32 v5, v0, 2, 2
v_lshl_add_u32 v5, v4, 3, v5
v_lshlrev_b32 v2, 6, v5
v_lshl_add_u32 v2, v3, 3, v2
v_and_b32 v5, 1, v4
v_lshl_add_u32 v2, v5, 5, v2
v_add_u32 v2, s57, v2
v_xor_b32 v3, 32, v2
v_and_b32 v5, 15, v0
v_xor_b32 v6, v4, v5
v_lshlrev_b32 v6, 4, v6
v_lshl_add_u32 v16, v5, 8, v6
v_add_u32 v16, {XB}, v16
v_xor_b32 v17, 64, v16
v_xor_b32 v18, 0x80, v16
v_xor_b32 v19, 0xc0, v16
v_lshlrev_b32 v6, 9, v5
v_lshl_add_u32 v6, v4, 4, v6
s_lshl_b32 s56, s3, 6
v_add_u32 v6, s56, v6
v_mul_u32_u24 v7, {QROW}, v5
v_lshl_add_u32 v7, v4, 5, v7
v_add_u32 v7, s57, v7
s_mov_b32 s32, s24
s_mov_b32 s33, s25
s_lshl_b32 s34, s50, 9
s_mov_b32 s35, 0x00020000
s_lshl_b32 s58, s49, 9
s_mov_b32 s59, {NLOG2E}
""")
if OPT.get('FAKEP'): A("s_lshl_b32 s56, s3, 10\nv_lshl_add_u32 v6, v0, 4, s56")
bar(); bar()
ts(1)
AF = 44; BF = (76, 92); ACC = (108, 116)
def afrags():
    for s in range(4):
        for a in range(2):
            for hf in range(2):
                r = AF + a*16 + s*4 + hf*2
                A(f"ds_read_b64_tr_b16 v[{r}:{r+1}], v{2+a} offset:{2048*s+256*hf}")
def bfr(t):
    for s in range(4):
        r = BF[t & 1] + 4*s
        A(f"ds_read_b128 v[{r}:{r+3}], v{16+s} offset:{4096*t}")
def gemm(post):
    for t in range(7):
        if t < 6: bfr(t+1); A("s_waitcnt lgkmcnt(4)")
        else: A("s_waitcnt lgkmcnt(0)")
        for s in range(4):
            for a in range(2):
                c = ACC[t & 1] + 4*a; ar = AF + a*16 + s*4; br = BF[t & 1] + 4*s
                A(f"v_mfma_f32_16x16x32_bf16 v[{c}:{c+3}], v[{ar}:{ar+3}], v[{br}:{br+3}], " + ("0" if s == 0 else f"v[{c}:{c+3}]"))
        if t > 0: post(t-1)
    post(6)
def postP(t):
    c = ACC[t & 1]; o = 8 + 4*(t & 1)
    for i in range(8): A(f"v_mul_f32 v{c+i}, s59, v{c+i}")
    for i in range(4): A(f"v_cvt_pk_bf16_f32 v{o+i}, v{c+2*i}, v{c+2*i+1}")
    A(f"buffer_store_dwordx4 v[{o}:{o+3}], v6, s[32:35], s58 offen {PSC}\ns_add_u32 s58, s58, 8192")
def postQ(t):
    c = ACC[t & 1]
    if t == 6: A("s_mov_b32 exec_lo, 0x00030003\ns_mov_b32 exec_hi, 0x00030003")
    A(f"ds_write_b128 v7, v[{c}:{c+3}] offset:{2304*t}\nds_write_b128 v7, v[{c+4}:{c+7}] offset:{2304*t+16}")
    if t == 6: A("s_mov_b64 exec, -1")
A("s_waitcnt vmcnt(0)")
ts(2)
afrags(); bfr(0)
A("s_waitcnt lgkmcnt(4)")
wdma(65536)
bar()
ts(3)
gemm(postP)
ts(4)
A("s_waitcnt vmcnt(7)")
afrags(); bfr(0)
gemm(postQ)
ts(5)
A(f"""
s_waitcnt vmcnt(0) lgkmcnt(0)
s_cmp_lg_u32 s54, 0
s_cbranch_scc1 L_recov_next
""")
ts(6)
A(f"""
s_mov_b64 exec, 1
v_mov_b32 v1, {CTR}
v_mov_b32 v2, 1
ds_add_rtn_u32 v3, v1, v2 offset:4
s_lshl_b32 s56, s2, 4
s_add_u32 s56, s56, {WS_PF}
s_waitcnt lgkmcnt(0)
v_readfirstlane_b32 s57, v3
s_cmp_lg_u32 s57, 7
s_cbranch_scc1 L_nopub
buffer_store_dword v2, off, s[44:47], s56 {SC}
L_nopub:
s_mov_b64 exec, -1
s_branch L_C1
""")

A(f"""
L_Lteam:
s_cmp_eq_u32 s3, 15
s_cbranch_scc1 L_W15
s_sub_u32 s62, s3, 8
s_cmp_lg_u32 s54, 0
s_cbranch_scc1 L_xdma
s_lshl_b32 s56, s62, 6
v_add_u32 v1, s56, v0
s_mul_i32 s57, s2, {CH}
v_lshl_add_u32 v2, v1, 2, s57
v_cmp_gt_u32 vcc, {CH//4}, v1
v_mov_b32 v3, {E}
v_cmp_gt_u32 s[96:97], v3, v2
s_and_b64 s[96:97], s[96:97], vcc
v_lshlrev_b32 v3, 2, v2
v_lshlrev_b32 v4, 1, v2
""")
srd(28, 10, E*4); srd(32, 8, E*4); srd(36, 6, E*2)
A("""
buffer_load_dwordx4 v[44:47], v3, s[28:31], 0 offen
buffer_load_dwordx4 v[48:51], v3, s[32:35], 0 offen
buffer_load_dwordx2 v[52:53], v4, s[36:39], 0 offen
L_xdma:
""")
srd(28, 4, N*256)
A(f"""
v_lshrrev_b32 v5, 4, v0
v_and_b32 v6, 15, v0
v_xor_b32 v6, v6, v5
v_lshlrev_b32 v6, 4, v6
v_lshl_add_u32 v6, v5, 8, v6
v_xor_b32 v7, 64, v6
v_xor_b32 v8, 0x80, v6
v_xor_b32 v9, 0xc0, v6
s_lshl_b32 s56, s62, 12
s_add_u32 m0, s56, {XB}
s_lshl_b32 s57, s49, 8
s_add_u32 s57, s57, s56
buffer_load_dwordx4 v6, s[28:31], s57 offen lds
buffer_load_dwordx4 v7, s[28:31], s57 offen offset:1024 lds
buffer_load_dwordx4 v8, s[28:31], s57 offen offset:2048 lds
buffer_load_dwordx4 v9, s[28:31], s57 offen offset:3072 lds
s_cmp_lg_u32 s54, 0
s_cbranch_scc1 L_recovL
""")
bar()
A("s_waitcnt vmcnt(4)")
ts(1)
A("v_mov_b32 v10, 1\ns_mov_b64 exec, s[96:97]")
A(f"s_movk_i32 s56, 2684\ns_mov_b32 s57, {CNT}")
for i in range(4):
    A(f"""
    v_mul_u32_u24 v{54+i}, s56, v{44+i}
    v_lshrrev_b32 v{54+i}, 18, v{54+i}
    v_min_u32 v{54+i}, 0xff, v{54+i}
    v_lshl_add_u32 v{54+i}, v{54+i}, 2, s57
    ds_add_rtn_u32 v{58+i}, v{54+i}, v10
    """)
A(f"""
v_lshl_or_b32 v44, v52, 16, v44
v_and_or_b32 v45, v52, s26, v45
v_lshl_or_b32 v46, v53, 16, v46
v_and_or_b32 v47, v53, s26, v47
s_mov_b64 exec, -1
v_lshl_add_u32 v11, v0, 4, s57
s_waitcnt vmcnt(0) lgkmcnt(0)
""")
bar()
ts(2)
A(f"""
ds_read_b128 v[64:67], v11
s_waitcnt lgkmcnt(0)
v_add_u32 v69, v64, v65
v_add_u32 v70, v69, v66
v_add_u32 v72, v70, v67
v_mov_b32 v73, v72
""")
scan(73, True)
A(f"""
v_sub_u32 v76, v73, v72
v_add_u32 v77, v76, v64
v_add_u32 v78, v76, v69
v_add_u32 v79, v76, v70
ds_write_b128 v11, v[76:79] offset:{START-CNT}
s_mov_b32 s56, 0x80000000
v_lshl_or_b32 v80, v64, 16, v76
v_lshl_or_b32 v81, v65, 16, v77
v_lshl_or_b32 v82, v66, 16, v78
v_lshl_or_b32 v83, v67, 16, v79
v_or_b32 v80, s56, v80
v_or_b32 v81, s56, v81
v_or_b32 v82, s56, v82
v_or_b32 v83, s56, v83
s_mov_b64 exec, s[96:97]
s_waitcnt lgkmcnt(0)
""")
for i in range(4): A(f"ds_read_b32 v{54+i}, v{54+i} offset:{START-CNT}")
A(f"s_mov_b32 s57, {STG}")
for i in range(4):
    A(f"""
    s_waitcnt lgkmcnt({3})
    v_add_u32 v{54+i}, v{54+i}, v{58+i}
    v_lshl_add_u32 v{54+i}, v{54+i}, 3, s57
    ds_write2_b32 v{54+i}, v{48+i}, v{44+i} offset0:0 offset1:1
    """)
A(f"""
s_mov_b64 exec, -1
v_lshl_add_u32 v12, v1, 4, s57
v_lshlrev_b32 v13, 4, v1
s_mul_i32 s56, s2, {REC_STRIDE}
s_add_u32 s56, s56, {WS_REC}
s_add_u32 s57, s56, 7168
v_cmp_gt_u32 vcc, 336, v1
s_waitcnt lgkmcnt(0)
""")
bar()
ts(3)
A(f"""
ds_read_b128 v[84:87], v12
ds_read_b128 v[88:91], v12 offset:7168
s_waitcnt lgkmcnt(1)
buffer_store_dwordx4 v[84:87], v13, s[44:47], s56 offen {SC}
s_cbranch_vccz L_nost2
s_mov_b64 exec, vcc
s_waitcnt lgkmcnt(0)
buffer_store_dwordx4 v[88:91], v13, s[44:47], s57 offen {SC}
L_nost2:
s_mov_b64 exec, 1
v_mov_b32 v14, {CTR}
s_waitcnt vmcnt(0) lgkmcnt(0)
ds_add_rtn_u32 v15, v14, v10
s_mov_b64 exec, -1
s_lshl_b32 s56, s2, 10
s_add_u32 s56, s56, {WS_OFF}
v_lshlrev_b32 v13, 4, v0
s_waitcnt lgkmcnt(0)
v_readfirstlane_b32 s57, v15
s_cmp_lg_u32 s57, 6
s_cbranch_scc1 L_nooff
buffer_store_dwordx4 v[80:83], v13, s[44:47], s56 offen {SC}
L_nooff:
""")
ts(4)
A(f"""
v_mov_b32 v14, {CTR}
s_mov_b32 s58, 0
L_certw:
ds_read_b32 v15, v14 offset:8
s_add_u32 s58, s58, 1
s_waitcnt lgkmcnt(0)
v_readfirstlane_b32 s57, v15
s_cmp_lg_u32 s57, 0
s_cbranch_scc1 L_B0
s_sleep 1
s_cmp_lt_u32 s58, 0x100000
s_cbranch_scc1 L_certw
s_branch L_B0_to
""")
A(f"""
L_W15:
s_mov_b32 s62, 7
s_cmp_lg_u32 s54, 0
s_cbranch_scc1 L_recovL
v_mov_b32 v4, 0
v_mov_b32 v5, 0
v_mov_b32 v6, 0
v_mov_b32 v7, 0
v_lshlrev_b32 v1, 4, v0
s_lshl_b32 s56, s2, 10
s_add_u32 s56, s56, {WS_OFF}
buffer_store_dwordx4 v[4:7], v1, s[44:47], s56 offen {SC}
s_lshl_b32 s56, s2, 4
s_add_u32 s56, s56, {WS_PF}
s_mov_b64 exec, 1
buffer_store_dword v4, off, s[44:47], s56 {SC}
s_mov_b64 exec, -1
v_add_u32 v2, {CNT}, v1
ds_write_b128 v2, v[4:7]
v_add_u32 v2, {CNT2}, v1
ds_write_b128 v2, v[4:7]
ds_write_b128 v2, v[4:7] offset:1024
v_lshlrev_b32 v3, 2, v0
v_add_u32 v2, {CTR}, v3
ds_write_b32 v2, v4
v_add_u32 v2, {KEY}, v3
v_sub_u32 v8, 127, v0
v_sub_u32 v9, 63, v0
ds_write_b32 v2, v8
ds_write_b32 v2, v9 offset:256
""")
srd(28, 22, 256)
A(f"""
s_and_b32 s56, s2, 63
s_lshl_b32 s56, s56, 2
s_lshr_b32 s57, s2, 6
s_lshl_b32 s57, 1, s57
v_mov_b32 v8, s57
s_waitcnt lgkmcnt(0)
""")
bar()
A(f"""
s_waitcnt vmcnt(0)
s_mov_b64 exec, 1
buffer_atomic_or v8, off, s[28:31], s56 sc1
s_mov_b64 exec, -1
""")
ts(1)
bar(); bar()
ts(3)
A(f"""
s_mov_b32 s58, 0
L_certp:
buffer_load_dword v9, v3, s[28:31], 0 offen sc1
s_add_u32 s58, s58, 1
s_waitcnt vmcnt(0)
v_cmp_ne_u32 vcc, 15, v9
s_cbranch_vccz L_certok
s_sleep 2
s_cmp_lt_u32 s58, {POLLMAX}
s_cbranch_scc1 L_certp
""")
lds_or(8, 2)
A("s_branch L_B0_to\nL_certok:")
lds_or(8, 1)
A("s_mov_b32 s57, 1")
ts(4)
A(f"""
L_B0:
s_cmp_lg_u32 s57, 1
s_cbranch_scc1 L_B0_to
""")
ts(5)
A(f"""
v_lshrrev_b32 v1, 1, v0
s_lshl_b32 s56, s62, 5
v_add_u32 v1, s56, v1
v_lshlrev_b32 v8, 10, v1
s_lshl_b32 s56, s53, 2
s_add_u32 s56, s56, {WS_OFF}
v_and_b32 v2, 1, v0
v_lshlrev_b32 v2, 1, v2
s_movk_i32 s57, {REC_STRIDE}
v_mul_u32_u24 v10, s57, v1
v_lshl_add_u32 v10, v2, 3, v10
s_mov_b32 s58, 0
L_offp:
buffer_load_dword v9, v8, s[44:47], s56 offen sc1
s_add_u32 s58, s58, 1
s_waitcnt vmcnt(0)
v_cmp_le_i32 vcc, 0, v9
s_cbranch_vccz L_offok
s_sleep 1
s_cmp_lt_u32 s58, {POLLMAX}
s_cbranch_scc1 L_offp
L_B0_to:
""")
lds_or(12, 2)
A(f"""
s_mov_b32 s63, 0
s_branch L_B1done
L_offok:
""")
ts(6)
A(f"""
v_and_b32 v3, 0xffff, v9
v_bfe_u32 v11, v9, 16, 15
v_lshl_add_u32 v10, v3, 3, v10
v_cmp_lt_u32 vcc, 24, v11
v_sub_u32 v11, v11, v2
s_mov_b32 s56, {WS_REC}
s_mov_b32 s63, 0
s_cbranch_vccz L_noovf
""")
lds_or(12, 1)
A("L_noovf:")
for i in range(6):
    A(f"""
    v_cmp_lt_i32 vcc, {4*i}, v11
    s_cbranch_vccz L_ldone
    s_mov_b64 exec, vcc
    buffer_load_dwordx4 v[{Nn(i)}:{Nn(i)+3}], v10, s[44:47], s56 offen offset:{32*i} sc1
    s_add_u32 s63, s63, 1
    """)
A(f"""
L_ldone:
s_mov_b64 exec, -1
v_mov_b32 v12, 1
v_mov_b32 v13, 128
s_mov_b32 s57, {CNT2}
s_mov_b32 s58, {KEY}
s_waitcnt vmcnt(0)
""")
ts(7)
for i in range(6):
    A(f"s_cmp_le_u32 s63, {i}\ns_cbranch_scc1 L_B1done")
    for j in range(2):
        sr = Nn(i)+2*j; d1 = sr+1; ad = Dd(i)+2*j; rk = ad+1; t = 14+j; u = 16+j
        A(f"""
        v_and_b32 v{u}, 0xffff, v{d1}
        v_subrev_u32 v{u}, s51, v{u}
        v_min_u32 v{u}, 127, v{u}
        v_mul_u32_u24 v{t}, 41, v{sr}
        v_lshrrev_b32 v{t}, 18, v{t}
        v_min_u32 v{t}, 3, v{t}
        v_lshl_add_u32 v{t}, v{u}, 2, v{t}
        v_lshl_add_u32 v{ad}, v{t}, 2, s57
        v_lshl_add_u32 v{u}, v{u}, 2, s58
        """)
    for j in range(2):
        sr = Nn(i)+2*j; ad = Dd(i)+2*j; rk = ad+1; u = 16+j
        A(f"""
        v_cmp_lt_i32 vcc, {4*i+j}, v11
        s_mov_b64 exec, vcc
        ds_add_rtn_u32 v{rk}, v{ad}, v12
        ds_add_u32 v{u}, v13
        """)
    A("s_mov_b64 exec, -1")
A("L_B1done:\ns_waitcnt lgkmcnt(0)")
ts(8)
A("L_C1:")
bar()
ts(9)
A(f"""
v_lshlrev_b32 v2, 4, v0
v_add_u32 v2, {WS_PF}, v2
s_cmp_lg_u32 s3, 0
s_cbranch_scc1 L_nopre
""")
for i in range(4): A(f"buffer_load_dword v{32+i}, v2, s[44:47], 0 offen offset:{1024*i} sc1")
A(f"""
L_nopre:
s_cmp_ge_u32 s3, 14
s_cbranch_scc1 L_C2
v_lshrrev_b32 v1, 3, v0
s_lshl_b32 s56, s3, 3
v_add_u32 v1, s56, v1
s_mov_b32 s58, {KEY}
v_lshl_add_u32 v3, v1, 2, s58
v_and_b32 v4, 7, v0
v_lshl_add_u32 v5, v4, 6, s58
ds_read_b32 v6, v3
ds_read_b128 v[16:19], v5
ds_read_b128 v[20:23], v5 offset:16
ds_read_b128 v[24:27], v5 offset:32
ds_read_b128 v[28:31], v5 offset:48
v_mov_b32 v7, 0
""")
for q in range(4):
    A(f"s_waitcnt lgkmcnt({3-q})")
    for i in range(4): A(f"v_cmp_gt_u32 s[{56+2*i}:{57+2*i}], v{16+4*q+i}, v6") if False else None
    pairs = (96, 98, 56, 58)
    for i in range(4): A(f"v_cmp_gt_u32 s[{pairs[i]}:{pairs[i]+1}], v{16+4*q+i}, v6")
    for i in range(4): A(f"v_addc_co_u32 v7, vcc, 0, v7, s[{pairs[i]}:{pairs[i]+1}]")
A(f"""
v_add_u32_dpp v7, v7, v7 quad_perm:[1,0,3,2] row_mask:0xf bank_mask:0xf
v_add_u32_dpp v7, v7, v7 quad_perm:[2,3,0,1] row_mask:0xf bank_mask:0xf
v_add_u32_dpp v7, v7, v7 row_half_mirror row_mask:0xf bank_mask:0xf
v_lshrrev_b32 v8, 4, v7
v_bfe_i32 v9, v7, 4, 1
v_xor_b32 v9, v9, v7
v_and_b32 v9, 15, v9
v_lshl_add_u32 v9, v9, 3, v8
s_mov_b32 s56, {NODEOF}
v_lshl_add_u32 v8, v9, 2, s56
ds_write_b32 v8, v1
ds_write_b32 v3, v9 offset:{ASG-KEY}
s_waitcnt lgkmcnt(0)
L_C2:
""")
bar()
ts(10)
A(f"""
L_B4:
v_and_b32 v1, 7, v0
v_min_u32 v3, 6, v1
s_lshl_b32 s56, s3, 5
s_add_u32 s56, s56, {NODEOF}
v_lshl_add_u32 v3, v3, 2, s56
ds_read_b32 v8, v3
v_mov_b32 v14, {CTR}
ds_read_b32 v15, v14 offset:12
v_bfe_u32 v4, v0, 3, 2
v_lshrrev_b32 v12, 3, v0
v_mul_u32_u24 v12, {QBLK}, v12
v_lshl_add_u32 v12, v1, 4, v12
s_mov_b32 s57, {CNT2}
s_mov_b32 s96, 0x7f7f7f7f
s_mov_b32 s97, 0
s_waitcnt lgkmcnt(0)
v_lshl_add_u32 v5, v8, 2, v4
v_lshl_add_u32 v5, v5, 2, s57
ds_read_b32 v6, v5
v_min_u32 v9, 97, v8
v_mul_u32_u24 v9, {QROW}, v9
v_readfirstlane_b32 s55, v15
""")
for k in range(NS):
    A(f"v_readlane_b32 s{56+(k&1)}, v9, {k}\nv_add_u32 v{16+k}, s{56+(k&1)}, v12\nds_read_b128 v[{Q(k)}:{Q(k)+3}], v{16+k}")
A(f"""
s_waitcnt lgkmcnt({NS})
v_cndmask_b32 v6, 0, v6, s[96:97]
v_mov_b32 v7, v6
""")
scan(7, False)
A(f"""
s_mul_i32 s58, s3, {LW}
s_add_u32 s58, s58, {XB}
v_readlane_b32 s59, v7, 31
v_sub_u32 v7, v7, v6
v_lshl_add_u32 v7, v7, 3, s58
s_cmp_le_u32 s59, {CAPE}
s_cbranch_scc1 L_capok
s_or_b32 s55, s55, 4
v_mov_b32 v7, 0x80000000
s_mov_b32 s59, 0
L_capok:
s_mov_b64 exec, s[96:97]
ds_write_b32 v5, v7
s_mov_b64 exec, 15
v_add_u32 v9, s59, v0
v_lshl_add_u32 v9, v9, 3, s58
v_mov_b32 v10, 0
ds_write_b32 v9, v10
s_mov_b64 exec, -1
""")
for s in range(S):
    for k in range(NS): A(f"v_readlane_b32 s{64+8*s+k}, v6, {8*s+k}")
A(f"""
s_mov_b32 s56, {NLOG2E}
s_mov_b32 s57, {NLOG2E}
v_lshlrev_b32 v4, 16, v36
v_and_b32 v5, s26, v36
v_lshlrev_b32 v6, 16, v37
v_and_b32 v7, s26, v37
v_lshlrev_b32 v24, 16, v38
v_and_b32 v25, s26, v38
v_lshlrev_b32 v26, 16, v39
v_and_b32 v27, s26, v39
v_pk_mul_f32 v[4:5], v[4:5], s[56:57]
v_pk_mul_f32 v[6:7], v[6:7], s[56:57]
v_pk_mul_f32 v[24:25], v[24:25], s[56:57]
v_pk_mul_f32 v[26:27], v[26:27], s[56:57]
s_waitcnt lgkmcnt(0)
""")
bar()
ts(11)
for k in range(NS):
    A(f"v_pk_fma_f32 v[{Q(k)}:{Q(k)+1}], v[{Q(k)}:{Q(k)+1}], s[56:57], v[24:25]\nv_pk_fma_f32 v[{Q(k)+2}:{Q(k)+3}], v[{Q(k)+2}:{Q(k)+3}], s[56:57], v[26:27]")
A(f"""
s_cmp_lt_u32 s3, 8
s_cbranch_scc1 L_B5G
s_and_b32 s56, s55, 3
s_cbranch_scc1 L_B5done
s_mov_b32 s57, 0x7fff
""")
for i in range(6):
    A(f"s_cmp_le_u32 s63, {i}\ns_cbranch_scc1 L_B5done")
    for j in range(2): A(f"ds_read_b32 v{Dd(i)+2*j}, v{Dd(i)+2*j}")
    for j in range(2):
        sr = Nn(i)+2*j; d1 = sr+1
        A(f"v_and_b32 v{sr}, s57, v{sr}\nv_lshlrev_b32 v{sr}, 9, v{sr}\nv_and_b32 v{d1}, s26, v{d1}")
    A("s_waitcnt lgkmcnt(0)")
    for j in range(2):
        sr = Nn(i)+2*j; d1 = sr+1; ad = Dd(i)+2*j; rk = ad+1
        A(f"""
        v_cmp_lt_i32 vcc, {4*i+j}, v11
        v_cmp_le_i32 s[96:97], 0, v{ad}
        v_lshl_add_u32 v{ad}, v{rk}, 3, v{ad}
        s_and_b64 exec, vcc, s[96:97]
        ds_write2_b32 v{ad}, v{sr}, v{d1} offset0:0 offset1:{2*R+1}
        s_mov_b64 exec, -1
        """)
A(f"""
s_branch L_B5done
L_B5G:
s_cmp_lg_u32 s3, 0
s_cbranch_scc1 L_B5done
s_cmp_lg_u32 s54, 0
s_cbranch_scc1 L_B5done
s_bitcmp1_b32 s55, 1
s_cbranch_scc1 L_B5done
s_mov_b32 s58, 0
L_pfp:
s_waitcnt vmcnt(0)
v_and_b32 v32, v32, v33
v_and_b32 v34, v34, v35
v_and_b32 v32, v32, v34
v_cmp_ne_u32 vcc, 1, v32
s_cbranch_vccz L_pfok
""")
for i in range(4): A(f"buffer_load_dword v{32+i}, v2, s[44:47], 0 offen offset:{1024*i} sc1")
A(f"""
s_add_u32 s58, s58, 1
s_cmp_lt_u32 s58, {POLLMAX}
s_cbranch_scc1 L_pfp
L_pfbad:
""")
lds_or(12, 2)
A("s_branch L_B5done\nL_pfok:")
if OPT['FORCE_RECOV']: A("s_branch L_pfbad")
A("L_B5done:")
srd(28, 16, 65536)
A(f"""
v_lshrrev_b32 v8, 4, v0
v_lshlrev_b32 v9, 2, v8
v_and_b32 v10, 15, v0
v_xor_b32 v9, v9, v10
v_lshlrev_b32 v9, 4, v9
v_lshl_add_u32 v9, v8, 8, v9
s_lshl_b32 s56, s3, 12
s_mov_b32 m0, s56
""")
for i in range(4): A(f"buffer_load_dwordx4 v9, s[28:31], s56 offen offset:{1024*i} lds")
A(f"""
v_and_b32 v8, 3, v0
v_lshlrev_b32 v9, 4, v8
v_mov_b32 v10, 0x3f80
v_mov_b32 v11, 0
v_lshlrev_b64 v[2:3], v9, v[10:11]
s_mul_i32 s58, s3, {LW}
s_add_u32 s58, s58, {XB}
v_mov_b32 v1, s58
v_mov_b32 v14, {CTR}
s_waitcnt lgkmcnt(0)
""")
if SAFEADDR: A("v_lshlrev_b32 v40, 3, v0")
ts(12)
bar()
ts(13)
A(f"""
ds_read_b32 v15, v14 offset:12
ds_read_b128 v[8:11], v1
ds_read_b128 v[32:35], v1 offset:16
ds_read_b128 v[16:19], v1 offset:32
ds_read_b128 v[20:23], v1 offset:48
s_waitcnt lgkmcnt(2)
v_readfirstlane_b32 s56, v15
s_or_b32 s55, s55, s56
""")
if OPT['FORCE_SAFE']: A("s_or_b32 s55, s55, 1")
A(f"""
s_cmp_lg_u32 s55, 0
s_cbranch_scc1 L_slow
""")
RING = 24
def gather(p, idx):
    if SAFEADDR:
        A(f"v_add_u32 v{idx}, v{idx}, v40")
    A(f"buffer_load_dwordx2 v[{RING+2*p}:{RING+2*p+1}], v{idx}, s[40:43], 0 offen {SC}")
for p, idx in enumerate((8, 10, 32, 34)): gather(p, idx)
def initnd():
    for k in range(NS):
        for i in range(4): A(f"v_mov_b32 v{Nn(k)+i}, 0\nv_mov_b32 v{Dd(k)+i}, 1.0")
initnd()
A(f"""
v_mov_b32 v15, 1
s_waitcnt vmcnt(4)
s_mov_b64 exec, 1
ds_add_u32 v14, v15 offset:16
s_mov_b64 exec, -1
s_mov_b32 m0, 0
s_setprio 3
s_waitcnt lgkmcnt(0)
""")
ts(14)
for p in range(4):
    for k in range(NS):
        A(f"""
        L_E{k}_{p}:
        s_movrels_b32 s56, s{64+k}
        s_sub_u32 s56, s56, 1
        s_cbranch_scc0 L_B{k}_{p}
        """)
    A(f"""
    L_E{NS}_{p}:
    s_add_u32 m0, m0, 8
    s_setprio 2
    s_cmp_eq_u32 m0, 8
    s_cbranch_scc1 L_E0_{p}
    s_setprio 1
    s_cmp_eq_u32 m0, 16
    s_cbranch_scc1 L_E0_{p}
    s_setprio 0
    s_cmp_eq_u32 m0, 24
    s_cbranch_scc1 L_E0_{p}
    s_branch L_flush
    """)
SEL = "op_sel:[1,0,0] op_sel_hi:[1,1,1]"
for k in range(NS):
    q, n, d = Q(k), Nn(k), Dd(k)
    for p in range(4):
        qd = 16 + 4*(p >> 1); pr = qd + 2*(p & 1); rg = RING + 2*p
        A(f"L_B{k}_{p}:")
        if p % 2 == 0: A("s_waitcnt lgkmcnt(1)")
        A(f"""
        v_pk_fma_f32 v[8:9], v[{pr}:{pr+1}], v[4:5], v[{q}:{q+1}] {SEL}
        v_pk_fma_f32 v[10:11], v[{pr}:{pr+1}], v[6:7], v[{q+2}:{q+3}] {SEL}
        s_waitcnt vmcnt({R-1})
        s_sub_u32 s56, s56, 1
        v_mfma_f32_4x4x4_16b_bf16 v[8:11], v[2:3], v[{rg}:{rg+1}], v[8:11]
        """)
        gather(p, pr)
        if p % 2 == 1: A(f"ds_read_b128 v[{qd}:{qd+3}], v1 offset:{64+16*(p>>1)}")
        if p == 3: A("v_add_u32 v1, 32, v1")
        A(f"""
        v_exp_f32 v12, v8
        v_exp_f32 v13, v9
        v_exp_f32 v14, v10
        v_exp_f32 v15, v11
        v_pk_fma_f32 v[8:9], v[8:9], v[{d}:{d+1}], v[{n}:{n+1}]
        v_pk_fma_f32 v[10:11], v[10:11], v[{d+2}:{d+3}], v[{n+2}:{n+3}]
        v_pk_fma_f32 v[{d}:{d+1}], v[{d}:{d+1}], v[12:13], v[{d}:{d+1}]
        v_pk_fma_f32 v[{n}:{n+1}], v[{n}:{n+1}], v[12:13], v[8:9]
        v_pk_fma_f32 v[{d+2}:{d+3}], v[{d+2}:{d+3}], v[14:15], v[{d+2}:{d+3}]
        v_pk_fma_f32 v[{n+2}:{n+3}], v[{n+2}:{n+3}], v[14:15], v[10:11]
        s_cbranch_scc1 L_E{k+1}_{(p+1)&3}
        """)
    A(f"s_branch L_B{k}_0")
A("L_flush:\ns_waitcnt lgkmcnt(0)")
ts(15)
A(f"""
v_and_b32 v16, 7, v0
s_lshl_b32 s56, s3, 5
s_add_u32 s56, s56, {NODEOF}
v_lshl_add_u32 v16, v16, 2, s56
ds_read_b32 v17, v16
v_mov_b32 v32, 0
v_mov_b32 v33, 0
v_mov_b32 v34, 0
v_mov_b32 v35, 0
""")
foff(18, 19)
A(f"v_add_u32 v18, {HSB}, v18")
for k in range(NS):
    A(f"v_pk_fma_f32 v[32:33], v[{Nn(k)}:{Nn(k)+1}], v[{Dd(k)}:{Dd(k)+1}], v[32:33]\nv_pk_fma_f32 v[34:35], v[{Nn(k)+2}:{Nn(k)+3}], v[{Dd(k)+2}:{Dd(k)+3}], v[34:35]")
A(f"""
v_pk_add_f32 v[32:33], v[32:33], v[34:35]
v_add_f32 v32, v32, v33
v_mov_b32 v33, 0x207
v_cmp_class_f32 vcc, v32, v33
s_cmp_lg_u32 s55, 0
s_cbranch_scc1 L_fl2
""")
if OPT['FORCE_GUARD']: A("s_bitcmp1_b32 s3, 0\ns_cbranch_scc1 L_safe")
A(f"""
s_cbranch_vccnz L_safe
L_fl2:
s_waitcnt lgkmcnt(0)
v_mul_u32_u24 v19, {HROW}, v17
v_readlane_b32 s58, v17, 6
""")
for k in range(NS):
    n, d = Nn(k), Dd(k); o = 8 + 2*(k & 1)
    if k == 6: A("s_cmp_ge_u32 s58, s52\ns_cbranch_scc1 L_fl3")
    A(f"v_readlane_b32 s56, v19, {k}")
    for i in range(4): A(f"v_rcp_f32 v{d+i}, v{d+i}")
    A(f"""
    v_add_u32 v{20+(k&1)}, s56, v18
    v_pk_mul_f32 v[{n}:{n+1}], v[{n}:{n+1}], v[{d}:{d+1}]
    v_pk_mul_f32 v[{n+2}:{n+3}], v[{n+2}:{n+3}], v[{d+2}:{d+3}]
    v_cvt_pk_bf16_f32 v{o}, v{n}, v{n+1}
    v_cvt_pk_bf16_f32 v{o+1}, v{n+2}, v{n+3}
    ds_write_b64 v{20+(k&1)}, v[{o}:{o+1}]
    """)
A("L_fl3:")
ts(16)
A(f"""
s_and_b32 s60, s3, 3
s_lshr_b32 s61, s3, 2
v_lshrrev_b32 v4, 4, v0
v_and_b32 v5, 15, v0
s_lshl_b32 s56, s60, 6
v_lshl_add_u32 v6, v4, 4, s56
global_load_dwordx4 v[124:127], v6, s[18:19]
v_lshl_add_u32 v6, v5, 8, v6
v_bfe_u32 v7, v0, 2, 2
v_lshl_add_u32 v1, v4, 3, v7
v_lshlrev_b32 v1, 8, v1
v_xor_b32 v7, s60, v7
v_lshl_add_u32 v1, v7, 6, v1
v_and_b32 v7, 3, v0
v_lshl_add_u32 v1, v7, 4, v1
v_mov_b32 v14, {CTR}
s_mov_b32 s58, 0
L_w2w:
ds_read_b32 v15, v14 offset:16
s_add_u32 s58, s58, 1
s_waitcnt lgkmcnt(0)
v_readfirstlane_b32 s57, v15
s_cmp_ge_u32 s57, 16
s_cbranch_scc1 L_w2ok
s_sleep 1
s_cmp_lt_u32 s58, 0x100000
s_cbranch_scc1 L_w2w
L_w2ok:
""")
for s in range(8):
    for a in range(2):
        for hf in range(2):
            r = 44 + a*32 + s*4 + hf*2
            A(f"ds_read_b64_tr_b16 v[{r}:{r+1}], v1 offset:{8192*s+1024*hf+8*a}")
A(f"""
s_lshl_b32 s56, s61, 5
v_add_u32 v5, s56, v5
v_mul_u32_u24 v2, {HROW}, v5
v_lshl_add_u32 v2, v4, 4, v2
v_add_u32 v2, {HSB}, v2
s_mov_b32 s57, {KEY}
v_lshl_add_u32 v3, v5, 2, s57
s_mov_b32 s32, s20
s_mov_b32 s33, s21
s_add_u32 s34, s51, s52
s_lshl_b32 s34, s34, 8
s_mov_b32 s35, 0x00020000
s_add_u32 s58, s51, s56
s_lshl_b32 s58, s58, 8
s_add_u32 s59, s58, 4096
s_mov_b32 s56, {NLN2}
s_waitcnt vmcnt(0) lgkmcnt(0)
""")
ts(17)
bar()
ts(18)
A("ds_read_b32 v42, v3\nds_read_b32 v43, v3 offset:64\ns_cmp_eq_u32 s61, 3\ns_cbranch_scc1 L_g2one")
def gemm2(nt):
    BB = (108, 8)
    def rd(qg):
        for t in range(nt):
            for h in range(2):
                r = BB[qg & 1] + 8*t + 4*h
                A(f"ds_read_b128 v[{r}:{r+3}], v2 offset:{16*HROW*t + 64*(2*qg+h)}")
    rd(0)
    for qg in range(4):
        if qg < 3: rd(qg+1); A(f"s_waitcnt lgkmcnt({2*nt})")
        else: A("s_waitcnt lgkmcnt(0)")
        for h in range(2):
            s = 2*qg + h
            for t in range(nt):
                for a in range(2):
                    c = 24 + 8*t + 4*a; ar = 44 + a*32 + s*4; br = BB[qg & 1] + 8*t + 4*h
                    A(f"v_mfma_f32_16x16x32_bf16 v[{c}:{c+3}], v[{ar}:{ar+3}], v[{br}:{br+3}], " + ("0" if s == 0 else f"v[{c}:{c+3}]"))
    for i in range(4):
        A(f"v_lshlrev_b32 v{44+2*i}, 16, v{124+i}\nv_and_b32 v{45+2*i}, s26, v{124+i}")
    for t in range(nt):
        A(f"v_lshrrev_b32 v{42+t}, 7, v{42+t}\nv_cvt_f32_u32 v{42+t}, v{42+t}")
        for i in range(8): A(f"v_mul_f32 v{52+8*t+i}, v{42+t}, v{44+i}")
    for t in range(nt):
        c = 24 + 8*t
        for i in range(8): A(f"v_fma_f32 v{c+i}, v{c+i}, s56, v{52+8*t+i}")
        for i in range(4): A(f"v_cvt_pk_bf16_f32 v{68+4*t+i}, v{c+2*i}, v{c+2*i+1}")
        A(f"buffer_store_dwordx4 v[{68+4*t}:{71+4*t}], v6, s[32:35], s{58+t} offen")
gemm2(2)
A("s_branch L_fin\nL_g2one:")
gemm2(1)
A("L_fin:")
if TS:
    A("s_waitcnt vmcnt(0)")
    ts(19)
    A(f"""
    s_lshl_b32 s56, s2, 4
    s_add_u32 s56, s56, s3
    s_lshl_b32 s56, s56, 8
    s_add_u32 s56, s56, {WS_TS}
    v_lshlrev_b32 v1, 2, v0
    buffer_store_dword v41, v1, s[44:47], s56 offen
    """)
A("L_end:\ns_endpgm")

A(f"""
L_slow:
s_waitcnt vmcnt(0) lgkmcnt(0)
s_bitcmp1_b32 s55, 1
s_cbranch_scc0 L_slow1
s_barrier
s_mov_b32 s54, 0
L_recov_step:
s_add_u32 s54, s54, 1
s_add_u32 s48, s2, s54
s_and_b32 s48, s48, 255
s_branch L_phaseA
L_recovL:
s_barrier
s_waitcnt vmcnt(0)
s_barrier
s_barrier
L_recov_next:
s_barrier
s_cmp_lt_u32 s54, 256
s_cbranch_scc1 L_recov_step
v_mov_b32 v42, {CTR}
v_mov_b32 v43, 1
ds_write_b32 v42, v43 offset:12
s_waitcnt lgkmcnt(0)
s_barrier
s_branch L_B4
L_slow1:
v_mov_b32 v15, 1
s_mov_b64 exec, 1
ds_add_u32 v14, v15 offset:16
s_mov_b64 exec, -1
L_safe:
s_mov_b32 s55, 1
s_setprio 0
s_waitcnt vmcnt(0) lgkmcnt(0)
""")
initnd()
for k in range(NS): A(f"s_mov_b32 s{64+k}, 0")
srd(28, 10, E*4); srd(32, 8, E*4); srd(36, 6, E*2)
A(f"""
v_lshlrev_b32 v16, 2, v0
v_lshlrev_b32 v17, 1, v0
v_lshlrev_b32 v40, 3, v0
s_mov_b32 s72, 0
s_mov_b32 s73, {ASG}
L_sloop:
s_lshl_b32 s56, s72, 1
buffer_load_dword v18, v16, s[28:31], s56 offen
buffer_load_dword v19, v16, s[32:35], s56 offen
buffer_load_ushort v20, v17, s[36:39], s72 offen
s_waitcnt vmcnt(0)
v_subrev_u32 v21, s51, v18
v_cmp_gt_u32 vcc, s52, v21
s_cbranch_vccz L_snext
v_min_u32 v21, 127, v21
v_lshl_add_u32 v21, v21, 2, s73
ds_read_b32 v22, v21
s_waitcnt lgkmcnt(0)
v_lshrrev_b32 v23, 3, v22
v_cmp_eq_u32 s[96:97], s3, v23
s_and_b64 s[96:97], s[96:97], vcc
L_sbit:
s_cmp_eq_u64 s[96:97], 0
s_cbranch_scc1 L_snext
s_ff1_i32_b64 s56, s[96:97]
s_bitset0_b64 s[96:97], s56
v_readlane_b32 s57, v19, s56
v_readlane_b32 s58, v20, s56
v_readlane_b32 s60, v22, s56
s_and_b32 s57, s57, 0x7fff
s_lshl_b32 s57, s57, 9
s_lshl_b32 s58, s58, 16
s_mov_b32 s59, s58
s_and_b32 s60, s60, 7
buffer_load_dwordx2 v[24:25], v40, s[44:47], s57 offen sc1
""")
for k in range(NS):
    q, n = Q(k), Nn(k)
    if k < NS-1: A(f"s_cmp_lg_u32 s60, {k}\ns_cbranch_scc1 L_sk{k+1}")
    A(f"""
    v_pk_fma_f32 v[8:9], s[58:59], v[4:5], v[{q}:{q+1}]
    v_pk_fma_f32 v[10:11], s[58:59], v[6:7], v[{q+2}:{q+3}]
    s_add_u32 s{64+k}, s{64+k}, 128
    s_waitcnt vmcnt(0)
    v_mfma_f32_4x4x4_16b_bf16 v[8:11], v[2:3], v[24:25], v[8:11]
    v_exp_f32 v12, v8
    v_exp_f32 v13, v9
    v_exp_f32 v14, v10
    v_exp_f32 v15, v11
    v_pk_add_f32 v[12:13], v[12:13], 1.0 op_sel_hi:[1,0]
    v_pk_add_f32 v[14:15], v[14:15], 1.0 op_sel_hi:[1,0]
    v_rcp_f32 v12, v12
    v_rcp_f32 v13, v13
    v_rcp_f32 v14, v14
    v_rcp_f32 v15, v15
    v_pk_fma_f32 v[{n}:{n+1}], v[8:9], v[12:13], v[{n}:{n+1}]
    v_pk_fma_f32 v[{n+2}:{n+3}], v[10:11], v[14:15], v[{n+2}:{n+3}]
    s_branch L_sbit
    """)
    if k < NS-1: A(f"L_sk{k+1}:")
A(f"""
L_snext:
s_add_u32 s72, s72, 128
s_cmp_lt_u32 s72, {2*E}
s_cbranch_scc1 L_sloop
v_and_b32 v16, 7, v0
v_min_u32 v16, 6, v16
s_lshl_b32 s56, s3, 5
s_add_u32 s56, s56, {NODEOF}
v_lshl_add_u32 v16, v16, 2, s56
ds_read_b32 v17, v16
v_mov_b32 v18, 0
""")
for k in range(NS): A(f"v_writelane_b32 v18, s{64+k}, {k}")
A(f"""
s_mov_b32 s57, {KEY}
s_waitcnt lgkmcnt(0)
v_lshl_add_u32 v17, v17, 2, s57
s_mov_b64 exec, 0x7f
ds_write_b32 v17, v18
s_mov_b64 exec, -1
s_branch L_flush
""")

body, npad = pad(L, verbose=bool(OPT.get('V')))
hdr = open('standalone__edge_featured_mpnn_mpnn__graph.s.ref').read().split('; Override')[0]
out = hdr + f"; @launch grid=(256,1,1) block=(1024,1,1) lds={LDS}\n"
out += f'.amdgcn_target "amdgcn-amd-amdhsa--gfx950"\n.text\n.globl {KN}\n.p2align 8\n.type {KN},@function\n'
out += "\n".join(body) + "\n"
out += f""".section .rodata,"a"
.p2align 6
.amdhsa_kernel {KN}
  .amdhsa_next_free_vgpr 128
  .amdhsa_next_free_sgpr 102
  .amdhsa_accum_offset 128
  .amdhsa_group_segment_fixed_size 0
  .amdhsa_kernarg_size 88
  .amdhsa_user_sgpr_count 2
  .amdhsa_user_sgpr_kernarg_segment_ptr 1
  .amdhsa_system_sgpr_workgroup_id_x 1
.end_amdhsa_kernel
"""
open(OPT.get('OUT', 'k.s'), 'w').write(out)
print("pads", npad, "lines", len(body), file=sys.stderr)
```

```python
import sys, os, struct
sys.path.insert(0, os.path.dirname(os.path.abspath(__file__)))
from asmlib import *

OPT = dict(TS=0, SAFEADDR=0, FORCE_SAFE=0, FORCE_RECOV=0, FORCE_GUARD=0, POLLMAX=6000, PIPE=1, GDELAY=0, STMODE=4, SLP=4, XORD=0, NT=1, PDELAY=0, LPRIO=2, CDELAY=0, STS='110', W2MODE=1, RECMODE=0, PACE=0, PUBT=0, XEARLY=0, WBD=2, HOOK=3, SD1=0, SD2=16, SD3=4, W2B=8)
for a in sys.argv[1:]:
    k, v = a.split('=')
    OPT[k] = int(v) if v.lstrip('-').isdigit() else v
TS = OPT['TS']; SAFEADDR = OPT['SAFEADDR']; POLLMAX = OPT['POLLMAX']; PIPE = OPT['PIPE']; SLP = OPT['SLP']
SC = 'sc1'
RM = OPT['RECMODE']
KN = "standalone__edge_featured_mpnn_mpnn__graph_kernel"

def f32(x): return "0x%08x" % struct.unpack('<I', struct.pack('<f', x))[0]
NLOG2E = f32(-1.4426950408889634); NLN2 = f32(-0.6931471805599453)

N = 25000; E = 400000; CH = 1564
WS_REC = 0xD00000; REC_STRIDE = 12544; WS_OFF = 0x1040000; WS_PF = 0x1080000; WS_TS = 0x1500000; WS_SIZE = 0x2000000
QBLK = 14336; QROW = 144
STG = 114688; CNT = 127232; START = 128256; KEY = 129280; NODEOF = 129792; ASG = 130304; CTR = 130816
C_REC, C_PA, C_GO, C_ABORT, C_W2, C_PB, C_PFB, C_DUMMY, C_X, C_RL, C_S2, C_S3, C_PFC, C_WB, C_PC = 0, 4, 8, 12, 16, 20, 24, 28, 32, 36, 40, 44, 48, 52, 56
XB = 131072; LW = 1792; CAPE = 208; CNT2 = 161792; LDS = 163840
OOB = 0x10000000
TGT = 64
PARK = 65536; PROW = 528; HSB = 65536; HROW = 528
R = 4; NS = 7; S = 4
SB0 = 44
def Q(k): return SB0 + 12*k
def Nn(k): return SB0 + 12*k + 4
def Dd(k): return SB0 + 12*k + 8
SPIN = 0x100000

L = []
def A(s):
    for line in s.strip('\n').split('\n'):
        line = line.strip()
        if not line: continue
        L.append(line if line.endswith(':') or line.startswith(('.', ';')) else "    " + line)
def srd(r, lo, size, w3="0x00020000"):
    A(f"s_mov_b32 s{r}, s{lo}\ns_mov_b32 s{r+1}, s{lo+1}\ns_mov_b32 s{r+2}, {size}\ns_mov_b32 s{r+3}, {w3}")
def ts(i):
    if TS: A(f"s_memrealtime s[100:101]\ns_waitcnt lgkmcnt(0)\nv_writelane_b32 v41, s100, {i}")
def bar(): A("s_barrier")
uid = [0]
def lab(p):
    uid[0] += 1; return f"L_{p}_{uid[0]}"
def dpp_add(v, ctl, m="row_mask:0xf bank_mask:0xf bound_ctrl:0"):
    A(f"v_add_u32_dpp v{v}, v{v}, v{v} {ctl} {m}")
def bucket_range(cur, b, n0, n1):
    A(f"""
    s_and_b32 s{b}, s{cur}, 7
    s_lshl_b32 s{b}, s{b}, 5
    s_lshr_b32 s27, s{cur}, 3
    s_or_b32 s{b}, s{b}, s27
    s_mul_i32 s{n0}, s{b}, 6400845
    s_add_u32 s{n0}, s{n0}, 65535
    s_add_u32 s{n1}, s{n0}, 6400845
    s_lshr_b32 s{n0}, s{n0}, 16
    s_lshr_b32 s{n1}, s{n1}, 16
    s_min_u32 s{n1}, s{n1}, {N}
    """)
def foff(v, t):
    A(f"""
    v_lshrrev_b32 v{v}, 3, v0
    v_lshlrev_b32 v{v}, 6, v{v}
    v_and_b32 v{t}, 1, v0
    v_lshl_add_u32 v{v}, v{t}, 5, v{v}
    v_bfe_u32 v{t}, v0, 1, 2
    v_lshl_add_u32 v{v}, v{t}, 3, v{v}
    """)
def lds_or(off, val):
    A(f"v_mov_b32 v43, {val}\nds_or_b32 v42, v43 offset:{off}")
def lds_spin(off, dst, cmp_ok, ok, tmp=58, slp=1):
    l = lab('spin')
    A(f"""
    s_mov_b32 s{tmp}, 0
    {l}:
    ds_read_b32 v43, v42 offset:{off}
    s_add_u32 s{tmp}, s{tmp}, 1
    s_waitcnt lgkmcnt(0)
    v_readfirstlane_b32 s{dst}, v43
    {cmp_ok}
    s_cbranch_scc1 {ok}
    s_sleep {slp}
    s_cmp_lt_u32 s{tmp}, {SPIN}
    s_cbranch_scc1 {l}
    """)
def lsync(off, tmp=60):
    l = lab('ls'); ok = lab('lsok')
    A(f"""
    s_mov_b64 exec, 1
    ds_add_u32 v42, v10 offset:{off}
    s_mov_b64 exec, -1
    s_mov_b32 s{tmp}, 0
    {l}:
    ds_read_b32 v43, v42 offset:{off}
    s_add_u32 s{tmp}, s{tmp}, 1
    s_waitcnt lgkmcnt(0)
    v_readfirstlane_b32 s{tmp+1}, v43
    s_cmp_ge_u32 s{tmp+1}, 7
    s_cbranch_scc1 {ok}
    s_cmp_lt_u32 s{tmp}, {SPIN}
    s_cbranch_scc1 {l}
    {ok}:
    """)
NT = 'nt' if OPT['NT'] else ''
def caddr(v, t, s):
    A(f"""
    v_lshrrev_b32 v{v}, 3, v0
    v_lshlrev_b32 v{v}, 13, v{v}
    v_and_b32 v{t}, 7, v0
    v_lshl_add_u32 v{v}, v{t}, 7, v{v}
    v_lshl_add_u32 v{t}, v0, 2, v42
    s_and_b32 s{s}, s2, 7
    s_lshl_b32 s{s}, s{s}, 10
    s_add_u32 s{s}, s{s}, {WS_PF}
    """)
def signal(ty, v, one, s):
    A(f"""
    s_mov_b64 exec, 0xff
    v_lshlrev_b32 v{v}, 10, v0
    v_mov_b32 v{one}, 1
    s_lshl_b32 s{s}, s2, 4
    s_and_b32 s{s}, s{s}, 0x380
    s_add_u32 s{s}, s{s}, {WS_PF + 8192*ty}
    buffer_atomic_add v{one}, v{v}, s[44:47], s{s} offen sc1
    """)
def snap():
    A(f"""
    v_lshrrev_b32 v27, 1, v0
    s_lshl_b32 s56, s62, 5
    v_add_u32 v27, s56, v27
    v_lshlrev_b32 v25, 10, v27
    s_lshl_b32 s98, s53, 2
    s_add_u32 s98, s98, {WS_OFF}
    """)
    if RM: A("buffer_load_dword v26, v25, s[44:47], s98 offen sc1")
def const_loads():
    foff(32, 33)
    A("v_add_u32 v33, 0x20000, v32\nglobal_load_dwordx2 v[36:37], v33, s[12:13]\nglobal_load_dwordx2 v[38:39], v32, s[14:15]")
def initnd(ks, only=None, skip=()):
    for k in ks:
        for r, val in ((Nn(k), "0"), (Dd(k), "1.0")):
            if r in skip or (only is not None and r not in only): continue
            for i in range(4): A(f"v_mov_b32 v{r+i}, {val}")
def prep():
    A(f"""
    s_mov_b32 s56, {NLOG2E}
    s_mov_b32 s57, {NLOG2E}
    v_lshlrev_b32 v4, 16, v36
    v_and_b32 v5, s26, v36
    v_lshlrev_b32 v6, 16, v37
    v_and_b32 v7, s26, v37
    v_lshlrev_b32 v32, 16, v38
    v_and_b32 v33, s26, v38
    v_lshlrev_b32 v34, 16, v39
    v_and_b32 v35, s26, v39
    v_pk_mul_f32 v[4:5], v[4:5], s[56:57]
    v_pk_mul_f32 v[6:7], v[6:7], s[56:57]
    v_pk_mul_f32 v[32:33], v[32:33], s[56:57]
    v_pk_mul_f32 v[34:35], v[34:35], s[56:57]
    v_and_b32 v8, 3, v0
    v_lshlrev_b32 v8, 4, v8
    v_mov_b32 v12, 0x3f80
    v_mov_b32 v13, 0
    v_lshlrev_b64 v[2:3], v8, v[12:13]
    s_mul_i32 s59, s3, {LW}
    s_add_u32 s59, s59, {XB}
    v_mov_b32 v1, s59
    v_lshrrev_b32 v14, 3, v0
    s_lshl_b32 s56, s3, 3
    v_add_u32 v12, s56, v14
    s_mov_b32 s57, {KEY}
    v_lshl_add_u32 v8, v12, 2, s57
    v_and_b32 v15, 7, v0
    v_lshl_add_u32 v9, v15, 6, s57
    v_mul_u32_u24 v14, {QBLK}, v14
    v_lshl_add_u32 v14, v15, 4, v14
    s_lshl_b32 s56, s3, 5
    s_add_u32 s56, s56, {NODEOF}
    v_lshl_add_u32 v13, v15, 2, s56
    v_lshrrev_b32 v15, 4, v0
    v_lshlrev_b32 v40, 2, v15
    v_and_b32 v43, 15, v0
    v_xor_b32 v40, v40, v43
    v_lshlrev_b32 v40, 4, v40
    v_lshl_add_u32 v40, v15, 8, v40
    """)

A(f"""
{KN}:
s_cmp_ge_u32 s2, 256
s_cbranch_scc1 L_end
s_load_dwordx16 s[4:19], s[0:1], 0
s_load_dwordx4 s[20:23], s[0:1], 64
s_load_dwordx2 s[24:25], s[0:1], 80
v_lshrrev_b32 v1, 6, v0
v_and_b32 v0, 63, v0
v_readfirstlane_b32 s3, v1
s_mov_b32 s26, 0xffff0000
s_mov_b32 s54, 0
s_mov_b32 s55, 0
s_mov_b32 s48, s2
v_mov_b32 v41, 0
v_mov_b32 v42, {CTR}
v_mov_b32 v{Q(5)}, 0
v_mov_b32 v11, 0
v_mov_b32 v22, 0
""")
bucket_range(2, 53, 51, 52)
A("s_mov_b32 s49, s51\ns_mov_b32 s50, s52\ns_sub_u32 s52, s52, s51\ns_sub_u32 s62, s3, 8\ns_mov_b32 s27, 0")
A(f"""
s_lshl_b32 s56, s62, 6
v_add_u32 v1, s56, v0
s_mul_i32 s57, s2, {CH}
v_lshl_add_u32 v2, v1, 2, s57
v_lshlrev_b32 v3, 2, v2
v_lshlrev_b32 v4, 1, v2
s_mov_b32 s30, {E*4}
s_mov_b32 s31, 0x00020000
s_mov_b32 s34, {E*4}
s_mov_b32 s35, 0x00020000
s_mov_b32 s38, {E*2}
s_mov_b32 s39, 0x00020000
s_mov_b32 s46, {WS_SIZE}
s_mov_b32 s47, 0x00020000
s_waitcnt lgkmcnt(0)
""")
ts(0)
A("s_mov_b32 s44, s24\ns_mov_b32 s45, s25\ns_mov_b32 s32, s8\ns_mov_b32 s33, s9")
A("s_cmp_lt_u32 s3, 8\ns_cbranch_scc1 L_Gfirst\ns_cmp_eq_u32 s3, 15\ns_cbranch_scc1 L_W15")
A(f"""
s_mov_b32 s28, s10
s_mov_b32 s29, s11
s_mov_b32 s36, s6
s_mov_b32 s37, s7
buffer_load_dwordx4 v[44:47], v3, s[28:31], 0 offen {NT}
buffer_load_dwordx4 v[48:51], v3, s[32:35], 0 offen {NT}
buffer_load_dwordx2 v[52:53], v4, s[36:39], 0 offen {NT}
s_setprio {OPT['LPRIO']}
""")
ts(20)
A(f"""
s_lshl_b32 s99, s2, 10
s_add_u32 s99, s99, {WS_OFF}
v_lshlrev_b32 v14, 4, v0
""")
if RM: A("buffer_load_dwordx4 v[28:31], v14, s[44:47], s99 offen sc1")
snap()
const_loads()
A(f"""
v_cmp_gt_u32 vcc, {CH//4}, v1
v_mov_b32 v3, {E}
v_cmp_gt_u32 s[96:97], v3, v2
s_and_b64 s[96:97], s[96:97], vcc
v_mov_b32 v10, 1
s_movk_i32 s56, 2684
s_mov_b32 s57, {CNT}
s_movk_i32 s58, {N-1}
v_lshl_add_u32 v11, v0, 4, s57
""")
ts(22)
bar()
ts(23)
A(f"s_waitcnt vmcnt({4+2*RM})")
ts(1)
A("s_mov_b64 exec, s[96:97]")
for i in range(4):
    A(f"""
    v_min_u32 v{44+i}, s58, v{44+i}
    v_mul_u32_u24 v{54+i}, s56, v{44+i}
    v_lshrrev_b32 v{54+i}, 18, v{54+i}
    v_lshl_add_u32 v{54+i}, v{54+i}, 2, s57
    ds_add_rtn_u32 v{58+i}, v{54+i}, v10
    """)
lsync(C_S2)
ts(2)
A(f"ds_read_b128 v[64:67], v11\ns_waitcnt vmcnt({2+2*RM})")
for i in range(4):
    A(f"""
    v_min_u32 v{48+i}, s58, v{48+i}
    v_and_b32 v{44+i}, 127, v{44+i}
    v_bfe_u32 v62, v{48+i}, 4, 2
    v_lshl_add_u32 v{44+i}, v{44+i}, 2, v62
    v_lshlrev_b32 v{48+i}, 9, v{48+i}
    v_lshlrev_b32 v{44+i}, 2, v{44+i}
    """)
A(f"""
s_waitcnt lgkmcnt(0)
v_add_u32 v69, v64, v65
v_add_u32 v70, v69, v66
v_add_u32 v72, v70, v67
v_mov_b32 v73, v72
v_lshl_or_b32 v44, v52, 16, v44
v_and_or_b32 v45, v52, s26, v45
""")
dpp_add(73, "row_shr:1")
A("v_lshl_or_b32 v46, v53, 16, v46\nv_and_or_b32 v47, v53, s26, v47")
dpp_add(73, "row_shr:2"); dpp_add(73, "row_shr:4"); dpp_add(73, "row_shr:8")
dpp_add(73, "row_bcast:15", "row_mask:0xa bank_mask:0xf"); dpp_add(73, "row_bcast:31", "row_mask:0xc bank_mask:0xf")
A(f"""
v_sub_u32 v76, v73, v72
v_add_u32 v77, v76, v64
v_add_u32 v78, v76, v69
v_add_u32 v79, v76, v70
ds_write_b128 v11, v[76:79] offset:{START-CNT}
s_mov_b64 exec, s[96:97]
""")
for i in range(4): A(f"ds_read_b32 v{54+i}, v{54+i} offset:{START-CNT}")
A(f"s_mov_b32 s57, {STG}")
for i in range(4): A(f"v_lshl_add_u32 v{58+i}, v{58+i}, 3, s57")
for i in range(4):
    A(f"""
    s_waitcnt lgkmcnt(3)
    v_lshl_add_u32 v{54+i}, v{54+i}, 3, v{58+i}
    ds_write2_b32 v{54+i}, v{48+i}, v{44+i} offset0:0 offset1:1
    """)
A(f"""
s_mov_b64 exec, -1
v_lshl_add_u32 v12, v1, 4, s57
v_lshlrev_b32 v13, 4, v1
s_mul_i32 s56, s2, {REC_STRIDE}
s_add_u32 s56, s56, {WS_REC}
s_add_u32 s57, s56, 7168
v_cmp_gt_u32 vcc, 334, v1
""")
lsync(C_S3)
ts(3)
A(f"""
ds_read_b128 v[84:87], v12
ds_read_b128 v[88:91], v12 offset:7168
s_brev_b32 s58, 1
v_lshl_or_b32 v80, v64, 16, v76
v_lshl_or_b32 v81, v65, 16, v77
v_lshl_or_b32 v82, v66, 16, v78
v_lshl_or_b32 v83, v67, 16, v79
s_waitcnt lgkmcnt(1)
buffer_store_dwordx4 v[84:87], v13, s[44:47], s56 offen {SC}
s_cbranch_vccz L_nost2
s_mov_b64 exec, vcc
s_waitcnt lgkmcnt(0)
buffer_store_dwordx4 v[88:91], v13, s[44:47], s57 offen {SC}
""")
if not RM: A(f"s_branch L_st3\nL_nost2:\nbuffer_store_dwordx4 v[80:83], v14, s[44:47], s99 offen {SC}\nL_st3:")
else: A("L_nost2:")
A(f"""
s_mov_b64 exec, 1
s_waitcnt vmcnt(0) lgkmcnt(0)
ds_add_rtn_u32 v15, v42, v10 offset:{C_REC}
s_mov_b64 exec, -1
""")
if RM:
    for i in range(4): A(f"v_not_b32 v{28+i}, v{28+i}")
    for i in range(4): A(f"v_and_or_b32 v{80+i}, v{28+i}, s58, v{80+i}")
A(f"""
s_waitcnt lgkmcnt(0)
v_readfirstlane_b32 s58, v15
s_cmp_lg_u32 s58, 6
s_cbranch_scc1 L_B0
""")
if RM: A(f"buffer_store_dwordx4 v[80:83], v14, s[44:47], s99 offen {SC}")
else: signal(0, 13, 14, 56)
A("s_branch L_B0")
A(f"""
L_W15:
v_mov_b32 v16, 0
v_mov_b32 v17, 0
v_mov_b32 v18, 0
v_mov_b32 v19, 0
v_lshlrev_b32 v1, 4, v0
""")
caddr(22, 23, 61)
A(f"""
s_mov_b64 exec, 0xffffffff
buffer_load_dword v24, v22, s[44:47], s61 offen sc1
s_mov_b64 exec, 0xffff
s_lshr_b32 s56, s2, 3
s_lshl_b32 s56, s56, 11
v_lshl_add_u32 v28, v0, 7, s56
v_add_u32 v29, 0x10000, v28
global_load_dword v30, v29, s[12:13]
global_load_dword v31, v28, s[16:17]
s_mov_b64 exec, -1
""")
snap()
A(f"""
v_add_u32 v2, {CNT}, v1
ds_write_b128 v2, v[16:19]
v_add_u32 v2, {CNT2}, v1
ds_write_b128 v2, v[16:19]
ds_write_b128 v2, v[16:19] offset:1024
v_lshlrev_b32 v3, 2, v0
v_add_u32 v2, {CTR}, v3
ds_write_b32 v2, v16
v_mov_b32 v20, {OOB}
ds_write_b32 v42, v20 offset:{C_DUMMY}
v_add_u32 v2, {KEY}, v3
v_subrev_u32 v20, s51, v0
v_not_b32 v20, v20
v_and_b32 v20, 127, v20
v_xor_b32 v21, 64, v20
ds_write_b32 v2, v20
ds_write_b32 v2, v21 offset:256
""")
ts(21)
const_loads()
A("s_waitcnt lgkmcnt(0)")
ts(22)
bar()
ts(1)
A(f"""
s_setprio {OPT['LPRIO']}
s_waitcnt vmcnt(0)
v_add_u32 v24, 32, v24
s_mov_b64 exec, 0xffffffff
ds_write_b32 v23, v24 offset:{TGT}
""")
A("L_B0:\ns_mov_b64 exec, -1")
ts(4)
A(f"""
v_and_b32 v19, 1, v0
v_lshlrev_b32 v19, 1, v19
s_movk_i32 s57, {REC_STRIDE}
v_mul_u32_u24 v10, s57, v27
v_lshl_add_u32 v10, v19, 3, v10
""")
prep()
for i in range(6):
    for j in range(2): A(f"v_mov_b32 v{Dd(i)+2*j}, {CTR+C_DUMMY}\nv_mov_b32 v{Dd(i)+2*j+1}, 0")
initnd([6])
def pace():
    if OPT['PACE']:
        lds_spin(C_PA if OPT['PACE'] == 1 else C_X, 57, "s_cmp_ge_u32 s57, 8", "L_paced", slp=2)
        A("L_paced:")
    if OPT['PDELAY']: A(f"s_sleep {OPT['PDELAY']}")
def abort0():
    lds_or(C_ABORT, 2)
    A(f"""
    v_mov_b32 v16, 1
    ds_add_u32 v42, v16 offset:{C_RL}
    s_mov_b32 s63, 0
    s_branch L_B1done
    """)
def waddr(v, t, u):
    A(f"""
    v_lshrrev_b32 v{v}, 2, v0
    v_lshlrev_b32 v{v}, 9, v{v}
    v_lshrrev_b32 v{t}, 5, v0
    v_lshlrev_b32 v{t}, 1, v{t}
    v_and_b32 v{u}, 3, v0
    v_xor_b32 v{t}, v{t}, v{u}
    v_lshl_add_u32 v{v}, v{t}, 4, v{v}
    """)
A("s_cmp_lg_u32 s3, 15\ns_cbranch_scc1 L_nw15")
srd(28, 12, 257*512)
waddr(16, 17, 18)
lds_spin(C_S3, 57, "s_cmp_ge_u32 s57, 7", "L_wb0", slp=1)
A(f"""
L_wb0:
s_sleep {OPT['WBD']}
s_mov_b32 s56, 65536
s_mov_b32 s57, 8192
L_wb1:
s_mov_b32 m0, s57
s_mov_b32 s58, s56
""")
for i in range(6):
    A("buffer_load_dwordx4 v16, s[28:31], s58 offen lds")
    if i < 5: A("s_add_u32 m0, m0, 1024\ns_add_u32 s58, s58, 8192")
A(f"""
s_add_u32 s56, s56, 64
s_add_u32 s57, s57, {QBLK}
s_cmp_lt_u32 s56, {65536+512}
s_cbranch_scc1 L_wb1
s_waitcnt vmcnt(0)
""")
lds_or(C_WB, 1)
ts(23)
lds_spin(C_REC, 57, "s_cmp_ge_u32 s57, 7", "L_own", slp=2)
A("L_own:")
if RM:
    A("L_nw15:")
    pace()
    ts(5)
    A(f"""
    s_mov_b32 s58, 0
    L_offp:
    buffer_load_dword v18, v25, s[44:47], s98 offen sc1
    s_add_u32 s58, s58, 1
    s_waitcnt vmcnt(0)
    v_xor_b32 v16, v18, v26
    v_cmp_le_i32 vcc, 0, v16
    s_cbranch_vccz L_offok
    s_mov_b64 exec, vcc
    s_sleep {SLP}
    s_cmp_lt_u32 s58, {POLLMAX}
    s_cbranch_scc1 L_offp
    s_mov_b64 exec, -1
    """)
    abort0()
    A("L_offok:\ns_mov_b64 exec, -1")
    if TS: A("v_writelane_b32 v41, s58, 40")
else:
    pace()
    ts(24)
    A(f"""
    s_mov_b64 exec, 0xff
    s_mov_b32 s58, 0
    L_offp:
    buffer_load_dword v18, v22, s[44:47], s61 offen sc1
    s_add_u32 s58, s58, 1
    s_waitcnt vmcnt(0)
    v_cmp_ne_u32 vcc, v18, v24
    s_cbranch_vccz L_go
    s_mov_b64 exec, vcc
    s_sleep {SLP}
    s_cmp_lt_u32 s58, {POLLMAX}
    s_cbranch_scc1 L_offp
    """)
    lds_or(C_GO, 2)
    A("s_branch L_B0_to\nL_go:")
    lds_or(C_GO, 1)
    if TS: A("v_writelane_b32 v41, s58, 40")
    A("s_mov_b64 exec, -1\ns_branch L_offok\nL_nw15:")
    lds_spin(C_GO, 57, "s_cmp_lg_u32 s57, 0", "L_goseen", slp=2)
    A(f"""
    L_goseen:
    s_cmp_eq_u32 s57, 1
    s_cbranch_scc1 L_offok
    L_B0_to:
    s_mov_b64 exec, -1
    """)
    abort0()
    A("L_offok:\nbuffer_load_dword v18, v25, s[44:47], s98 offen sc1")
    ts(5)
    A("s_waitcnt vmcnt(0)")
ts(6)
A(f"""
v_and_b32 v16, 0xffff, v18
v_bfe_u32 v11, v18, 16, 15
v_lshl_add_u32 v10, v16, 3, v10
v_cmp_lt_u32 vcc, 24, v11
v_sub_u32 v11, v11, v19
s_mov_b32 s56, {WS_REC}
s_mov_b32 s63, 0
""")
for i in range(6):
    m = 72+4*i
    A(f"""
    v_cmp_lt_i32 s[{m}:{m+1}], {4*i}, v11
    s_cmp_eq_u64 s[{m}:{m+1}], 0
    s_cbranch_scc1 L_ldone
    s_mov_b64 exec, s[{m}:{m+1}]
    buffer_load_dwordx4 v[{Nn(i)}:{Nn(i)+3}], v10, s[44:47], s56 offen offset:{32*i} sc1
    v_cmp_lt_i32 s[{m+2}:{m+3}], {4*i+1}, v11
    s_add_u32 s63, s63, 1
    """)
A(f"""
L_ldone:
s_mov_b64 exec, -1
s_cbranch_vccz L_noovf
""")
lds_or(C_ABORT, 1)
A(f"""
L_noovf:
v_mov_b32 v16, 1
v_mov_b32 v17, 128
v_mov_b32 v18, {CNT2}
s_movk_i32 s57, 0x7fc
s_mov_b32 s58, {KEY}
s_waitcnt vmcnt(0)
ds_add_u32 v42, v16 offset:{C_RL}
""")
ts(7)
for i in range(6):
    A(f"s_cmp_le_u32 s63, {i}\ns_cbranch_scc1 L_B1done")
    for j in range(2):
        sr = Nn(i)+2*j; d1 = sr+1; ad = Dd(i)+2*j; rk = ad+1; u = 20+j; m = 72+4*i+2*j
        A(f"""
        s_mov_b64 exec, s[{m}:{m+1}]
        v_and_or_b32 v{ad}, v{d1}, s57, v18
        v_bfe_u32 v{u}, v{d1}, 4, 7
        ds_add_rtn_u32 v{rk}, v{ad}, v16
        v_lshl_add_u32 v{u}, v{u}, 2, s58
        v_and_b32 v{d1}, s26, v{d1}
        ds_add_u32 v{u}, v17
        """)
A("L_B1done:\ns_mov_b64 exec, -1\ns_setprio 0\ns_waitcnt lgkmcnt(0)")
ts(8)
A("s_branch L_C1")

A("L_phaseA:")
bucket_range(48, 56, 49, 50)
A("s_cmp_ge_u32 s3, 8\ns_cbranch_scc1 L_recovL\nL_Gfirst:")
srd(28, 12, 257*512)
A(f"""
v_lshrrev_b32 v1, 2, v0
v_lshlrev_b32 v1, 9, v1
v_lshrrev_b32 v2, 5, v0
v_lshlrev_b32 v2, 1, v2
v_and_b32 v3, 3, v0
v_xor_b32 v2, v2, v3
v_lshl_add_u32 v1, v2, 4, v1
s_lshl_b32 s56, s3, 6
v_add_u32 v1, s56, v1
s_mul_i32 s57, s3, {QBLK}
""")
if OPT['GDELAY']: A(f"s_sleep {OPT['GDELAY']}")
def wdma(base, n=8, ldsoff=0):
    A(f"s_add_u32 m0, s57, {ldsoff}\ns_mov_b32 s56, {base}")
    for i in range(n):
        A(f"buffer_load_dwordx4 v1, s[28:31], s56 offen lds")
        if i < n-1: A("s_add_u32 m0, m0, 1024\ns_add_u32 s56, s56, 8192")
srd(32, 4, N*256)
A(f"""
v_lshrrev_b32 v5, 4, v0
v_and_b32 v6, 15, v0
v_xor_b32 v6, v6, v5
v_lshlrev_b32 v6, 4, v6
v_lshl_add_u32 v6, v5, 8, v6
v_xor_b32 v7, 64, v6
v_xor_b32 v8, 0x80, v6
v_xor_b32 v9, 0xc0, v6
s_lshl_b32 s56, s3, 12
s_add_u32 s59, s56, {XB}
s_lshl_b32 s58, s49, 8
s_add_u32 s58, s58, s56
""")
def xdma():
    A(f"""
    s_mov_b32 m0, s59
    buffer_load_dwordx4 v6, s[32:35], s58 offen {NT} lds
    s_cmp_eq_u32 s3, 7
    s_cbranch_scc1 L_x1
    buffer_load_dwordx4 v7, s[32:35], s58 offen offset:1024 {NT} lds
    buffer_load_dwordx4 v8, s[32:35], s58 offen offset:2048 {NT} lds
    buffer_load_dwordx4 v9, s[32:35], s58 offen offset:3072 {NT} lds
    L_x1:
    """)
if OPT['XEARLY']: xdma()
ts(20)
bar()
if not OPT['XEARLY']: xdma()
wdma(0)
ts(21)
const_loads()
A(f"""
v_lshrrev_b32 v4, 4, v0
v_bfe_u32 v5, v0, 2, 2
v_lshl_add_u32 v5, v4, 3, v5
v_lshlrev_b32 v2, 6, v5
v_lshl_add_u32 v2, v3, 3, v2
v_and_b32 v5, 1, v4
v_lshl_add_u32 v2, v5, 5, v2
v_add_u32 v2, s57, v2
v_xor_b32 v3, 32, v2
v_and_b32 v5, 15, v0
v_xor_b32 v6, v4, v5
v_lshlrev_b32 v6, 4, v6
v_lshl_add_u32 v16, v5, 8, v6
v_add_u32 v16, {XB}, v16
v_xor_b32 v17, 64, v16
v_xor_b32 v18, 0x80, v16
v_xor_b32 v19, 0xc0, v16
s_add_u32 s60, s49, 15
s_and_b32 s60, s60, -16
s_sub_u32 s61, s60, s49
v_add_u32 v7, s61, v5
v_and_b32 v6, 15, v7
v_xor_b32 v6, v4, v6
v_lshlrev_b32 v6, 4, v6
v_lshl_add_u32 v20, v7, 8, v6
v_add_u32 v20, {XB}, v20
v_xor_b32 v21, 64, v20
v_xor_b32 v22, 0x80, v20
v_xor_b32 v23, 0xc0, v20
v_lshlrev_b32 v6, 9, v5
v_lshl_add_u32 v6, v4, 4, v6
s_lshl_b32 s56, s3, 6
v_add_u32 v6, s56, v6
v_mul_u32_u24 v7, {QROW}, v5
v_lshl_add_u32 v7, v4, 5, v7
v_add_u32 v7, s57, v7
s_mov_b32 s32, s24
s_mov_b32 s33, s25
s_add_u32 s34, s50, 15
s_and_b32 s34, s34, -16
s_lshl_b32 s34, s34, 9
s_mov_b32 s35, 0x00020000
s_mov_b32 s92, {NLOG2E}
s_mov_b32 s93, {NLOG2E}
s_lshr_b32 s61, s60, 4
s_sub_u32 s61, 0, s61
s_and_b32 s61, s61, 3
s_lshl_b32 s60, s60, 9
""")
for i in range(7):
    A(f"s_lshl_b32 s{64+i}, s61, 12\ns_lshl_b32 s{84+i}, s61, 13\ns_add_u32 s{84+i}, s{84+i}, s60")
    if i < 6: A("s_add_u32 s61, s61, 4\ns_sub_u32 s56, s61, 7\ns_cselect_b32 s61, s61, s56")
ts(22)
AF = 96; BFQ = ((48, 68, 80, 92), (72, 76, 84, 88)); ACC = (8, 24); PK = (8, 24, Q(0), Q(1), Dd(0), Nn(1), Dd(1))
def afrags(offs=(0, 2048, 4096, 6144)):
    for s in range(4):
        for a in range(2):
            for hf in range(2):
                r = AF + a*16 + s*4 + hf*2
                A(f"ds_read_b64_tr_b16 v[{r}:{r+1}], v{2+a} offset:{offs[s]+256*hf}")
def bfrQ(t):
    for s in range(4):
        r = BFQ[t & 1][s]
        A(f"ds_read_b128 v[{r}:{r+3}], v{16+s} offset:{4096*t}")
def bfrP(t):
    for s in range(4):
        r = BFQ[t & 1][s]
        A(f"v_add_u32 v{4+(s&1)}, s{64+t}, v{20+s}\nds_read_b128 v[{r}:{r+3}], v{4+(s&1)}")
def gemm(bfr, post):
    for t in range(7):
        if t < 6: bfr(t+1); A("s_waitcnt lgkmcnt(4)")
        else: A("s_waitcnt lgkmcnt(0)")
        for s in range(4):
            for a in range(2):
                c = ACC[t & 1] + 4*a; ar = AF + a*16 + s*4; br = BFQ[t & 1][s]
                A(f"v_mfma_f32_16x16x32_bf16 v[{c}:{c+3}], v[{ar}:{ar+3}], v[{br}:{br+3}], " + ("0" if s == 0 else f"v[{c}:{c+3}]"))
        if t > 0: post(t-1)
    post(6)
def pst(t, av=6):
    o = PK[t]
    A(f"buffer_store_dwordx4 v[{o}:{o+3}], v{av}, s[32:35], s{84+t} offen {SC}")
def late_st(i):
    l = lab('nst')
    if i < 2: A(f"s_cmp_eq_u32 s27, 0\ns_cbranch_scc1 {l}")
    else: A(f"s_cmp_lg_u32 s27, 2\ns_cbranch_scc1 {l}")
    for t in ((2, 3), (4,), (5,))[i]: pst(t, Q(5))
    A(f"{l}:")
def postP(t):
    c = ACC[t & 1]; o = PK[t]
    for i in range(4): A(f"v_pk_mul_f32 v[{c+2*i}:{c+2*i+1}], v[{c+2*i}:{c+2*i+1}], s[92:93]")
    for i in range(4): A(f"v_cvt_pk_bf16_f32 v{o+i}, v{c+2*i}, v{c+2*i+1}")
    if t < 2: pst(t)
def postQ(t):
    c = ACC[t & 1]
    if t == 6: A("s_mov_b32 exec_lo, 0x00030003\ns_mov_b32 exec_hi, 0x00030003")
    A(f"ds_write_b128 v7, v[{c}:{c+3}] offset:{2304*t}\nds_write_b128 v7, v[{c+4}:{c+7}] offset:{2304*t+16}")
    if t == 6: A("s_mov_b64 exec, -1")
    if t == OPT['PUBT']: pubA()
A(f"""
s_add_u32 s63, s54, 1
s_lshl_b32 s63, s63, 3
v_mov_b32 v4, 1
s_mov_b64 exec, 1
s_waitcnt vmcnt(10)
ds_add_u32 v42, v4 offset:{C_X}
s_mov_b64 exec, -1
s_waitcnt vmcnt(2)
""")
ts(2)
afrags()
A("s_cmp_eq_u32 s54, 0\ns_cbranch_scc1 L_nowb")
wdma(65536, 6, 8192)
A("L_nowb:")
A("s_waitcnt lgkmcnt(0)")
wdma(65536+6*8192, 2)
ts(24)
lds_spin(C_X, 56, "s_cmp_ge_u32 s56, s63", "L_xok")
A("L_xok:")
ts(3)
bfrP(0)
gemm(bfrP, postP)
ts(4)
lds_spin(C_WB, 56, "s_cmp_lg_u32 s56, 0", "L_wbok")
A("L_wbok:\ns_waitcnt vmcnt(2)")
ts(5)
afrags((8192, 10240, 12288, 0)); bfrQ(0)
def pubA():
    A(f"""
    s_cmp_lg_u32 s54, 0
    s_cbranch_scc1 L_nopub
    s_mov_b64 exec, 1
    v_mov_b32 v4, 1
    s_waitcnt vmcnt(0)
    ds_add_rtn_u32 v5, v42, v4 offset:{C_PA}
    s_waitcnt lgkmcnt(0)
    v_readfirstlane_b32 s57, v5
    s_cmp_lg_u32 s57, 7
    s_cbranch_scc1 L_nopub
    """)
    signal(1, 5, 4, 56)
    A("L_nopub:\ns_mov_b64 exec, -1")
    ts(25)
if OPT['PUBT'] < 0: pubA()
gemm(bfrQ, postQ)
ts(6)
A("s_cmp_eq_u32 s54, 0\ns_cbranch_scc1 L_defer")
for t in range(2, 7): pst(t)
A(f"s_branch L_recovG\nL_defer:\ns_cmp_eq_u32 s64, 0\ns_cselect_b32 s27, 2, 1\nv_mov_b32 v{Q(5)}, v6")
prep()
initnd(range(NS), skip=PK[4:])
A("s_waitcnt lgkmcnt(0)")
ts(8)
A("L_C1:")
bar()
ts(9)
A(f"""
ds_read_b32 v10, v8
ds_read_b128 v[16:19], v9
ds_read_b128 v[20:23], v9 offset:16
ds_read_b128 v[24:27], v9 offset:32
ds_read_b128 v[28:31], v9 offset:48
v_mov_b32 v15, 0
s_cmp_lg_u32 s3, 15
s_cbranch_scc1 L_nopre
""")
caddr(11, 37, 79)
A(f"""
s_mov_b64 exec, 0xff00
buffer_load_dword v36, v11, s[44:47], s79 offen sc1
ds_read_b32 v37, v37 offset:{TGT}
s_mov_b64 exec, -1
s_waitcnt lgkmcnt(0)
""")
A("L_nopre:")
late_st(0)
pairs = (96, 98, 56, 60)
for q in range(4):
    A(f"s_waitcnt lgkmcnt({3-q})")
    for i in range(4): A(f"v_cmp_gt_u32 s[{pairs[i]}:{pairs[i]+1}], v{16+4*q+i}, v10")
    for i in range(4): A(f"v_addc_co_u32 v15, vcc, 0, v15, s[{pairs[i]}:{pairs[i]+1}]")
dpp_add(15, "quad_perm:[1,0,3,2]", "row_mask:0xf bank_mask:0xf")
dpp_add(15, "quad_perm:[2,3,0,1]", "row_mask:0xf bank_mask:0xf")
dpp_add(15, "row_half_mirror", "row_mask:0xf bank_mask:0xf")
A(f"""
s_mov_b32 s56, {NODEOF}
v_lshrrev_b32 v16, 4, v15
v_bfe_i32 v17, v15, 4, 1
v_xor_b32 v17, v17, v15
v_and_b32 v17, 15, v17
v_lshl_add_u32 v17, v17, 3, v16
v_lshl_add_u32 v16, v17, 2, s56
ds_write_b32 v16, v12
ds_write_b32 v8, v17 offset:{ASG-KEY}
s_waitcnt lgkmcnt(0)
""")
bar()
ts(10)
A(f"""
L_B4:
ds_read_b32 v16, v13
ds_read_b32 v43, v42 offset:{C_ABORT}
s_mov_b32 s57, {CNT2}
""")
late_st(1)
A(f"""
s_waitcnt lgkmcnt(0)
v_lshl_add_u32 v17, v16, 4, s57
ds_read_b128 v[20:23], v17
v_subrev_u32 v16, s51, v16
v_and_b32 v16, 127, v16
v_min_u32 v18, 97, v16
v_mul_u32_u24 v18, {QROW}, v18
v_readfirstlane_b32 s55, v43
s_mov_b32 s56, 0x06040200
s_waitcnt lgkmcnt(0)
v_lshl_or_b32 v24, v21, 16, v20
v_lshl_or_b32 v25, v23, 16, v22
v_mov_b32 v26, v24
v_mov_b32 v27, v25
v_perm_b32 v19, v25, v24, s56
""")
for sh in (1, 2, 4):
    dpp_add(26, f"row_shr:{sh}"); dpp_add(27, f"row_shr:{sh}")
A(f"""
v_readlane_b32 s96, v26, 6
v_readlane_b32 s97, v27, 6
v_sub_u32 v26, v26, v24
v_sub_u32 v27, v27, v25
s_and_b32 s56, s96, 0xffff
s_lshr_b32 s57, s96, 16
s_add_u32 s57, s57, s56
s_and_b32 s58, s97, 0xffff
s_add_u32 s58, s58, s57
s_lshr_b32 s60, s97, 16
s_add_u32 s60, s60, s58
s_mov_b32 s61, s59
s_cmp_le_u32 s60, {CAPE}
s_cbranch_scc1 L_capok
s_or_b32 s55, s55, 4
s_mov_b32 s61, {OOB}
s_mov_b32 s60, 0
L_capok:
s_lshl3_add_u32 s56, s56, s61
s_lshl3_add_u32 s57, s57, s61
s_lshl3_add_u32 s58, s58, s61
v_and_b32 v20, 0xffff, v26
v_lshrrev_b32 v21, 16, v26
v_and_b32 v22, 0xffff, v27
v_lshrrev_b32 v23, 16, v27
v_lshl_add_u32 v20, v20, 3, s61
v_lshl_add_u32 v21, v21, 3, s56
v_lshl_add_u32 v22, v22, 3, s57
v_lshl_add_u32 v23, v23, 3, s58
s_lshl3_add_u32 s60, s60, s59
v_lshl_add_u32 v24, v0, 3, s60
v_mov_b32 v25, 0
s_mov_b64 exec, 0x7f
ds_write_b128 v17, v[20:23]
s_mov_b64 exec, 15
ds_write_b32 v24, v25
s_mov_b64 exec, -1
s_waitcnt lgkmcnt(0)
""")
bar()
ts(11)
late_st(2)
A(f"""
s_cmp_lt_u32 s3, 8
s_cbranch_scc1 L_B5done
s_and_b32 s56, s55, 3
s_cbranch_scc1 L_B5done
""")
def b5r(i):
    for j in range(2): A(f"ds_read_b32 v{Dd(i)+2*j}, v{Dd(i)+2*j}")
def b5w(i):
    for j in range(2):
        sr = Nn(i)+2*j; d1 = sr+1; ad = Dd(i)+2*j; rk = ad+1
        A(f"v_lshl_add_u32 v{ad}, v{rk}, 3, v{ad}\nds_write2_b32 v{ad}, v{sr}, v{d1} offset0:0 offset1:{2*R+1}")
A("s_cmp_gt_u32 s63, 3\ns_cbranch_scc1 L_B5big")
for i in range(3): b5r(i)
for i in range(3): A("s_waitcnt lgkmcnt(4)"); b5w(i)
A("s_branch L_B5done\nL_B5big:")
for i in range(6): b5r(i)
for i in range(6): A("s_waitcnt lgkmcnt(10)"); b5w(i)
A("L_B5done:")
for k in range(NS):
    A(f"v_readlane_b32 s{72+k}, v18, {k}")
for k in range(NS):
    A(f"v_add_u32 v{20+k}, s{72+k}, v14\nds_read_b128 v[{Q(k)}:{Q(k)+3}], v{20+k}")
for k in range(NS):
    A(f"v_readlane_b32 s{64+k}, v19, {k}")
A(f"""
s_cmp_lg_u32 s3, 15
s_cbranch_scc1 L_pfdone
s_cmp_lg_u32 s54, 0
s_cbranch_scc1 L_pfdone
s_bitcmp1_b32 s55, 1
s_cbranch_scc1 L_pfdone
s_mov_b32 s58, 0
s_mov_b64 exec, 0xff00
L_pfp:
s_waitcnt vmcnt(0)
v_cmp_ne_u32 vcc, v36, v37
s_cbranch_vccz L_pfok
s_mov_b64 exec, vcc
buffer_load_dword v36, v11, s[44:47], s79 offen sc1
s_add_u32 s58, s58, 1
s_cmp_lt_u32 s58, {POLLMAX}
s_cbranch_scc1 L_pfp
L_pfbad:
""")
lds_or(C_ABORT, 2)
A("s_branch L_pfdone\nL_pfok:")
if OPT['FORCE_RECOV'] == 1: A("s_branch L_pfbad")
if TS: A("v_writelane_b32 v41, s58, 41")
A("L_pfdone:\ns_mov_b64 exec, -1")
srd(28, 16, 65536)
if SAFEADDR:
    srd(40, 24, N*512)
else:
    A("s_mov_b32 s40, s24\ns_and_b32 s41, s25, 0xffff\ns_or_b32 s41, s41, 0x00080000\ns_mov_b32 s42, 64\ns_mov_b32 s43, 0x00800000")
A(f"""
s_mov_b32 s82, 0
s_lshl_b32 s80, s3, 12
s_mov_b32 m0, s80
s_mov_b32 s56, {NLOG2E}
s_mov_b32 s57, {NLOG2E}
s_mov_b32 s71, 0x80000
s_waitcnt lgkmcnt(0)
""")
ts(12)
bar()
ts(13)
A(f"""
ds_read_b32 v43, v42 offset:{C_ABORT}
ds_read_b128 v[8:11], v1
ds_read_b128 v[12:15], v1 offset:16
ds_read_b128 v[16:19], v1 offset:32
ds_read_b128 v[20:23], v1 offset:48
""")
def w2dma():
    for i in range(4): A(f"buffer_load_dwordx4 v40, s[28:31], s80 offen offset:{1024*i} lds")
if SAFEADDR: w2dma(); A("v_lshlrev_b32 v40, 3, v0")
A(f"""
s_waitcnt lgkmcnt(2)
v_readfirstlane_b32 s60, v43
s_or_b32 s55, s55, s60
""")
if OPT['FORCE_SAFE']: A("s_or_b32 s55, s55, 1")
RING = 24
def gather(p, idx):
    if SAFEADDR:
        A(f"v_add_u32 v{idx}, v{idx}, v40")
    A(f"buffer_load_dwordx2 v[{RING+2*p}:{RING+2*p+1}], v{idx}, s[40:43], 0 offen {SC}")
A("s_cmp_lg_u32 s55, 0\ns_cbranch_scc1 L_noring")
for p, idx in enumerate((8, 10, 12, 14)): gather(p, idx)
A("L_noring:")
for k in range(NS):
    A(f"v_pk_fma_f32 v[{Q(k)}:{Q(k)+1}], v[{Q(k)}:{Q(k)+1}], s[56:57], v[32:33]\nv_pk_fma_f32 v[{Q(k)+2}:{Q(k)+3}], v[{Q(k)+2}:{Q(k)+3}], s[56:57], v[34:35]")
A("s_cmp_lg_u32 s55, 0\ns_cbranch_scc1 L_slow\ns_cmp_lt_u32 s3, 8\ns_cbranch_scc1 L_pro2")
initnd(range(6))
A(f"""
s_branch L_nopubB
L_pro2:
s_cmp_eq_u32 s27, 0
s_cbranch_scc1 L_nopubB
s_mov_b64 exec, 1
v_mov_b32 v43, 1
s_waitcnt vmcnt(4)
ds_add_rtn_u32 v12, v42, v43 offset:{C_PB}
s_mov_b64 exec, -1
s_lshl_b32 s81, s3, 11
s_add_u32 s81, s81, {PARK}
v_lshl_add_u32 v13, v0, 4, s81
""")
for i in range(2): A(f"ds_write_b128 v13, v[{PK[5+i]}:{PK[5+i]+3}] offset:{1024*i}")
initnd(range(2), only=PK[4:])
A(f"""
s_waitcnt lgkmcnt(2)
v_readfirstlane_b32 s57, v12
s_cmp_lg_u32 s57, 7
s_cbranch_scc1 L_nopubB
""")
signal(2, 12, 43, 56)
A(f"""
L_nopubB:
s_mov_b64 exec, -1
s_waitcnt lgkmcnt(0)
s_cmp_lg_u32 s55, 0
s_cbranch_scc1 L_safe0
s_setprio 3
""")
ts(14)
SEL = "op_sel:[1,0,0] op_sel_hi:[1,1,1]"
TT = (8, 32) if PIPE else (8, 8)
def H1(k, p):
    q = Q(k); qd = 16 + 4*(p >> 1); pr = qd + 2*(p & 1); rg = RING + 2*p; t = TT[p & 1]
    if p % 2 == 0: A("s_waitcnt lgkmcnt(1)")
    A(f"""
    v_pk_fma_f32 v[{t}:{t+1}], v[{pr}:{pr+1}], v[4:5], v[{q}:{q+1}] {SEL}
    v_pk_fma_f32 v[{t+2}:{t+3}], v[{pr}:{pr+1}], v[6:7], v[{q+2}:{q+3}] {SEL}
    s_waitcnt vmcnt({R-1})
    s_sub_u32 s56, s56, 1
    v_mfma_f32_4x4x4_16b_bf16 v[{t}:{t+3}], v[2:3], v[{rg}:{rg+1}], v[{t}:{t+3}]
    """)
    gather(p, pr)
    if p % 2 == 1: A(f"ds_read_b128 v[{qd}:{qd+3}], v1 offset:{64+16*(p>>1)}")
def H2(k, par, addv=False):
    n, d = Nn(k), Dd(k); t = TT[par]
    A(f"""
    v_exp_f32 v12, v{t}
    v_exp_f32 v13, v{t+1}
    v_exp_f32 v14, v{t+2}
    v_exp_f32 v15, v{t+3}
    """)
    if addv: A("v_add_u32 v1, 32, v1")
    A(f"""
    v_pk_fma_f32 v[{t}:{t+1}], v[{t}:{t+1}], v[{d}:{d+1}], v[{n}:{n+1}]
    v_pk_fma_f32 v[{t+2}:{t+3}], v[{t+2}:{t+3}], v[{d+2}:{d+3}], v[{n+2}:{n+3}]
    v_pk_fma_f32 v[{d}:{d+1}], v[{d}:{d+1}], v[12:13], v[{d}:{d+1}]
    v_pk_fma_f32 v[{n}:{n+1}], v[{n}:{n+1}], v[12:13], v[{t}:{t+1}]
    v_pk_fma_f32 v[{d+2}:{d+3}], v[{d+2}:{d+3}], v[14:15], v[{d+2}:{d+3}]
    v_pk_fma_f32 v[{n+2}:{n+3}], v[{n+2}:{n+3}], v[14:15], v[{t+2}:{t+3}]
    """)
HK = OPT['HOOK']
def wrap(p):
    A(f"""
    L_E{NS}_{p}:
    s_add_u32 s71, s71, 8
    s_cmp_lg_u32 s82, 0
    s_cbranch_scc1 L_re{p}
    L_W_{p}:
    s_mov_b32 s57, {p}
    s_cmp_eq_u32 s71, 0x80008
    s_cbranch_scc1 L_wrap1
    s_setprio 1
    s_cmp_eq_u32 s71, 0x80010
    s_cbranch_scc1 L_E0_{p}
    s_setprio 0
    s_cmp_eq_u32 s71, 0x80018
    s_cbranch_scc1 L_E0_{p}
    s_branch L_flush
    """)
def entry(k, p):
    A(f"L_E{k}_{p}:")
    if k == HK: A(f"s_mov_b32 s57, {p}\ns_cmp_lt_u32 s71, 0x80018\ns_cbranch_scc1 L_hook\nL_H_{p}:")
if not PIPE:
    for p in range(4):
        for k in range(NS):
            entry(k, p); A(f"s_bfe_u32 s56, s{64+k}, s71\ns_sub_u32 s56, s56, 1\ns_cbranch_scc0 L_B{k}_{p}")
        wrap(p)
    for k in range(NS):
        for p in range(4):
            A(f"L_B{k}_{p}:")
            H1(k, p); H2(k, 0, p == 3)
            A(f"s_cbranch_scc1 L_E{k+1}_{(p+1)&3}")
        A(f"s_branch L_B{k}_0")
else:
    for p in range(4):
        for k in range(NS):
            if k > 0:
                A(f"L_T{k-1}_{p}:"); H2(k-1, (p-1) & 1)
            entry(k, p); A(f"s_bfe_u32 s56, s{64+k}, s71\ns_sub_u32 s56, s56, 1\ns_cbranch_scc1 L_E{k+1}_{p}")
            H1(k, p)
            if p == 3: A("v_add_u32 v1, 32, v1")
            A(f"s_cbranch_scc0 L_B{k}_{(p+1)&3}\ns_branch L_T{k}_{(p+1)&3}")
        A(f"L_T{NS-1}_{p}:"); H2(NS-1, (p-1) & 1)
        wrap(p)
    for k in range(NS):
        for p in range(4):
            A(f"L_B{k}_{p}:")
            H1(k, p); H2(k, (p-1) & 1, p == 3)
            A(f"s_cbranch_scc1 L_T{k}_{(p+1)&3}")
        A(f"s_branch L_B{k}_0")
def chk(ty, word, n):
    force = OPT['FORCE_RECOV'] == ty
    A(f"""
    L_pf{n}:
    s_mov_b64 exec, 1
    v_mov_b32 v36, 0
    v_mov_b32 v37, 3
    ds_cmpst_rtn_b32 v43, v42, v36, v37 offset:{word}
    s_mov_b64 exec, -1
    s_mov_b32 s58, 0
    s_waitcnt lgkmcnt(0)
    v_readfirstlane_b32 s60, v43
    s_cmp_eq_u32 s60, 1
    s_cbranch_scc1 L_hkok
    s_cmp_lg_u32 s60, 0
    s_cbranch_scc1 L_pf{n}w
    """)
    caddr(38, 37, 60)
    A(f"""
    s_mov_b64 exec, {hex(0xff << (8*ty))}
    ds_read_b32 v37, v37 offset:{TGT}
    L_pf{n}p:
    buffer_load_dword v36, v38, s[44:47], s60 offen sc1
    v_mov_b32 v39, 1
    s_add_u32 s58, s58, 1
    s_waitcnt vmcnt(0) lgkmcnt(0)
    v_cmp_ne_u32 vcc, v36, v37
    """)
    if not force: A(f"s_cbranch_vccz L_pf{n}1\ns_mov_b64 exec, vcc")
    A(f"""
    s_sleep 8
    s_cmp_lt_u32 s58, {2 if force else POLLMAX}
    s_cbranch_scc1 L_pf{n}p
    v_mov_b32 v39, 2
    L_pf{n}1:
    ds_write_b32 v42, v39 offset:{word}
    s_mov_b64 exec, -1
    """)
    if TS: A(f"v_writelane_b32 v41, s58, {40+ty}")
    A(f"L_pf{n}w:")
    lds_spin(word, 60, "s_cmp_lg_u32 s60, 3", f"L_pf{n}2", slp=4)
    A(f"L_pf{n}2:")
    if TS: A(f"v_writelane_b32 v41, s58, {42+ty}")
    A("s_cmp_lg_u32 s60, 1\ns_cbranch_scc1 L_recover")
A(f"""
L_hook:
s_cmp_eq_u32 s71, 0x80008
s_cbranch_scc1 L_hk1
s_cmp_eq_u32 s71, 0x80010
s_cbranch_scc1 L_pfc
""")
chk(2, C_PFB, 'b')
A("s_branch L_hkok")
chk(3, C_PFC, 'c')
A(f"L_hkok:\ns_bfe_u32 s58, s{64+HK}, s71")
for k in range(HK+1, NS): A(f"s_bfe_u32 s60, s{64+k}, s71\ns_add_u32 s58, s58, s60")
A(f"s_cmp_lt_u32 s58, {R}\ns_cselect_b32 s82, 1, 0")
if OPT.get('FORCE_RE'): A("s_mov_b32 s82, 1")
A("L_hkret:")
for p in range(4): A(f"s_cmp_eq_u32 s57, {p}\ns_cbranch_scc1 L_H_{p}")
A(f"""
s_add_u32 s71, s71, 8
s_cmp_eq_u32 s71, 0x80008
s_cbranch_scc1 L_wrap1b
s_cmp_eq_u32 s71, 0x80010
s_cbranch_scc1 L_pfc
s_branch L_safe
L_hk1:
s_mov_b64 exec, 1
v_mov_b32 v43, 1
s_waitcnt vmcnt(0)
ds_add_u32 v42, v43 offset:{C_W2}
s_cmp_eq_u32 s27, 0
s_cbranch_scc1 L_nopubC
ds_add_rtn_u32 v36, v42, v43 offset:{C_PC}
s_waitcnt lgkmcnt(0)
v_readfirstlane_b32 s58, v36
s_cmp_lg_u32 s58, 7
s_cbranch_scc1 L_nopubC
""")
signal(3, 36, 43, 58)
A("L_nopubC:\ns_mov_b64 exec, -1")
ts(27)
A(f"""
s_branch L_hkret
L_wrap1:
s_setprio 2
L_wrap1b:
""")
ts(26)
if not SAFEADDR: w2dma()
A(f"""
s_cmp_eq_u32 s27, 0
s_cbranch_scc1 L_w1r
v_lshl_add_u32 v36, v0, 4, s81
ds_read_b128 v[8:11], v36 offset:1024
ds_read_b128 v[12:15], v36
v_and_b32 v36, 15, v0
v_lshlrev_b32 v36, 9, v36
v_lshrrev_b32 v37, 4, v0
v_lshl_add_u32 v36, v37, 4, v36
s_lshl_b32 s58, s3, 6
v_add_u32 v36, s58, v36
s_waitcnt lgkmcnt(0)
buffer_store_dwordx4 v[8:11], v36, s[32:35], s90 offen {SC}
s_cmp_eq_u32 s27, 2
s_cbranch_scc1 L_w1r
buffer_store_dwordx4 v[12:15], v36, s[32:35], s89 offen {SC}
L_w1r:
""")
for p in range(4): A(f"s_cmp_eq_u32 s57, {p}\ns_cbranch_scc1 L_E0_{p}")
A("s_branch L_hk1")
for p in range(4):
    A(f"""
    L_re{p}:
    ds_read2_b32 v[36:37], v1 offset0:{2*p} offset1:{2*p+2}
    ds_read2_b32 v[38:39], v1 offset0:{2*p+4} offset1:{2*p+6}
    s_mov_b32 s82, 0
    s_waitcnt lgkmcnt(0)
    """)
    for i in range(4): gather((p+i) & 3, 36+i)
    A(f"s_branch L_W_{p}")
A("L_flush:\ns_waitcnt lgkmcnt(0)")
ts(15)
A(f"""
v_and_b32 v16, 7, v0
s_lshl_b32 s56, s3, 5
s_add_u32 s56, s56, {NODEOF}
v_lshl_add_u32 v16, v16, 2, s56
ds_read_b32 v17, v16
""")
foff(18, 19)
A(f"v_add_u32 v18, {HSB}, v18")
for k in range(NS):
    if k == 0: A(f"v_pk_mul_f32 v[32:33], v[{Nn(k)}:{Nn(k)+1}], v[{Dd(k)}:{Dd(k)+1}]\nv_pk_mul_f32 v[34:35], v[{Nn(k)+2}:{Nn(k)+3}], v[{Dd(k)+2}:{Dd(k)+3}]")
    else: A(f"v_pk_fma_f32 v[32:33], v[{Nn(k)}:{Nn(k)+1}], v[{Dd(k)}:{Dd(k)+1}], v[32:33]\nv_pk_fma_f32 v[34:35], v[{Nn(k)+2}:{Nn(k)+3}], v[{Dd(k)+2}:{Dd(k)+3}], v[34:35]")
A(f"""
v_pk_add_f32 v[32:33], v[32:33], v[34:35]
v_add_f32 v32, v32, v33
v_mov_b32 v33, 0x207
v_cmp_class_f32 vcc, v32, v33
s_cmp_lg_u32 s55, 0
s_cbranch_scc1 L_fl2
""")
if OPT['FORCE_GUARD']: A("s_bitcmp1_b32 s3, 0\ns_cbranch_scc1 L_safe")
A(f"""
s_cbranch_vccnz L_safe
L_fl2:
s_waitcnt lgkmcnt(0)
v_subrev_u32 v17, s51, v17
v_and_b32 v17, 127, v17
v_mul_u32_u24 v19, {HROW}, v17
v_readlane_b32 s58, v17, 6
""")
for k in range(NS):
    n, d = Nn(k), Dd(k); o = 8 + 2*(k & 1)
    if k == 6: A("s_cmp_ge_u32 s58, s52\ns_cbranch_scc1 L_fl3")
    A(f"v_readlane_b32 s56, v19, {k}")
    for i in range(4): A(f"v_rcp_f32 v{d+i}, v{d+i}")
    A(f"""
    v_add_u32 v{20+(k&1)}, s56, v18
    v_pk_mul_f32 v[{n}:{n+1}], v[{n}:{n+1}], v[{d}:{d+1}]
    v_pk_mul_f32 v[{n+2}:{n+3}], v[{n+2}:{n+3}], v[{d+2}:{d+3}]
    v_cvt_pk_bf16_f32 v{o}, v{n}, v{n+1}
    v_cvt_pk_bf16_f32 v{o+1}, v{n+2}, v{n+3}
    ds_write_b64 v{20+(k&1)}, v[{o}:{o+1}]
    """)
A("L_fl3:")
ts(16)
A(f"""
s_and_b32 s60, s3, 3
s_lshr_b32 s61, s3, 2
v_lshrrev_b32 v4, 4, v0
v_and_b32 v5, 15, v0
s_lshl_b32 s56, s60, 6
v_lshl_add_u32 v6, v4, 4, s56
global_load_dwordx4 v[124:127], v6, s[18:19]
v_lshl_add_u32 v6, v5, 8, v6
v_bfe_u32 v7, v0, 2, 2
v_lshl_add_u32 v1, v4, 3, v7
v_lshlrev_b32 v1, 8, v1
v_xor_b32 v7, s60, v7
v_lshl_add_u32 v1, v7, 6, v1
v_and_b32 v7, 3, v0
v_lshl_add_u32 v1, v7, 4, v1
""")
lds_spin(C_W2, 57, "s_cmp_ge_u32 s57, 16", "L_w2ok")
A("L_w2ok:")
for s in range(8):
    for a in range(2):
        for hf in range(2):
            r = 44 + a*32 + s*4 + hf*2
            A(f"ds_read_b64_tr_b16 v[{r}:{r+1}], v1 offset:{8192*s+1024*hf+8*a}")
A(f"""
s_lshl_b32 s56, s61, 5
v_add_u32 v5, s56, v5
v_mul_u32_u24 v2, {HROW}, v5
v_lshl_add_u32 v2, v4, 4, v2
v_add_u32 v2, {HSB}, v2
s_mov_b32 s57, {KEY}
v_add_u32 v3, s51, v5
v_add_u32 v4, 16, v3
v_and_b32 v3, 127, v3
v_and_b32 v4, 127, v4
v_lshl_add_u32 v3, v3, 2, s57
v_lshl_add_u32 v4, v4, 2, s57
s_mov_b32 s32, s20
s_mov_b32 s33, s21
s_add_u32 s34, s51, s52
s_lshl_b32 s34, s34, 8
s_mov_b32 s35, 0x00020000
s_add_u32 s58, s51, s56
s_lshl_b32 s58, s58, 8
s_add_u32 s59, s58, 4096
s_mov_b32 s56, {NLN2}
s_waitcnt vmcnt(0) lgkmcnt(0)
""")
ts(17)
bar()
ts(18)
A("ds_read_b32 v42, v3\nds_read_b32 v43, v4\ns_cmp_eq_u32 s61, 3\ns_cbranch_scc1 L_g2one")
def gemm2(nt):
    BB = (108, 8)
    def rd(qg):
        for t in range(nt):
            for h in range(2):
                r = BB[qg & 1] + 8*t + 4*h
                A(f"ds_read_b128 v[{r}:{r+3}], v2 offset:{16*HROW*t + 64*(2*qg+h)}")
    rd(0)
    for qg in range(4):
        if qg < 3: rd(qg+1); A(f"s_waitcnt lgkmcnt({2*nt})")
        else: A("s_waitcnt lgkmcnt(0)")
        for h in range(2):
            s = 2*qg + h
            for t in range(nt):
                for a in range(2):
                    c = 24 + 8*t + 4*a; ar = 44 + a*32 + s*4; br = BB[qg & 1] + 8*t + 4*h
                    A(f"v_mfma_f32_16x16x32_bf16 v[{c}:{c+3}], v[{ar}:{ar+3}], v[{br}:{br+3}], " + ("0" if s == 0 else f"v[{c}:{c+3}]"))
    for i in range(4):
        A(f"v_lshlrev_b32 v{44+2*i}, 16, v{124+i}\nv_and_b32 v{45+2*i}, s26, v{124+i}")
    for t in range(nt):
        A(f"v_lshrrev_b32 v{42+t}, 7, v{42+t}\nv_cvt_f32_u32 v{42+t}, v{42+t}")
        for i in range(8): A(f"v_mul_f32 v{52+8*t+i}, v{42+t}, v{44+i}")
    for t in range(nt):
        c = 24 + 8*t
        for i in range(8): A(f"v_fma_f32 v{c+i}, v{c+i}, s56, v{52+8*t+i}")
        for i in range(4): A(f"v_cvt_pk_bf16_f32 v{68+4*t+i}, v{c+2*i}, v{c+2*i+1}")
        A(f"buffer_store_dwordx4 v[{68+4*t}:{71+4*t}], v6, s[32:35], s{58+t} offen")
gemm2(2)
A("s_branch L_fin\nL_g2one:")
gemm2(1)
A("L_fin:")
if TS:
    A("s_waitcnt vmcnt(0)")
    ts(19)
    A(f"""
    s_lshl_b32 s56, s2, 4
    s_add_u32 s56, s56, s3
    s_lshl_b32 s56, s56, 8
    s_add_u32 s56, s56, {WS_TS}
    v_lshlrev_b32 v1, 2, v0
    buffer_store_dword v41, v1, s[44:47], s56 offen
    """)
A("L_end:\ns_endpgm")

A(f"""
L_slow:
s_waitcnt vmcnt(0) lgkmcnt(0)
s_bitcmp1_b32 s55, 1
s_cbranch_scc0 L_pro2
L_recover:
s_setprio 0
s_waitcnt vmcnt(0) lgkmcnt(0)
s_barrier
s_mov_b32 s54, 0
L_recov_step:
s_add_u32 s54, s54, 1
s_add_u32 s48, s2, s54
s_and_b32 s48, s48, 255
s_branch L_phaseA
L_recovL:
s_barrier
L_recovG:
s_waitcnt vmcnt(0) lgkmcnt(0)
s_barrier
s_cmp_lt_u32 s54, 256
s_cbranch_scc1 L_recov_step
s_mov_b32 s27, 0
v_mov_b32 v43, 1
ds_write_b32 v42, v43 offset:{C_ABORT}
ds_write_b32 v42, v43 offset:{C_PFB}
ds_write_b32 v42, v43 offset:{C_PFC}
v_mov_b32 v43, 0
ds_write_b32 v42, v43 offset:{C_W2}
""")
const_loads()
A("s_waitcnt vmcnt(0)")
prep()
A(f"""
v_mov_b32 v11, 0
s_waitcnt lgkmcnt(0)
s_barrier
s_branch L_B4
L_safe0:
s_mov_b32 s57, 4
s_branch L_hook
L_safe:
s_mov_b32 s55, 1
s_setprio 0
s_waitcnt vmcnt(0) lgkmcnt(0)
""")
initnd(range(NS))
for k in range(NS): A(f"s_mov_b32 s{64+k}, 0")
srd(28, 10, E*4); srd(32, 8, E*4); srd(36, 6, E*2)
A(f"""
v_lshlrev_b32 v16, 2, v0
v_lshlrev_b32 v17, 1, v0
v_lshlrev_b32 v40, 3, v0
s_mov_b32 s72, 0
s_mov_b32 s73, {ASG}
s_movk_i32 s74, {N-1}
L_sloop:
s_lshl_b32 s56, s72, 1
buffer_load_dword v18, v16, s[28:31], s56 offen
buffer_load_dword v19, v16, s[32:35], s56 offen
buffer_load_ushort v20, v17, s[36:39], s72 offen
s_waitcnt vmcnt(0)
v_min_u32 v18, s74, v18
v_subrev_u32 v21, s51, v18
v_cmp_gt_u32 vcc, s52, v21
s_cbranch_vccz L_snext
v_and_b32 v21, 127, v18
v_lshl_add_u32 v21, v21, 2, s73
ds_read_b32 v22, v21
s_waitcnt lgkmcnt(0)
v_lshrrev_b32 v23, 3, v22
v_cmp_eq_u32 s[96:97], s3, v23
s_and_b64 s[96:97], s[96:97], vcc
L_sbit:
s_cmp_eq_u64 s[96:97], 0
s_cbranch_scc1 L_snext
s_ff1_i32_b64 s56, s[96:97]
s_bitset0_b64 s[96:97], s56
v_readlane_b32 s57, v19, s56
v_readlane_b32 s58, v20, s56
v_readlane_b32 s60, v22, s56
s_min_u32 s57, s57, s74
s_lshl_b32 s57, s57, 9
s_lshl_b32 s58, s58, 16
s_mov_b32 s59, s58
s_and_b32 s60, s60, 7
buffer_load_dwordx2 v[24:25], v40, s[44:47], s57 offen sc1
""")
for k in range(NS):
    q, n = Q(k), Nn(k)
    if k < NS-1: A(f"s_cmp_lg_u32 s60, {k}\ns_cbranch_scc1 L_sk{k+1}")
    A(f"""
    v_pk_fma_f32 v[8:9], s[58:59], v[4:5], v[{q}:{q+1}]
    v_pk_fma_f32 v[10:11], s[58:59], v[6:7], v[{q+2}:{q+3}]
    s_add_u32 s{64+k}, s{64+k}, 128
    s_waitcnt vmcnt(0)
    v_mfma_f32_4x4x4_16b_bf16 v[8:11], v[2:3], v[24:25], v[8:11]
    v_exp_f32 v12, v8
    v_exp_f32 v13, v9
    v_exp_f32 v14, v10
    v_exp_f32 v15, v11
    v_pk_add_f32 v[12:13], v[12:13], 1.0 op_sel_hi:[1,0]
    v_pk_add_f32 v[14:15], v[14:15], 1.0 op_sel_hi:[1,0]
    v_rcp_f32 v12, v12
    v_rcp_f32 v13, v13
    v_rcp_f32 v14, v14
    v_rcp_f32 v15, v15
    v_pk_fma_f32 v[{n}:{n+1}], v[8:9], v[12:13], v[{n}:{n+1}]
    v_pk_fma_f32 v[{n+2}:{n+3}], v[10:11], v[14:15], v[{n+2}:{n+3}]
    s_branch L_sbit
    """)
    if k < NS-1: A(f"L_sk{k+1}:")
A(f"""
L_snext:
s_add_u32 s72, s72, 128
s_cmp_lt_u32 s72, {2*E}
s_cbranch_scc1 L_sloop
v_and_b32 v16, 7, v0
s_lshl_b32 s56, s3, 5
s_add_u32 s56, s56, {NODEOF}
v_lshl_add_u32 v16, v16, 2, s56
ds_read_b32 v17, v16
v_mov_b32 v18, 0
""")
for k in range(NS): A(f"v_writelane_b32 v18, s{64+k}, {k}")
A(f"""
s_mov_b32 s57, {KEY}
s_waitcnt lgkmcnt(0)
v_lshl_add_u32 v17, v17, 2, s57
s_mov_b64 exec, 0x7f
ds_write_b32 v17, v18
s_mov_b64 exec, -1
s_branch L_flush
""")

body, npad = pad(L, verbose=bool(OPT.get('V')))
hdr = open('standalone__edge_featured_mpnn_mpnn__graph.s.ref').read().split('; Override')[0]
out = hdr + f"; @launch grid=(256,1,1) block=(1024,1,1) lds={LDS}\n"
out += f'.amdgcn_target "amdgcn-amd-amdhsa--gfx950"\n.text\n.globl {KN}\n.p2align 8\n.type {KN},@function\n'
out += "\n".join(body) + "\n"
out += f""".section .rodata,"a"
.p2align 6
.amdhsa_kernel {KN}
  .amdhsa_next_free_vgpr 128
  .amdhsa_next_free_sgpr 102
  .amdhsa_accum_offset 128
  .amdhsa_group_segment_fixed_size 0
  .amdhsa_kernarg_size 88
  .amdhsa_user_sgpr_count 2
  .amdhsa_user_sgpr_kernarg_segment_ptr 1
  .amdhsa_system_sgpr_workgroup_id_x 1
.end_amdhsa_kernel
"""
open(OPT.get('OUT', 'k.s'), 'w').write(out)
print("pads", npad, "lines", len(body), file=sys.stderr)
```

```python
import sys, os, struct
sys.path.insert(0, os.path.dirname(os.path.abspath(__file__)))
from asmlib import *

OPT = dict(TS=0, FORCE_SAFE=0, FORCE_RECOV=0, FORCE_GUARD=0, POLLMAX=6000, SLP=8, NT=1, PDELAY=16, LPRIO=2, PUBT=0, WBD=2, HOOK=1,
           PRIO='3210')
for a in sys.argv[1:]:
    k, v = a.split('=')
    OPT[k] = int(v) if v.lstrip('-').isdigit() and k != 'PRIO' else v
TS = OPT['TS']; POLLMAX = OPT['POLLMAX']; SLP = OPT['SLP']
SC = 'sc1'
KN = "standalone__edge_featured_mpnn_mpnn__graph_kernel"

def f32(x): return "0x%08x" % struct.unpack('<I', struct.pack('<f', x))[0]
NLOG2E = f32(-1.4426950408889634); NLN2 = f32(-0.6931471805599453)

N = 25000; E = 400000; CH = 1564
PB0 = 512
WS_REC = 0xD00000; REC_STRIDE = 12544; WS_OFF = 0x1040000; WS_PF = 0x1080000; WS_TS = 0x1500000; WS_SIZE = 0x2000000
QBLK = 14336; QROW = 144
CTR = 0; KEY = 256; SORT = 768; ROWI = 1280; CW = 2048; CB = 3072; QB = 4096
STG = QB + 8*QBLK; CNT = STG + 12544; START = CNT + 1024; XB = START + 1024; LDS = 163840
NL = STG; NCAP = 48; WL = NL + 98*NCAP*4; HL = 768; LW = 2*HL; Q3P = 126976
assert XB % 256 == 0 and XB + 29696 <= LDS and WL + 16*LW + 64 <= LDS
C_REC, C_PA, C_GO, C_ABORT, C_W2, C_PB, C_PFB, C_PFA, C_X, C_RL, C_S2, C_S3, C_PFC, C_WB, C_PC = 0, 4, 8, 12, 16, 20, 24, 28, 32, 36, 40, 44, 48, 52, 56
TGT = 64
C_G = 192
PARK = QB + 65536; HSB = QB + 65536; HROW = 528
assert HSB + 106*HROW <= Q3P and Q3P + 2048 <= WL
R = 4; NS = 6
SB0 = 56
def Q(k): return SB0 + 12*k
def Nn(k): return SB0 + 12*k + 4
def Dd(k): return SB0 + 12*k + 8
RING = (24, 28, 44, 48); WA = 4; WB = 52; VN = 40
SPIN = 0x100000
BIAS = 128
ASG = [[28, 34, 46, 48], [1, 29, 45], [10, 19, 37], [3, 24, 42], [0, 39, 47], [9, 25, 32], [2, 23, 44], [4, 20, 43], [8, 26, 30], [6, 21, 40], [5, 31, 33], [11, 18, 38], [12, 15, 36], [7, 16, 41], [13, 17, 35], [14, 22, 27]]
assert sorted(sum(ASG, [])) == list(range(49))

L = []
def A(s):
    for line in s.strip('\n').split('\n'):
        line = line.strip()
        if not line: continue
        L.append(line if line.endswith(':') or line.startswith(('.', ';')) else "    " + line)
def srd(r, lo, size, w3="0x00020000"):
    A(f"s_mov_b32 s{r}, s{lo}\ns_mov_b32 s{r+1}, s{lo+1}\ns_mov_b32 s{r+2}, {size}\ns_mov_b32 s{r+3}, {w3}")
def ts(i):
    if TS: A(f"s_memrealtime s[100:101]\ns_waitcnt lgkmcnt(0)\nv_writelane_b32 v41, s100, {i}")
def bar(): A("s_barrier")
def spot(dead=False): A(";@dead" if dead else ";@spot")
uid = [0]
def lab(p):
    uid[0] += 1; return f"L_{p}_{uid[0]}"
def dpp(op, v, ctl, m="row_mask:0xf bank_mask:0xf bound_ctrl:0"):
    A(f"{op}_dpp v{v}, v{v}, v{v} {ctl} {m}")
def dpp_add(v, ctl, m="row_mask:0xf bank_mask:0xf bound_ctrl:0"): dpp("v_add_u32", v, ctl, m)
def bucket_range(cur, b, n0, n1):
    A(f"""
    s_and_b32 s{b}, s{cur}, 7
    s_lshl_b32 s{b}, s{b}, 5
    s_lshr_b32 s27, s{cur}, 3
    s_or_b32 s{b}, s{b}, s27
    s_mul_i32 s{n0}, s{b}, 6400845
    s_add_u32 s{n0}, s{n0}, 65535
    s_add_u32 s{n1}, s{n0}, 6400845
    s_lshr_b32 s{n0}, s{n0}, 16
    s_lshr_b32 s{n1}, s{n1}, 16
    s_min_u32 s{n1}, s{n1}, {N}
    """)
def lds_or(off, val):
    A(f"v_mov_b32 v43, {val}\nds_or_b32 v42, v43 offset:{off}")
def lds_spin(off, dst, cmp_ok, ok, tmp=58, slp=1, av=42):
    l = lab('spin')
    A(f"""
    s_mov_b32 s{tmp}, 0
    {l}:
    ds_read_b32 v43, v{av} offset:{off}
    s_add_u32 s{tmp}, s{tmp}, 1
    s_waitcnt lgkmcnt(0)
    v_readfirstlane_b32 s{dst}, v43
    {cmp_ok}
    s_cbranch_scc1 {ok}
    s_sleep {slp}
    s_cmp_lt_u32 s{tmp}, {SPIN}
    s_cbranch_scc1 {l}
    """)
def lsync(off, tmp=60):
    l = lab('ls'); ok = lab('lsok')
    A(f"""
    s_mov_b64 exec, 1
    ds_add_u32 v42, v10 offset:{off}
    s_mov_b64 exec, -1
    s_mov_b32 s{tmp}, 0
    {l}:
    ds_read_b32 v43, v42 offset:{off}
    s_add_u32 s{tmp}, s{tmp}, 1
    s_waitcnt lgkmcnt(0)
    v_readfirstlane_b32 s{tmp+1}, v43
    s_cmp_ge_u32 s{tmp+1}, 7
    s_cbranch_scc1 {ok}
    s_cmp_lt_u32 s{tmp}, {SPIN}
    s_cbranch_scc1 {l}
    {ok}:
    """)
NT = 'nt' if OPT['NT'] else ''
def caddr(v, t, s):
    A(f"""
    v_lshrrev_b32 v{v}, 3, v0
    v_lshlrev_b32 v{v}, 13, v{v}
    v_and_b32 v{t}, 7, v0
    v_lshl_add_u32 v{v}, v{t}, 7, v{v}
    v_lshlrev_b32 v{t}, 2, v0
    s_and_b32 s{s}, s2, 7
    s_lshl_b32 s{s}, s{s}, 10
    s_add_u32 s{s}, s{s}, {WS_PF}
    """)
def signal(ty, v, one, s):
    A(f"""
    s_mov_b64 exec, 0xff
    v_lshlrev_b32 v{v}, 10, v0
    v_mov_b32 v{one}, 1
    s_lshl_b32 s{s}, s2, 4
    s_and_b32 s{s}, s{s}, 0x380
    s_add_u32 s{s}, s{s}, {WS_PF + 8192*ty}
    buffer_atomic_add v{one}, v{v}, s[44:47], s{s} offen sc1
    """)
def snap():
    A(f"""
    v_lshrrev_b32 v27, 1, v0
    s_lshl_b32 s56, s62, 5
    v_add_u32 v27, s56, v27
    v_lshlrev_b32 v25, 10, v27
    s_lshl_b32 s98, s53, 2
    s_add_u32 s98, s98, {WS_OFF}
    """)
def initnd(regs):
    for k in range(NS):
        for r, val in ((Nn(k), "0"), (Dd(k), "s[60:61]")):
            if r in regs: A(f"v_mov_b64 v[{r}:{r+1}], {val}\nv_mov_b64 v[{r+2}:{r+3}], {val}")
ALLND = [r for k in range(NS) for r in (Nn(k), Dd(k))]
def prep():
    spot()
    A("s_mov_b32 s22, 0")
    for w in range(16):
        a = ASG[w] + [0]
        A(f"s_cmp_eq_u32 s3, {w}\ns_cselect_b32 s22, {hex(a[0] | a[1] << 8 | a[2] << 16 | a[3] << 24)}, s22")
    A(f"""
    ;@spot
    v_mul_u32_u24 v33, 43, v0
    v_lshrrev_b32 v33, 7, v33
    v_mul_u32_u24 v34, 24, v33
    v_lshlrev_b32 v32, 3, v0
    v_sub_u32 v32, v32, v34
    v_cmp_lt_u32 vcc, 14, v0
    v_cndmask_b32 v32, v32, 24, vcc
    v_bfe_u32 v32, s22, v32, 8
    v_lshlrev_b32 v32, 3, v32
    v_mad_u32_u24 v33, v33, 6, 8
    v_subrev_u32 v34, 6, v33
    v_min_u32 v33, 26, v33
    v_min_u32 v34, 26, v34
    s_mov_b32 s56, {(127*NCAP + BIAS)*8193}
    v_lshl_add_u32 v35, v0, 26, s56
    v_lshrrev_b32 v43, 5, v0
    s_bfe_u32 s56, s22, 0x80000
    s_bfe_u32 s57, s22, 0x80008
    s_bfe_u32 s58, s22, 0x80010
    s_lshl_b32 s56, s56, 3
    s_lshl_b32 s57, s57, 3
    s_lshl_b32 s58, s58, 3
    v_lshl_add_u32 v36, v43, 2, s56
    v_lshl_add_u32 v37, v43, 2, s57
    v_lshl_add_u32 v38, v43, 2, s58
    ;@spot
    v_bfe_u32 v43, v0, 2, 3
    v_mul_u32_u24 v39, {QBLK}, v43
    v_and_b32 v43, 3, v0
    v_lshl_add_u32 v39, v43, 5, v39
    v_and_b32 v43, 4, v0
    v_lshl_add_u32 v39, v43, 2, v39
    v_and_b32 v43, 8, v0
    v_lshl_add_u32 v39, v43, 4, v39
    v_add_u32 v39, {QB + 127*QROW}, v39
    s_lshl_b32 s56, s3, 6
    v_and_b32 v40, 60, v0
    v_add_u32 v40, s56, v40
    """)

def gaddr():
    A(f"""
    v_lshrrev_b32 v5, 2, v0
    v_lshlrev_b32 v5, 9, v5
    v_lshrrev_b32 v6, 5, v0
    v_lshlrev_b32 v6, 1, v6
    v_and_b32 v7, 3, v0
    v_xor_b32 v6, v6, v7
    v_lshl_add_u32 v5, v6, 4, v5
    v_lshrrev_b32 v7, 4, v0
    v_and_b32 v6, 15, v0
    v_xor_b32 v6, v6, v7
    v_lshlrev_b32 v6, 4, v6
    v_lshl_add_u32 v6, v7, 8, v6
    v_xor_b32 v7, 64, v6
    v_xor_b32 v8, 0x80, v6
    v_xor_b32 v9, 0xc0, v6
    s_and_b32 s61, s3, 3
    s_mul_i32 s63, s61, {QBLK}
    s_add_u32 s63, s63, {QB}
    s_lshl_b32 s60, s61, 6
    s_lshl_b32 s61, s61, 13
    s_add_u32 s64, s61, {XB}
    s_lshl_b32 s65, s49, 8
    s_add_u32 s65, s65, s61
    """)
A(f"""
{KN}:
s_cmp_ge_u32 s2, 256
s_cbranch_scc1 L_end
s_load_dwordx16 s[4:19], s[0:1], 0
s_load_dwordx2 s[20:21], s[0:1], 64
s_load_dwordx2 s[24:25], s[0:1], 80
v_lshrrev_b32 v1, 6, v0
v_and_b32 v0, 63, v0
v_readfirstlane_b32 s3, v1
v_mov_b32 v42, 0
v_mov_b32 v41, 0
s_cmp_lg_u32 s3, 15
s_cbranch_scc1 L_noinit
v_mov_b64 v[16:17], 0
v_mov_b64 v[18:19], 0
s_mov_b32 s56, {CNT}
v_lshl_add_u32 v2, v0, 4, s56
v_lshlrev_b32 v23, 2, v0
v_sub_u32 v20, 127, v0
v_sub_u32 v21, 63, v0
ds_write_b128 v2, v[16:19]
ds_write_b32 v23, v16
ds_write2st64_b32 v23, v20, v21 offset0:{KEY//256} offset1:{KEY//256+1}
L_noinit:
s_mov_b32 s26, 0xffff0000
s_mov_b32 s54, 0
s_mov_b32 s55, 0
s_mov_b32 s48, s2
""")
bucket_range(2, 53, 51, 52)
A("s_mov_b32 s49, s51\ns_mov_b32 s50, s52\ns_sub_u32 s52, s52, s51\ns_sub_u32 s62, s3, 8\ns_mov_b32 s27, 0")
A(f"""
s_mov_b32 s31, 0x00020000
s_mov_b32 s35, 0x00020000
s_mov_b32 s38, {E*2}
s_mov_b32 s39, 0x00020000
s_mov_b32 s46, {WS_SIZE}
s_mov_b32 s47, 0x00020000
s_cmp_lt_u32 s3, 8
s_cbranch_scc1 L_Gfirst
s_lshl_b32 s56, s62, 6
v_add_u32 v1, s56, v0
s_mul_i32 s57, s2, {CH}
v_lshl_add_u32 v2, v1, 2, s57
v_lshlrev_b32 v3, 2, v2
v_lshlrev_b32 v4, 1, v2
s_mov_b32 s30, {E*4}
s_mov_b32 s34, {E*4}
s_cmp_eq_u32 s3, 15
s_cbranch_scc1 L_W15
s_waitcnt lgkmcnt(0)
s_mov_b32 s28, s10
s_mov_b32 s29, s11
s_mov_b32 s32, s8
s_mov_b32 s33, s9
s_mov_b32 s36, s6
s_mov_b32 s37, s7
buffer_load_dwordx4 v[44:47], v3, s[28:31], 0 offen {NT}
buffer_load_dwordx4 v[48:51], v3, s[32:35], 0 offen {NT}
buffer_load_dwordx2 v[52:53], v4, s[36:39], 0 offen {NT}
s_barrier
;@hopL
s_branch L_Lcont
L_W15:
""")
caddr(52, 23, 23)
A(f"""
s_lshr_b32 s56, s2, 3
s_lshl_b32 s56, s56, 11
v_lshl_add_u32 v28, v0, 7, s56
v_add_u32 v29, 0x10000, v28
v_lshrrev_b32 v32, 3, v0
v_lshlrev_b32 v32, 6, v32
v_and_b32 v33, 1, v0
v_lshl_add_u32 v32, v33, 5, v32
v_bfe_u32 v33, v0, 1, 2
v_lshl_add_u32 v32, v33, 3, v32
v_add_u32 v33, 0x20000, v32
s_waitcnt lgkmcnt(0)
s_mov_b32 s44, s24
s_mov_b32 s45, s25
s_mov_b64 exec, 0xffffffff
buffer_load_dword v53, v52, s[44:47], s23 offen sc1
s_mov_b64 exec, 0xffff
global_load_dword v30, v28, s[12:13]
global_load_dword v30, v29, s[12:13]
global_load_dword v31, v28, s[16:17]
s_mov_b64 exec, -1
global_load_dwordx2 v[36:37], v33, s[12:13]
global_load_dwordx2 v[38:39], v32, s[14:15]
s_barrier
;@hopW
s_branch L_W15cont
L_Gfirst:
""")
gaddr()
A(f"""
s_mov_b32 s30, {257*512}
s_mov_b32 s34, {N*256}
s_waitcnt lgkmcnt(0)
s_mov_b32 s28, s12
s_mov_b32 s29, s13
s_mov_b32 s32, s4
s_mov_b32 s33, s5
""")
ts(0)
bar()
ts(20)
def wpieces(lds, glob, n):
    for blk in range(2):
        A(f"s_add_u32 m0, s63, {lds + blk*4*QBLK}\ns_add_u32 s56, s60, {glob + blk*256}")
        for i in range(n):
            A(f"buffer_load_dwordx4 v5, s[28:31], s56 offen lds")
            if i < n-1: A("s_add_u32 m0, m0, 1024\ns_add_u32 s56, s56, 8192")
A("s_cmp_lt_u32 s3, 4\ns_cbranch_scc1 L_Gx")
wpieces(0, 0, 8)
A(f"""
s_branch L_Gcont
L_Gx:
s_mov_b32 m0, s64
""")
if OPT.get('XD'): A(f"s_sleep {OPT['XD']}")
for i in range(4): A(f"buffer_load_dwordx4 v{6+i}, s[32:35], s65 offen offset:{1024*i} {NT} lds")
A(f"""
s_add_u32 m0, s64, 4096
s_add_u32 s65, s65, 4096
buffer_load_dwordx4 v6, s[32:35], s65 offen {NT} lds
s_cmp_eq_u32 s3, 3
s_cbranch_scc1 L_Gcont
""")
for i in range(1, 4): A(f"buffer_load_dwordx4 v{6+i}, s[32:35], s65 offen offset:{1024*i} {NT} lds")
A("s_branch L_Gcont")
def common():
    A(f"""
    s_mov_b32 s44, s24
    s_mov_b32 s45, s25
    s_mov_b32 s36, s6
    s_mov_b32 s37, s7
    s_mov_b32 s40, s24
    s_and_b32 s41, s25, 0xffff
    s_or_b32 s41, s41, 0x00100000
    s_mov_b32 s42, 64
    s_mov_b32 s43, 0x00800000
    """)
A(";@warm")
A(f"L_Lcont:\ns_mov_b64 exec, -1\ns_setprio {OPT['LPRIO']}\ns_mov_b32 s23, 0\nv_mov_b32 v{Dd(2)}, 0")
common()
ts(0)
ts(20)
A(f"""
s_lshl_b32 s99, s2, 10
s_add_u32 s99, s99, {WS_OFF}
v_lshlrev_b32 v14, 4, v0
""")
snap()
A(f"""
v_cmp_gt_u32 vcc, {CH//4}, v1
v_mov_b32 v3, {E}
v_cmp_gt_u32 s[96:97], v3, v2
s_and_b64 s[96:97], s[96:97], vcc
v_mov_b32 v10, 1
s_movk_i32 s56, 2684
s_mov_b32 s57, {CNT}
s_movk_i32 s58, {N-1}
v_lshl_add_u32 v11, v0, 4, s57
""")
ts(22); spot()
A(f"s_waitcnt vmcnt(2)")
ts(1); spot()
A("s_mov_b64 exec, s[96:97]")
for i in range(4):
    A(f"""
    v_min_u32 v{44+i}, s58, v{44+i}
    v_mul_u32_u24 v{54+i}, s56, v{44+i}
    v_lshrrev_b32 v{54+i}, 18, v{54+i}
    v_lshl_add_u32 v{54+i}, v{54+i}, 2, s57
    ds_add_rtn_u32 v{58+i}, v{54+i}, v10
    """)
lsync(C_S2)
ts(2); spot()
A(f"ds_read_b128 v[64:67], v11\ns_waitcnt vmcnt(0)")
for i in range(4):
    A(f"""
    v_min_u32 v{48+i}, s58, v{48+i}
    v_and_b32 v{44+i}, 127, v{44+i}
    v_bfe_u32 v62, v{48+i}, 4, 2
    v_mad_u32_u24 v62, v62, 6, 8
    v_lshl_or_b32 v{44+i}, v{44+i}, 7, v62
    """)
A(f"""
s_waitcnt lgkmcnt(0)
v_add_u32 v69, v64, v65
v_add_u32 v70, v69, v66
v_add_u32 v72, v70, v67
v_mov_b32 v73, v72
v_lshl_or_b32 v48, v52, 16, v48
v_and_or_b32 v49, v52, s26, v49
""")
dpp_add(73, "row_shr:1")
A("v_lshl_or_b32 v50, v53, 16, v50\nv_and_or_b32 v51, v53, s26, v51")
dpp_add(73, "row_shr:2"); dpp_add(73, "row_shr:4"); dpp_add(73, "row_shr:8")
dpp_add(73, "row_bcast:15", "row_mask:0xa bank_mask:0xf"); dpp_add(73, "row_bcast:31", "row_mask:0xc bank_mask:0xf")
A(f"""
;@spot
v_sub_u32 v76, v73, v72
v_add_u32 v77, v76, v64
v_add_u32 v78, v76, v69
v_add_u32 v79, v76, v70
ds_write_b128 v11, v[76:79] offset:{START-CNT}
s_mov_b64 exec, s[96:97]
""")
for i in range(4): A(f"ds_read_b32 v{54+i}, v{54+i} offset:{START-CNT}")
A(f"s_mov_b32 s57, {STG}")
for i in range(4): A(f"v_lshl_add_u32 v{58+i}, v{58+i}, 3, s57")
for i in range(4):
    A(f"""
    s_waitcnt lgkmcnt(3)
    v_lshl_add_u32 v{54+i}, v{54+i}, 3, v{58+i}
    ds_write2_b32 v{54+i}, v{48+i}, v{44+i} offset0:0 offset1:1
    """)
A(f"""
s_mov_b64 exec, -1
v_lshl_add_u32 v12, v1, 4, s57
v_lshlrev_b32 v13, 4, v1
s_mul_i32 s56, s2, {REC_STRIDE}
s_add_u32 s56, s56, {WS_REC}
s_add_u32 s57, s56, 7168
v_cmp_gt_u32 vcc, 334, v1
""")
lsync(C_S3)
ts(3); spot()
A(f"""
ds_read_b128 v[84:87], v12
ds_read_b128 v[88:91], v12 offset:7168
v_lshl_or_b32 v80, v64, 16, v76
v_lshl_or_b32 v81, v65, 16, v77
v_lshl_or_b32 v82, v66, 16, v78
v_lshl_or_b32 v83, v67, 16, v79
s_waitcnt lgkmcnt(1)
buffer_store_dwordx4 v[84:87], v13, s[44:47], s56 offen {SC}
s_cbranch_vccz L_nost2
s_mov_b64 exec, vcc
s_waitcnt lgkmcnt(0)
buffer_store_dwordx4 v[88:91], v13, s[44:47], s57 offen {SC}
s_branch L_st3
L_nost2:
buffer_store_dwordx4 v[80:83], v14, s[44:47], s99 offen {SC}
L_st3:
s_mov_b64 exec, 1
s_waitcnt vmcnt(0) lgkmcnt(0)
ds_add_rtn_u32 v15, v42, v10 offset:{C_REC}
s_mov_b64 exec, -1
s_waitcnt lgkmcnt(0)
v_readfirstlane_b32 s58, v15
s_cmp_lg_u32 s58, 6
s_cbranch_scc1 L_B0
""")
signal(0, 13, 14, 56)
A("s_branch L_B0")
spot(True)
A(f"L_W15cont:\ns_mov_b64 exec, -1\nv_lshlrev_b32 v1, 4, v0\nv_mov_b32 v{Dd(2)}, 0\ns_mov_b32 s28, s10\ns_mov_b32 s29, s11\ns_mov_b32 s32, s8\ns_mov_b32 s33, s9")
common()
ts(0)
snap()
A(f"""
s_setprio {OPT['LPRIO']}
s_mov_b32 s56, {NLOG2E}
s_mov_b32 s57, {NLOG2E}
s_waitcnt vmcnt(0)
v_add_u32 v53, 32, v53
v_lshlrev_b32 v4, 16, v36
v_and_b32 v5, s26, v36
v_lshlrev_b32 v6, 16, v37
v_and_b32 v7, s26, v37
v_lshlrev_b32 v32, 16, v38
v_and_b32 v33, s26, v38
v_lshlrev_b32 v34, 16, v39
v_and_b32 v35, s26, v39
v_pk_mul_f32 v[4:5], v[4:5], s[56:57]
v_pk_mul_f32 v[6:7], v[6:7], s[56:57]
v_pk_mul_f32 v[32:33], v[32:33], s[56:57]
v_pk_mul_f32 v[34:35], v[34:35], s[56:57]
ds_write_b128 v1, v[4:7] offset:{CW}
ds_write_b128 v1, v[32:35] offset:{CB}
s_mov_b64 exec, 0xffffffff
ds_write_b32 v23, v53 offset:{TGT}
""")
A("L_B0:\ns_mov_b64 exec, -1")
ts(4); spot()
A(f"""
v_and_b32 v19, 1, v0
v_lshlrev_b32 v19, 1, v19
s_movk_i32 s57, {REC_STRIDE}
v_mul_u32_u24 v10, s57, v27
v_lshl_add_u32 v10, v19, 3, v10
""")
prep()
A("s_cmp_eq_u32 s3, 15\ns_cbranch_scc1 L_w15b")
lds_spin(C_GO, 57, "s_cmp_lg_u32 s57, 0", "L_goseen", slp=2)
A(f"""
L_goseen:
s_cmp_eq_u32 s57, 1
s_cbranch_scc1 L_offok
L_B0_to:
s_mov_b64 exec, -1
""")
lds_or(C_ABORT, 2)
A("s_mov_b32 s63, 0\ns_branch L_B1done")
spot(True)
A("L_w15b:")
srd(28, 12, 257*512)
A(f"""
v_lshrrev_b32 v16, 2, v0
v_lshlrev_b32 v16, 9, v16
v_lshrrev_b32 v17, 5, v0
v_lshlrev_b32 v17, 1, v17
v_and_b32 v18, 3, v0
v_xor_b32 v17, v17, v18
v_lshl_add_u32 v16, v17, 4, v16
""")
WBM = OPT.get('WBM', 2)
if WBM == 2: lds_spin(C_S3, 57, "s_cmp_ge_u32 s57, 7", "L_wb0", slp=1)
if WBM == 3: lds_spin(C_X, 57, "s_cmp_ge_u32 s57, 4", "L_wb0", slp=1)
if WBM != 2: A("s_setprio 0")
A(f"""
L_wb0:
s_sleep {OPT['WBD']}
s_mov_b32 s56, 65536
s_mov_b32 s57, {QB+8192}
L_wb1:
s_mov_b32 m0, s57
s_mov_b32 s58, s56
""")
for i in range(6):
    A("buffer_load_dwordx4 v16, s[28:31], s58 offen lds")
    if i < 5: A("s_add_u32 m0, m0, 1024\ns_add_u32 s58, s58, 8192")
A(f"""
s_add_u32 s56, s56, 64
s_add_u32 s57, s57, {QBLK}
s_cmp_lt_u32 s56, {65536+512}
s_cbranch_scc1 L_wb1
s_setprio {OPT['LPRIO']}
s_waitcnt vmcnt(0)
""")
lds_or(C_WB, 1)
ts(23)
lds_spin(C_REC, 57, "s_cmp_ge_u32 s57, 7", "L_own", slp=2)
A("L_own:")
if OPT['PDELAY']: A(f"s_sleep {OPT['PDELAY']}")
ts(24); spot()
A(f"""
s_mov_b64 exec, 0xff
s_mov_b32 s58, 0
L_offp:
buffer_load_dword v18, v52, s[44:47], s23 offen sc1
s_add_u32 s58, s58, 1
s_waitcnt vmcnt(0)
v_cmp_ne_u32 vcc, v18, v53
""")
if OPT['FORCE_RECOV'] != 4: A("s_cbranch_vccz L_go\ns_mov_b64 exec, vcc")
A(f"""
s_sleep {SLP}
s_cmp_lt_u32 s58, {2 if OPT['FORCE_RECOV'] == 4 else POLLMAX}
s_cbranch_scc1 L_offp
""")
lds_or(C_GO, 2)
A("s_branch L_B0_to\nL_go:")
lds_or(C_GO, 1)
if TS: A("v_writelane_b32 v41, s58, 40")
A("s_mov_b64 exec, -1")
A("L_offok:\nbuffer_load_dword v18, v25, s[44:47], s98 offen sc1")
ts(5); spot()
A("s_waitcnt vmcnt(0)")
ts(6); spot()
A(f"""
v_and_b32 v16, 0xffff, v18
v_lshrrev_b32 v11, 16, v18
v_lshl_add_u32 v10, v16, 3, v10
v_cmp_lt_u32 vcc, 24, v11
v_sub_u32 v11, v11, v19
s_mov_b32 s56, {WS_REC}
s_mov_b32 s63, 0
""")
for i in range(6):
    m = 72+4*i
    A(f"""
    v_cmp_lt_i32 s[{m}:{m+1}], {4*i}, v11
    s_cmp_eq_u64 s[{m}:{m+1}], 0
    s_cbranch_scc1 L_ldone
    s_mov_b64 exec, s[{m}:{m+1}]
    buffer_load_dwordx4 v[{Nn(i)}:{Nn(i)+3}], v10, s[44:47], s56 offen offset:{32*i} sc1
    v_cmp_lt_i32 s[{m+2}:{m+3}], {4*i+1}, v11
    s_add_u32 s63, s63, 1
    """)
A(f"""
L_ldone:
s_mov_b64 exec, -1
s_cbranch_vccz L_noovf
""")
lds_or(C_ABORT, 1)
A(f"""
L_noovf:
s_lshl_b32 s57, s51, 7
v_mov_b32 v16, 0x41041
s_waitcnt vmcnt(0)
""")
ts(7)
spot()
for i in range(6):
    A(f"s_cmp_le_u32 s63, {i}\ns_cbranch_scc1 L_B1done")
    for j in range(2):
        d1 = Nn(i)+2*j+1; ad = Dd(i)+2*j; rk = ad+1; u = 20+j; m = 72+4*i+2*j
        A(f"""
        s_mov_b64 exec, s[{m}:{m+1}]
        v_subrev_u32 v{ad}, s57, v{d1}
        v_lshlrev_b32 v{u}, v{d1}, v16
        v_bfe_u32 v{ad}, v{ad}, 5, 9
        ds_add_rtn_u32 v{rk}, v{ad}, v{u} offset:{KEY}
        """)
A("L_B1done:\ns_mov_b64 exec, -1\ns_setprio 0\ns_waitcnt lgkmcnt(0)")
ts(8); spot()
bar()
ts(9); spot()
A(f"""
s_mov_b32 s57, {NL}
v_mov_b32 v20, 0
s_cmp_lg_u32 s3, 15
s_cbranch_scc1 L_nopre
s_mov_b64 exec, 0xff00
buffer_load_dword v54, v52, s[44:47], s23 offen sc1
L_nopre:
""")
for i in range(6):
    A(f"s_cmp_le_u32 s63, {i}\ns_cbranch_scc1 L_sc2")
    for j in range(2):
        ad = Dd(i)+2*j; rk = ad+1; m = 72+4*i+2*j; F = 4+2*i+j
        A(f"""
        s_mov_b64 exec, s[{m}:{m+1}]
        ds_read_b32 v{F}, v{ad} offset:{KEY}
        v_max_u32 v20, v20, v{rk}
        v_mad_u32_u24 v{ad}, v{ad}, {NCAP}, s57
        """)
A("L_sc2:\ns_mov_b64 exec, -1\n;@spot\ns_waitcnt lgkmcnt(0)")
for i in range(6):
    A(f"s_cmp_le_u32 s63, {i}\ns_cbranch_scc1 L_sc3")
    for j in range(2):
        w0 = Nn(i)+2*j; d1 = w0+1; ad = Dd(i)+2*j; rk = ad+1; m = 72+4*i+2*j; F = 4+2*i+j
        A(f"""
        s_mov_b64 exec, s[{m}:{m+1}]
        v_sub_u32 v{F}, v{F}, v{rk}
        v_lshl_add_u32 v{F}, v{F}, 6, v{rk}
        v_bfe_u32 v{F}, v{F}, v{d1}, 6
        v_lshl_add_u32 v{F}, v{F}, 2, v{ad}
        ds_write_b32 v{F}, v{w0}
        """)
A(f"""
L_sc3:
s_mov_b64 exec, -1
v_cmp_le_u32 vcc, {hex(NCAP << 26)}, v20
s_cbranch_vccz L_C2
""")
lds_or(C_ABORT, 1)
A("s_branch L_C2")
spot(True)

A(f"""
L_Gcont:
;@hopG
L_Gback:
s_mov_b64 exec, -1
s_lshl_b32 s56, s3, 6
v_add_u32 v1, s56, v5
v_and_b32 v3, 3, v0
s_mul_i32 s59, s3, {QBLK}
s_add_u32 s59, s59, {QB}
s_mov_b32 s23, 0
""")
common()
def wdma(base, n=8, ldsoff=0):
    A(f"s_add_u32 m0, s59, {ldsoff}\ns_mov_b32 s56, {base}")
    for i in range(n):
        A(f"buffer_load_dwordx4 v1, s[28:31], s56 offen lds")
        if i < n-1: A("s_add_u32 m0, m0, 1024\ns_add_u32 s56, s56, 8192")
ts(21)
prep()
A(f"""
v_lshrrev_b32 v4, 4, v0
v_bfe_u32 v5, v0, 2, 2
v_lshl_add_u32 v5, v4, 3, v5
v_lshlrev_b32 v2, 6, v5
v_lshl_add_u32 v2, v3, 3, v2
v_and_b32 v5, 1, v4
v_lshl_add_u32 v2, v5, 5, v2
v_add_u32 v2, s59, v2
v_xor_b32 v3, 32, v2
v_and_b32 v5, 15, v0
v_xor_b32 v6, v4, v5
v_lshlrev_b32 v6, 4, v6
v_lshl_add_u32 v16, v5, 8, v6
v_add_u32 v16, {XB}, v16
v_xor_b32 v17, 64, v16
v_xor_b32 v18, 0x80, v16
v_xor_b32 v19, 0xc0, v16
;@spot
s_add_u32 s60, s49, 15
s_and_b32 s60, s60, -16
s_sub_u32 s61, s60, s49
v_add_u32 v7, s61, v5
v_and_b32 v6, 15, v7
v_xor_b32 v6, v4, v6
v_lshlrev_b32 v6, 4, v6
v_lshl_add_u32 v20, v7, 8, v6
v_add_u32 v20, {XB}, v20
v_xor_b32 v21, 64, v20
v_xor_b32 v22, 0x80, v20
v_xor_b32 v23, 0xc0, v20
v_lshlrev_b32 v6, 9, v5
v_lshl_add_u32 v6, v4, 4, v6
s_lshl_b32 s56, s3, 6
v_add_u32 v6, s56, v6
v_mul_u32_u24 v7, {QROW}, v5
v_lshl_add_u32 v7, v4, 5, v7
s_and_b32 s56, s3, 1
s_lshl_b32 s56, s56, 4
s_and_b32 s57, s3, 2
s_lshl_b32 s57, s57, 6
s_add_u32 s56, s56, s57
s_add_u32 s56, s56, s59
v_add_u32 v7, s56, v7
;@spot
s_mov_b32 s32, s24
s_mov_b32 s33, s25
s_add_u32 s34, s50, {15+1}
s_and_b32 s34, s34, -16
s_mov_b32 s35, 0x00020000
s_mov_b32 s92, {NLOG2E}
s_mov_b32 s93, {NLOG2E}
s_lshr_b32 s61, s60, 4
s_sub_u32 s61, 0, s61
s_and_b32 s61, s61, 3
s_lshl_b32 s60, s60, 9
s_add_u32 s60, s60, {PB0}
""".replace(f"s_add_u32 s34, s50, {15+1}\ns_and_b32 s34, s34, -16", f"s_add_u32 s34, s50, 15\ns_and_b32 s34, s34, -16\ns_lshl_b32 s34, s34, 9\ns_add_u32 s34, s34, {PB0}"))
for i in range(7):
    A(f"s_lshl_b32 s{64+i}, s61, 12\ns_lshl_b32 s{84+i}, s61, 13\ns_add_u32 s{84+i}, s{84+i}, s60")
    if i < 6: A("s_add_u32 s61, s61, 4\ns_sub_u32 s56, s61, 7\ns_cselect_b32 s61, s61, s56")
ts(22); spot()
AF = 96; BFQ = ((44, 48, 52, 56), (68, 80, 88, 92)); ACC = (8, 24); PK = (8, 24, Nn(0), Dd(0), Nn(1), Dd(1), Nn(2))
PAV = Dd(2)
def afrags(offs=(0, 2048, 4096, 6144)):
    for s in range(4):
        for a in range(2):
            for hf in range(2):
                r = AF + a*16 + s*4 + hf*2
                A(f"ds_read_b64_tr_b16 v[{r}:{r+1}], v{2+a} offset:{offs[s]+256*hf}")
def bfrQ(t):
    for s in range(4):
        r = BFQ[t & 1][s]
        A(f"ds_read_b128 v[{r}:{r+3}], v{16+s} offset:{4096*t}")
def bfrP(t):
    for s in range(4):
        r = BFQ[t & 1][s]
        A(f"v_add_u32 v{4+(s&1)}, s{64+t}, v{20+s}\nds_read_b128 v[{r}:{r+3}], v{4+(s&1)}")
def gemm(bfr, post):
    for t in range(7):
        spot()
        if t < 6: bfr(t+1); A("s_waitcnt lgkmcnt(4)")
        else: A("s_waitcnt lgkmcnt(0)")
        for s in range(4):
            for a in range(2):
                c = ACC[t & 1] + 4*a; ar = AF + a*16 + s*4; br = BFQ[t & 1][s]
                A(f"v_mfma_f32_16x16x32_bf16 v[{c}:{c+3}], v[{ar}:{ar+3}], v[{br}:{br+3}], " + ("0" if s == 0 else f"v[{c}:{c+3}]"))
        if t > 0: post(t-1)
    post(6)
def pst(t, av=6):
    o = PK[t]
    A(f"buffer_store_dwordx4 v[{o}:{o+3}], v{av}, s[32:35], s{84+t} offen {SC}")
def postP(t):
    c = ACC[t & 1]; o = PK[t]
    for i in range(4): A(f"v_pk_mul_f32 v[{c+2*i}:{c+2*i+1}], v[{c+2*i}:{c+2*i+1}], s[92:93]")
    for i in range(4): A(f"v_cvt_pk_bf16_f32 v{o+i}, v{c+2*i}, v{c+2*i+1}")
    if t < 2: pst(t)
def postQ(t):
    c = ACC[t & 1]
    if t == 6: A("s_mov_b32 exec_lo, 0x00030003\ns_mov_b32 exec_hi, 0x00030003")
    A(f"ds_write_b128 v7, v[{c}:{c+3}] offset:{2304*t}\nds_write_b128 v7, v[{c+4}:{c+7}] offset:{2304*t+16}")
    if t == 6: A("s_mov_b64 exec, -1")
    if t == OPT['PUBT']: pubA()
A(f"""
s_add_u32 s63, s54, 1
s_lshl_b32 s63, s63, 3
v_mov_b32 v4, 1
s_mov_b64 exec, 1
s_waitcnt vmcnt(0)
ds_add_u32 v42, v4 offset:{C_X}
s_mov_b64 exec, -1
""")
ts(2); spot()
lds_spin(C_X, 56, "s_cmp_ge_u32 s56, s63", "L_xok")
A("L_xok:")
ts(3); spot()
afrags()
bfrP(0)
A("s_cmp_eq_u32 s54, 0\ns_cbranch_scc1 L_nowb")
wdma(65536, 6, 8192)
A("L_nowb:\ns_waitcnt lgkmcnt(4)")
wdma(65536+6*8192, 2)
gemm(bfrP, postP)
ts(4); spot()
lds_spin(C_WB, 56, "s_cmp_lg_u32 s56, 0", "L_wbok")
A("L_wbok:\ns_waitcnt vmcnt(2)")
ts(5); spot()
afrags((8192, 10240, 12288, 0)); bfrQ(0)
def pubA():
    A(f"""
    s_cmp_lg_u32 s54, 0
    s_cbranch_scc1 L_nopub
    s_mov_b64 exec, 1
    v_mov_b32 v4, 1
    s_waitcnt vmcnt(0)
    ds_add_rtn_u32 v5, v42, v4 offset:{C_PA}
    s_waitcnt lgkmcnt(0)
    v_readfirstlane_b32 s57, v5
    s_cmp_lg_u32 s57, 7
    s_cbranch_scc1 L_nopub
    """)
    signal(1, 5, 4, 56)
    A("L_nopub:\ns_mov_b64 exec, -1")
    ts(25)
if OPT['PUBT'] < 0: pubA()
gemm(bfrQ, postQ)
ts(6); spot()
A("s_cmp_eq_u32 s54, 0\ns_cbranch_scc1 L_defer")
for t in range(2, 7): pst(t)
A("s_branch L_recovG")
spot(True)
A(f"""
L_defer:
s_cmp_eq_u32 s64, 0
s_cselect_b32 s27, 2, 1
v_mov_b32 v{PAV}, v6
v_and_b32 v9, 3, v0
v_mul_u32_u24 v9, 112, v9
v_mov_b32 v14, 0
v_mov_b32 v15, 0
s_waitcnt lgkmcnt(0)
""")
ts(8); spot()
bar()
ts(9); spot()
A(f"ds_read_b32 v10, v40 offset:{KEY}")
for q in range(7): A(f"ds_read_b128 v[{96+4*q}:{99+4*q}], v9 offset:{KEY+16*q}")
pst(2, PAV); pst(3, PAV)
pairs = (96, 98, 56, 60)
for q in range(7):
    spot()
    A(f"s_waitcnt lgkmcnt({6-q})")
    for i in range(4): A(f"v_cmp_gt_u32 s[{pairs[i]}:{pairs[i]+1}], v{96+4*q+i}, v10")
    for i in range(4): A(f"v_addc_co_u32 v{14+(i&1)}, vcc, 0, v{14+(i&1)}, s[{pairs[i]}:{pairs[i]+1}]")
A("v_add_u32 v15, v14, v15")
dpp_add(15, "quad_perm:[1,0,3,2]", "row_mask:0xf bank_mask:0xf")
dpp_add(15, "quad_perm:[2,3,0,1]", "row_mask:0xf bank_mask:0xf")
A(f"""
v_lshlrev_b32 v15, 2, v15
ds_write_b32 v15, v10 offset:{SORT}
L_C2:
s_waitcnt lgkmcnt(0)
""")
ts(10); spot()
bar()
ts(11); spot()
MSK = (1 << 12) | (1 << 13) | (1 << 14) | (1 << 18)
LOV = sum(1 << s for s in range(3, 15)) | (1 << 18)
A(f"""
L_B4:
ds_read_b64 v[4:5], v32 offset:{SORT}
ds_read_b32 v43, v42 offset:{C_ABORT}
ds_read_b32 v36, v36 offset:{SORT}
ds_read_b32 v37, v37 offset:{SORT}
ds_read_b32 v38, v38 offset:{SORT}
s_mul_i32 s59, s3, {LW}
s_add_u32 s59, s59, {WL}
v_lshl_add_u32 v6, v0, 2, s59
v_mov_b32 v8, 0
v_mov_b32 v{VN}, 0
ds_write2st64_b32 v6, v8, v8 offset0:0 offset1:1
s_cmp_eq_u32 s27, 0
s_cbranch_scc1 L_nst1
""")
pst(4, PAV)
A("s_cmp_lg_u32 s27, 2\ns_cbranch_scc1 L_nst1")
pst(5, PAV)
A(f"""
L_nst1:
;@spot
s_mov_b32 s96, {hex(MSK)}
s_mov_b32 s97, 0
s_cmp_eq_u32 s3, 0
s_movk_i32 s98, 0x7fff
s_cselect_b32 s98, {hex(0x7fff | 1 << 15 | 1 << 18)}, s98
s_mov_b32 s99, 0
s_movk_i32 s60, {-NCAP}
s_movk_i32 s61, 8193
s_waitcnt lgkmcnt(4)
v_cndmask_b32 v7, v5, v4, s[96:97]
v_bfe_u32 v9, v4, v33, 6
v_bfe_u32 v11, v4, v34, 6
v_bfe_u32 v12, v5, v34, 6
v_bfe_u32 v10, v7, v33, 6
s_mov_b64 exec, {hex(LOV)}
v_min_u32 v8, v11, v12
s_mov_b64 exec, s[98:99]
v_min_u32 v9, v9, v10
v_sub_u32 v{VN}, v9, v8
s_mov_b64 exec, -1
v_mov_b32 v10, v{VN}
v_and_b32 v11, 127, v4
v_and_b32 v12, 127, v7
""")
dpp_add(10, "row_shr:1")
A("v_lshl_add_u32 v11, v12, 13, v11\nv_readfirstlane_b32 s55, v43")
dpp_add(10, "row_shr:2")
A(f"v_mad_i32_i24 v11, v11, s60, v35\nv_cmp_lt_u32 vcc, 0, v{VN}")
dpp_add(10, "row_shr:4")
A(f"v_lshl_add_u32 v13, v0, 3, s59\nv_lshrrev_b32 v1, 5, v0")
dpp_add(10, "row_shr:8")
A(f"v_mul_u32_u24 v1, {HL}, v1\nv_add_u32 v1, s59, v1")
dpp_add(10, "row_bcast:15", "row_mask:0xa bank_mask:0xf")
A(f"""
v_sub_u32 v12, v10, v{VN}
v_sub_u32 v9, v9, v10
v_readlane_b32 s58, v10, 20
v_lshl_add_u32 v12, v12, 2, s59
v_mad_i32_i24 v11, v9, s61, v11
s_sub_u32 s56, s58, 1
s_cmp_lt_u32 s56, {HL//8 - R}
s_cbranch_scc1 L_capok
s_or_b32 s55, s55, 4
L_capok:
;@spot
""")
if OPT['FORCE_SAFE']: A("s_or_b32 s55, s55, 1")
A(f"""
s_cmp_lg_u32 s55, 0
s_cbranch_scc1 L_nolist
s_mov_b64 exec, vcc
ds_write_b32 v12, v11
s_mov_b64 exec, -1
ds_read2st64_b32 v[10:11], v6 offset0:0 offset1:1
v_min_u32 v9, s56, v0
s_mov_b32 s57, {NL - 4*BIAS}
v_lshl_add_u32 v9, v9, 2, s57
s_movk_i32 s60, 512
s_waitcnt lgkmcnt(0)
""")
def fill(v, pm, ex=None, off=0):
    for c in ("row_shr:1", "row_shr:2", "row_shr:4", "row_shr:8"): dpp("v_max_u32", v, c)
    dpp("v_max_u32", v, "row_bcast:15", "row_mask:0xa bank_mask:0xf")
    dpp("v_max_u32", v, "row_bcast:31", "row_mask:0xc bank_mask:0xf")
    if ex: A(f"s_mov_b64 exec, {ex}")
    A(f"""
    v_and_b32 v14, 0x1fff, v{v}
    v_bfe_u32 v15, v{v}, 13, 13
    v_lshl_add_u32 v14, v14, 2, v{pm}
    v_lshl_add_u32 v15, v15, 2, v{pm}
    ds_read_b32 v14, v14
    ds_read_b32 v15, v15
    s_waitcnt lgkmcnt(1)
    v_mad_u32_u16 v16, v14, s60, s60
    v_and_b32 v14, s26, v14
    ds_write2_b32 v13, v16, v14 offset0:{off} offset1:{off+2*R+1}
    s_waitcnt lgkmcnt(1)
    v_mad_u32_u16 v17, v15, s60, 0
    v_and_b32 v15, s26, v15
    ds_write2_b32 v13, v17, v15 offset0:{off+HL//4} offset1:{off+HL//4+2*R+1}
    """)
fill(10, 9)
A(f"s_cmp_gt_u32 s58, {64-R}\ns_cbranch_scc1 L_fill2\nL_filled:\nL_nolist:")
A(f"""
ds_read_b128 v[8:11], v1
ds_read_b128 v[12:15], v1 offset:16
ds_read_b128 v[16:19], v1 offset:32
ds_read_b128 v[20:23], v1 offset:48
""")
ts(12); spot()
A(f"""
s_movk_i32 s60, {-QROW}
v_and_b32 v36, 127, v36
v_and_b32 v37, 127, v37
v_and_b32 v38, 127, v38
v_mad_i32_i24 v36, v36, s60, v39
v_mad_i32_i24 v37, v37, s60, v39
v_mad_i32_i24 v38, v38, s60, v39
s_bitcmp1_b32 s55, 1
s_cbranch_scc1 L_recover
s_cmp_lg_u32 s3, 15
s_cbranch_scc1 L_pfdone
s_cmp_lg_u32 s54, 0
s_cbranch_scc1 L_pfdone
s_mov_b32 s56, 0
s_mov_b64 exec, 0xff00
v_mov_b32 v55, 1
L_pfp:
s_waitcnt vmcnt(0)
v_cmp_ne_u32 vcc, v54, v53
""")
if OPT['FORCE_RECOV'] != 1: A("s_cbranch_vccz L_pfok\ns_mov_b64 exec, vcc")
A(f"""
buffer_load_dword v54, v52, s[44:47], s23 offen sc1
s_add_u32 s56, s56, 1
s_cmp_lt_u32 s56, {2 if OPT['FORCE_RECOV'] == 1 else POLLMAX}
s_cbranch_scc1 L_pfp
v_mov_b32 v55, 2
L_pfok:
ds_write_b32 v42, v55 offset:{C_PFA}
s_mov_b64 exec, -1
""")
if TS: A("v_writelane_b32 v41, s56, 41")
A("L_pfdone:")
lds_spin(C_PFA, 57, "s_cmp_lg_u32 s57, 0", "L_pfseen", tmp=56)
A("L_pfseen:\ns_cmp_lg_u32 s57, 1\ns_cbranch_scc1 L_recover")
ts(13); spot()
def gather(p, idx):
    if OPT.get('NOG'): return
    if OPT.get('SAFEG'): A(f"v_and_b32 v{idx}, 0x3ffffff, v{idx}")
    A(f"buffer_load_dwordx4 v[{RING[p]}:{RING[p]+3}], v{idx}, s[40:43], 0 offen {SC}")
A("s_cmp_lg_u32 s55, 0\ns_cbranch_scc1 L_noring")
for p, idx in enumerate((8, 10, 12, 14)): gather(p, idx)
A("s_branch L_ringd\nL_noring:\ns_waitcnt vmcnt(0)\nL_ringd:")
if OPT.get('NOG'):
    for p in range(4): A(f"v_mov_b64 v[{RING[p]}:{RING[p]+1}], 0\nv_mov_b64 v[{RING[p]+2}:{RING[p]+3}], 0")
spot()
for k in range(NS): A(f"ds_read_b128 v[{Q(k)}:{Q(k)+3}], v{36+(k>>1)} offset:{16*(k&1)}")
A(f"""
v_lshrrev_b32 v32, 26, v4
v_lshrrev_b32 v33, 26, v5
v_and_b32 v4, 127, v4
v_and_b32 v5, 127, v5
v_lshl_or_b32 v32, v32, 8, v4
v_lshl_or_b32 v33, v33, 8, v5
s_mul_i32 s80, s3, 6
s_min_u32 s56, s3, 1
s_lshl1_add_u32 s80, s56, s80
s_lshl_b32 s56, s80, 2
v_min_u32 v34, 3, v0
v_lshl_add_u32 v34, v34, 3, s56
s_and_b32 s98, s98, 0x8007
s_mov_b64 exec, s[98:99]
ds_write_b64 v34, v[32:33] offset:{ROWI}
s_mov_b64 exec, -1
v_and_b32 v34, 31, v0
v_lshlrev_b32 v34, 5, v34
s_cmp_lg_u32 s3, 0
s_cbranch_scc1 L_noq3
v_readlane_b32 s56, v4, 15
v_readlane_b32 s57, v5, 15
v_mov_b32 v35, s56
s_mov_b32 exec_lo, 0
v_mov_b32 v35, s57
s_mov_b32 exec_lo, -1
v_mad_i32_i24 v35, v35, s60, v39
ds_read_b128 v[{Nn(4)}:{Nn(4)+3}], v35
ds_read_b128 v[{Dd(4)}:{Dd(4)+3}], v35 offset:16
L_noq3:
;@spot
ds_read_b128 v[8:11], v34 offset:{CB}
ds_read_b128 v[12:15], v34 offset:{CB+16}
ds_read_b128 v[{WA}:{WA+3}], v34 offset:{CW}
ds_read_b128 v[{WB}:{WB+3}], v34 offset:{CW+16}
v_and_b32 v35, 3, v0
v_lshlrev_b32 v35, 4, v35
v_mov_b32 v36, 0x3f80
v_mov_b32 v37, 0
v_lshlrev_b64 v[2:3], v35, v[36:37]
s_mov_b32 s60, 1.0
s_mov_b32 s61, 1.0
s_mov_b32 s56, {NLOG2E}
s_mov_b32 s57, {NLOG2E}
s_mov_b32 s71, 0
s_mov_b32 s82, 0
s_mov_b32 s83, 0
""")
srd(28, 16, 65536)
LATE = list(PK[2:]) + [PAV, Nn(4), Dd(4)]
initnd([r for r in ALLND if r not in LATE])
A("s_waitcnt lgkmcnt(0)")
ts(28); spot()
bar()
ts(29); spot()
def qscale(r, a):
    b = 8 + 4*a
    A(f"v_pk_fma_f32 v[{r}:{r+1}], v[{r}:{r+1}], s[56:57], v[{b}:{b+1}]\nv_pk_fma_f32 v[{r+2}:{r+3}], v[{r+2}:{r+3}], s[56:57], v[{b+2}:{b+3}]")
for k in range(NS): qscale(Q(k), k & 1)
A(f"""
s_cmp_lg_u32 s3, 0
s_cbranch_scc1 L_noq3b
s_mov_b32 s58, {Q3P}
v_lshl_add_u32 v35, v0, 4, s58
""")
qscale(Nn(4), 0); qscale(Dd(4), 1)
A(f"""
ds_write_b128 v35, v[{Nn(4)}:{Nn(4)+3}]
ds_write_b128 v35, v[{Dd(4)}:{Dd(4)+3}] offset:1024
L_noq3b:
;@spot
s_cmp_eq_u32 s27, 0
s_cbranch_scc1 L_nopark
s_mov_b64 exec, 1
v_mov_b32 v43, 1
s_waitcnt vmcnt({0 if OPT.get('NOG') else 4})
ds_add_rtn_u32 v32, v42, v43 offset:{C_PB}
s_mov_b64 exec, -1
s_lshl_b32 s81, s3, 11
s_add_u32 s81, s81, {PARK}
v_lshl_add_u32 v33, v0, 4, s81
""")
for i in range(2): A(f"ds_write_b128 v33, v[{PK[5+i]}:{PK[5+i]+3}] offset:{1024*i}")
A(f"""
s_waitcnt lgkmcnt(2)
v_readfirstlane_b32 s57, v32
s_cmp_lg_u32 s57, 7
s_cbranch_scc1 L_nopark
""")
signal(2, 32, 43, 56)
A(f"""
s_mov_b64 exec, -1
L_nopark:
;@spot
""")
initnd(LATE)
A(f"""
s_waitcnt lgkmcnt(0)
s_cmp_lg_u32 s55, 0
s_cbranch_scc1 L_safe0
s_setprio {OPT['PRIO'][0]}
""")
ts(14); spot()
if TS: A("s_memtime s[100:101]\ns_waitcnt lgkmcnt(0)\nv_writelane_b32 v41, s100, 46")
SEL = "op_sel:[1,0,0] op_sel_hi:[1,1,1]"
TT = (8, 32)
def H1a(k, p):
    q = Q(k); a = k & 1; pr = 16 + 2*p; t = TT[a]; w = (WA, WB)[a]
    if a == 0 and p % 2 == 0: A("s_waitcnt lgkmcnt(1)")
    A(f"""
    v_pk_fma_f32 v[{t}:{t+1}], v[{pr}:{pr+1}], v[{w}:{w+1}], v[{q}:{q+1}] {SEL}
    v_pk_fma_f32 v[{t+2}:{t+3}], v[{pr}:{pr+1}], v[{w+2}:{w+3}], v[{q+2}:{q+3}] {SEL}
    """)
def H1b(k, p):
    a = k & 1; qd = 16 + 4*(p >> 1); pr = 16 + 2*p; rg = RING[p] + 2*a; t = TT[a]
    if a == 0: A(f"s_waitcnt vmcnt({R-1})\ns_sub_u32 s56, s56, 1")
    A(f"v_mfma_f32_4x4x4_16b_bf16 v[{t}:{t+3}], v[2:3], v[{rg}:{rg+1}], v[{t}:{t+3}]")
    if a == 1:
        gather(p, pr)
        if p % 2 == 1: A(f"ds_read_b128 v[{qd}:{qd+3}], v1 offset:{64+16*(p>>1)}")
        if p == 3: A("v_add_u32 v1, 32, v1")
def H2a(k):
    t = TT[k & 1]
    if OPT.get('NOV'): return
    A(f"v_exp_f32 v12, v{t}\nv_exp_f32 v13, v{t+1}")
def H2b(k):
    n, d = Nn(k), Dd(k); t = TT[k & 1]
    if OPT.get('NOV'): return
    A(f"""
    v_exp_f32 v14, v{t+2}
    v_exp_f32 v15, v{t+3}
    v_pk_fma_f32 v[{t}:{t+1}], v[{t}:{t+1}], v[{d}:{d+1}], v[{n}:{n+1}]
    v_pk_fma_f32 v[{t+2}:{t+3}], v[{t+2}:{t+3}], v[{d+2}:{d+3}], v[{n+2}:{n+3}]
    v_pk_fma_f32 v[{d}:{d+1}], v[{d}:{d+1}], v[12:13], v[{d}:{d+1}]
    v_pk_fma_f32 v[{n}:{n+1}], v[{n}:{n+1}], v[12:13], v[{t}:{t+1}]
    v_pk_fma_f32 v[{d+2}:{d+3}], v[{d+2}:{d+3}], v[14:15], v[{d+2}:{d+3}]
    v_pk_fma_f32 v[{n+2}:{n+3}], v[{n+2}:{n+3}], v[14:15], v[{t+2}:{t+3}]
    """)
def H2(k): H2a(k); H2b(k)
HK = OPT['HOOK']; PR = OPT['PRIO']
def wrap(p):
    A(f"""
    L_E3_{p}:
    s_cmp_lg_u32 s82, 0
    s_cbranch_scc1 L_re{p}
    L_W_{p}:
    s_mov_b32 s57, {p}
    """)
    if TS: A("s_memrealtime s[100:101]\ns_add_u32 s58, s71, 45\ns_min_u32 s58, s58, 63\ns_mov_b32 m0, s58\ns_waitcnt lgkmcnt(0)\nv_writelane_b32 v41, s100, m0")
    A(f"""
    s_cmp_eq_u32 s71, 3
    s_cbranch_scc1 L_wrap1
    s_setprio {PR[2]}
    s_cmp_eq_u32 s71, 6
    s_cbranch_scc1 L_E0_{p}
    s_setprio {PR[3]}
    s_cmp_eq_u32 s71, 9
    s_cbranch_scc1 L_E0_{p}
    s_mov_b32 exec_hi, 0
    s_cmp_eq_u32 s71, 12
    s_cbranch_scc1 L_E0_{p}
    s_cmp_eq_u32 s71, 18
    s_cbranch_scc1 L_E0_{p}
    s_mov_b32 exec_hi, -1
    s_cmp_lg_u32 s3, s83
    s_cbranch_scc1 L_flush
    s_branch L_rs{p}
    """)
    spot(True)
for p in range(4):
    for q in range(3):
        if q > 0:
            A(f"L_T{q-1}_{p}:"); H2(2*q-1)
        A(f"L_E{q}_{p}:")
        if q == HK: A(f"s_mov_b32 s57, {p}\ns_cmp_lt_u32 s71, 9\ns_cbranch_scc1 L_hook\nL_H_{p}:")
        A(f"v_readlane_b32 s56, v{VN}, s71\ns_add_u32 s71, s71, 1\ns_sub_u32 s56, s56, 1\ns_cbranch_scc1 L_E{q+1}_{p}")
        H1a(2*q, p); H1a(2*q+1, p); H1b(2*q, p); H1b(2*q+1, p); H2(2*q)
        A(f"s_cbranch_scc0 L_B{q}_{(p+1)&3}\ns_branch L_T{q}_{(p+1)&3}")
        spot(True)
    A(f"L_T2_{p}:"); H2(5)
    wrap(p)
for q in range(3):
    for p in range(4):
        A(f"L_B{q}_{p}:")
        H1a(2*q, p); H1b(2*q, p); H2(2*q+1); H1a(2*q+1, p); H2a(2*q); H1b(2*q+1, p); H2b(2*q)
        A(f"s_cbranch_scc1 L_T{q}_{(p+1)&3}")
    A(f"s_branch L_B{q}_0")
    spot(True)
def chk(ty, word, n):
    force = OPT['FORCE_RECOV'] == ty
    A(f"""
    L_pf{n}:
    s_mov_b64 exec, 1
    v_mov_b32 v36, 0
    v_mov_b32 v37, 3
    ds_cmpst_rtn_b32 v43, v42, v36, v37 offset:{word}
    s_mov_b64 exec, -1
    s_mov_b32 s58, 0
    s_waitcnt lgkmcnt(0)
    v_readfirstlane_b32 s60, v43
    s_cmp_eq_u32 s60, 1
    s_cbranch_scc1 L_hkok
    s_cmp_lg_u32 s60, 0
    s_cbranch_scc1 L_pf{n}w
    """)
    caddr(38, 37, 60)
    A(f"""
    s_mov_b64 exec, {hex(0xff << (8*ty))}
    ds_read_b32 v37, v37 offset:{TGT}
    L_pf{n}p:
    buffer_load_dword v36, v38, s[44:47], s60 offen sc1
    v_mov_b32 v39, 1
    s_add_u32 s58, s58, 1
    s_waitcnt vmcnt(0) lgkmcnt(0)
    v_cmp_ne_u32 vcc, v36, v37
    """)
    if not force: A(f"s_cbranch_vccz L_pf{n}1\ns_mov_b64 exec, vcc")
    A(f"""
    s_sleep 8
    s_cmp_lt_u32 s58, {2 if force else POLLMAX}
    s_cbranch_scc1 L_pf{n}p
    v_mov_b32 v39, 2
    L_pf{n}1:
    ds_write_b32 v42, v39 offset:{word}
    s_mov_b64 exec, -1
    """)
    if TS: A(f"v_writelane_b32 v41, s58, {40+ty}")
    A(f"L_pf{n}w:")
    lds_spin(word, 60, "s_cmp_lg_u32 s60, 3", f"L_pf{n}2", slp=4)
    A(f"L_pf{n}2:")
    if TS: A(f"v_writelane_b32 v41, s58, {42+ty}")
    A("s_cmp_lg_u32 s60, 1\ns_cbranch_scc1 L_recover")
A(f"""
L_hook:
s_cmp_eq_u32 s71, {3+HK}
s_cbranch_scc1 L_hk1
s_cmp_eq_u32 s71, {6+HK}
s_cbranch_scc1 L_pfc
""")
chk(2, C_PFB, 'b')
A("s_branch L_hkok")
spot(True)
chk(3, C_PFC, 'c')
A(f"L_hkok:\nv_readlane_b32 s58, v{VN}, s71")
for k in range(HK+1, 3): A(f"s_add_u32 s61, s71, {k-HK}\nv_readlane_b32 s60, v{VN}, s61\ns_add_u32 s58, s58, s60")
A(f"s_cmp_lt_u32 s58, {R}\ns_cselect_b32 s82, 1, 0")
if OPT.get('FORCE_RE'): A("s_mov_b32 s82, 1")
A("L_hkret:")
for p in range(4): A(f"s_cmp_eq_u32 s57, {p}\ns_cbranch_scc1 L_H_{p}")
A(f"""
s_add_u32 s71, s71, 3
s_cmp_eq_u32 s71, 3
s_cbranch_scc1 L_wrap1b
s_cmp_eq_u32 s71, 6
s_cbranch_scc1 L_pfc
s_branch L_safe
L_hk1:
s_mov_b64 exec, 1
v_mov_b32 v43, 1
s_waitcnt vmcnt(0)
ds_add_u32 v42, v43 offset:{C_W2}
s_cmp_eq_u32 s27, 0
s_cbranch_scc1 L_nopubC
ds_add_rtn_u32 v36, v42, v43 offset:{C_PC}
s_waitcnt lgkmcnt(0)
v_readfirstlane_b32 s58, v36
s_cmp_lg_u32 s58, 7
s_cbranch_scc1 L_nopubC
""")
signal(3, 36, 43, 58)
A("L_nopubC:\ns_mov_b64 exec, -1")
ts(27)
A(f"""
s_branch L_hkret
L_wrap1:
s_setprio {PR[1]}
L_wrap1b:
""")
ts(26); spot()
A(f"""
v_lshrrev_b32 v37, 4, v0
v_lshlrev_b32 v38, 2, v37
v_and_b32 v39, 15, v0
v_xor_b32 v38, v38, v39
v_lshlrev_b32 v38, 4, v38
v_lshl_add_u32 v38, v37, 8, v38
s_lshl_b32 s58, s3, 12
s_add_u32 m0, s58, {QB}
""")
for i in range(4): A(f"buffer_load_dwordx4 v38, s[28:31], s58 offen offset:{1024*i} lds")
A(f"""
s_cmp_eq_u32 s27, 0
s_cbranch_scc1 L_w1r
v_lshl_add_u32 v36, v0, 4, s81
ds_read_b128 v[8:11], v36 offset:1024
ds_read_b128 v[12:15], v36
v_lshlrev_b32 v36, 9, v39
v_lshl_add_u32 v36, v37, 4, v36
s_lshl_b32 s58, s3, 6
v_add_u32 v36, s58, v36
s_waitcnt lgkmcnt(0)
buffer_store_dwordx4 v[8:11], v36, s[32:35], s90 offen {SC}
s_cmp_eq_u32 s27, 2
s_cbranch_scc1 L_w1r
buffer_store_dwordx4 v[12:15], v36, s[32:35], s89 offen {SC}
L_w1r:
""")
for p in range(4): A(f"s_cmp_eq_u32 s57, {p}\ns_cbranch_scc1 L_E0_{p}")
A("s_branch L_hk1")
spot(True)
for p in range(4):
    A(f"""
    L_rs{p}:
    v_readfirstlane_b32 s58, v1
    s_add_u32 s58, s58, {HL}
    s_mov_b32 exec_lo, 0
    v_mov_b32 v1, s58
    s_mov_b32 exec_lo, -1
    ds_read_b128 v[16:19], v1 offset:{32 if p < 2 else 64}
    ds_read_b128 v[20:23], v1 offset:48
    s_mov_b32 s81, {p}
    L_re{p}:
    ds_read2_b32 v[36:37], v1 offset0:{2*p} offset1:{2*p+2}
    ds_read2_b32 v[38:39], v1 offset0:{2*p+4} offset1:{2*p+6}
    s_mov_b32 s82, 0
    s_waitcnt lgkmcnt(0)
    """)
    for i in range(4): gather((p+i) & 3, 36+i)
    A(f"s_cmp_lt_u32 s71, 15\ns_cbranch_scc1 L_W_{p}")
    if p < 3: A("s_branch L_flush")
A("L_flush:\ns_waitcnt lgkmcnt(0)")
ts(15); spot()
if TS: A("s_memtime s[100:101]\ns_waitcnt lgkmcnt(0)\nv_writelane_b32 v41, s100, 47")
A(f"""
v_lshrrev_b32 v36, 5, v0
v_add_u32 v36, s80, v36
v_mul_u32_u24 v36, {HROW}, v36
v_bfe_u32 v37, v0, 2, 3
v_lshl_add_u32 v36, v37, 6, v36
v_and_b32 v37, 3, v0
v_lshl_add_u32 v36, v37, 3, v36
v_add_u32 v36, {HSB}, v36
s_cmp_lg_u32 s83, 0
s_cbranch_scc1 L_flush2
""")
def guard(ks, ok):
    for k in ks:
        if k == ks[0]: A(f"v_pk_mul_f32 v[32:33], v[{Nn(k)}:{Nn(k)+1}], v[{Dd(k)}:{Dd(k)+1}]\nv_pk_mul_f32 v[34:35], v[{Nn(k)+2}:{Nn(k)+3}], v[{Dd(k)+2}:{Dd(k)+3}]")
        else: A(f"v_pk_fma_f32 v[32:33], v[{Nn(k)}:{Nn(k)+1}], v[{Dd(k)}:{Dd(k)+1}], v[32:33]\nv_pk_fma_f32 v[34:35], v[{Nn(k)+2}:{Nn(k)+3}], v[{Dd(k)+2}:{Dd(k)+3}], v[34:35]")
    A(f"""
    v_pk_add_f32 v[32:33], v[32:33], v[34:35]
    v_add_f32 v32, v32, v33
    v_mov_b32 v33, 0x207
    v_cmp_class_f32 vcc, v32, v33
    s_cmp_lg_u32 s55, 0
    s_cbranch_scc1 {ok}
    """)
    if OPT['FORCE_GUARD'] == 1 and len(ks) > 2: A("s_bitcmp0_b32 s3, 0\ns_cbranch_scc1 L_safe")
    if OPT['FORCE_GUARD'] == 2 and len(ks) == 2: A("s_branch L_safe")
    A(f"s_cbranch_vccnz L_safe\n{ok}:")
def hout(k, off):
    spot()
    n, d = Nn(k), Dd(k); o = 8 + 2*(k & 1)
    for i in range(4): A(f"v_rcp_f32 v{d+i}, v{d+i}")
    A(f"""
    v_pk_mul_f32 v[{n}:{n+1}], v[{n}:{n+1}], v[{d}:{d+1}]
    v_pk_mul_f32 v[{n+2}:{n+3}], v[{n+2}:{n+3}], v[{d+2}:{d+3}]
    v_cvt_pk_bf16_f32 v{o}, v{n}, v{n+1}
    v_cvt_pk_bf16_f32 v{o+1}, v{n+2}, v{n+3}
    ds_write_b64 v36, v[{o}:{o+1}] offset:{off}
    """)
guard(list(range(NS)), "L_fl2")
spot()
for k in range(NS): hout(k, 2*HROW*(k >> 1) + 32*(k & 1))
A(f"""
s_cmp_lg_u32 s3, 0
s_cbranch_scc1 L_fl3
s_mov_b32 s58, {Q3P}
v_lshl_add_u32 v37, v0, 4, s58
ds_read_b128 v[{Q(0)}:{Q(0)+3}], v37
ds_read_b128 v[{Q(1)}:{Q(1)+3}], v37 offset:1024
s_mov_b32 s60, 1.0
s_mov_b32 s61, 1.0
s_mov_b32 s83, 1
""")
initnd([Nn(0), Dd(0), Nn(1), Dd(1)])
A("s_waitcnt lgkmcnt(0)\ns_cmp_lg_u32 s55, 0\ns_cbranch_scc1 L_safe")
for p in range(3): A(f"s_cmp_eq_u32 s81, {p}\ns_cbranch_scc1 L_E0_{p}")
A("s_branch L_E0_3")
spot(True)
A("L_flush2:")
guard([0, 1], "L_fl2b")
for k in range(2): hout(k, 2*HROW*3 + 32*k)
A("L_fl3:")
ts(16); spot()
A(f"""
s_and_b32 s60, s3, 3
s_lshr_b32 s61, s3, 2
s_lshl_b32 s59, s61, 2
v_mov_b32 v2, s59
v_mov_b32 v3, 1
s_waitcnt lgkmcnt(0)
s_mov_b64 exec, 1
ds_add_u32 v2, v3 offset:{C_G}
s_mov_b64 exec, -1
v_lshrrev_b32 v4, 4, v0
v_and_b32 v5, 15, v0
s_lshl_b32 s56, s60, 6
v_lshl_add_u32 v6, v4, 4, s56
global_load_dwordx4 v[124:127], v6, s[18:19]
v_bfe_u32 v7, v0, 2, 2
v_lshl_add_u32 v1, v4, 3, v7
v_lshlrev_b32 v1, 8, v1
v_xor_b32 v7, s60, v7
v_lshl_add_u32 v1, v7, 6, v1
v_and_b32 v7, 3, v0
v_lshl_add_u32 v1, v7, 4, v1
""")
lds_spin(C_W2, 57, "s_cmp_ge_u32 s57, 16", "L_w2ok")
A("L_w2ok:\ns_waitcnt vmcnt(1)")
spot()
for s in range(8):
    for a in range(2):
        for hf in range(2):
            r = 44 + a*32 + s*4 + hf*2
            A(f"ds_read_b64_tr_b16 v[{r}:{r+1}], v1 offset:{QB+8192*s+1024*hf+8*a}")
A(f"""
s_mul_i32 s56, s61, 24
s_min_u32 s57, s61, 1
s_lshl1_add_u32 s56, s57, s56
v_add_u32 v5, s56, v5
v_lshlrev_b32 v3, 2, v5
v_mul_u32_u24 v1, {HROW}, v5
v_lshl_add_u32 v1, v4, 4, v1
v_add_u32 v1, {HSB}, v1
s_mov_b32 s32, s20
s_mov_b32 s33, s21
s_add_u32 s34, s51, s52
s_lshl_b32 s34, s34, 8
s_mov_b32 s35, 0x00020000
s_add_u32 s59, s51, 127
s_lshl_b32 s59, s59, 8
v_add_u32 v6, s59, v6
s_cmp_eq_u32 s61, 0
s_mov_b32 s96, 0x00ff00ff
s_cselect_b32 s96, 0x03ff03ff, s96
s_mov_b32 s97, s96
s_movk_i32 s59, -256
s_mov_b32 s56, {NLN2}
""")
ts(17); spot()
lds_spin(C_G, 57, "s_cmp_ge_u32 s57, 4", "L_gok", av=2)
A("L_gok:")
ts(18)
spot()
A(f"ds_read_b32 v42, v3 offset:{ROWI}\nds_read_b32 v43, v3 offset:{ROWI+64}")
BB = (108, 8)
def rd(qg):
    for t in range(2):
        for h in range(2):
            r = BB[qg & 1] + 8*t + 4*h
            A(f"ds_read_b128 v[{r}:{r+3}], v1 offset:{16*HROW*t + 64*(2*qg+h)}")
rd(0)
for qg in range(4):
    spot()
    if qg < 3: rd(qg+1); A(f"s_waitcnt lgkmcnt(4)")
    else: A("s_waitcnt lgkmcnt(0)")
    for h in range(2):
        s = 2*qg + h
        for t in range(2):
            for a in range(2):
                c = 24 + 8*t + 4*a; ar = 44 + a*32 + s*4; br = BB[qg & 1] + 8*t + 4*h
                A(f"v_mfma_f32_16x16x32_bf16 v[{c}:{c+3}], v[{ar}:{ar+3}], v[{br}:{br+3}], " + ("0" if s == 0 else f"v[{c}:{c+3}]"))
    if qg == 0:
        for t in range(2):
            A(f"v_and_b32 v{4+t}, 127, v{42+t}\nv_lshrrev_b32 v{42+t}, 8, v{42+t}\nv_mad_i32_i24 v{4+t}, v{4+t}, s59, v6\nv_cvt_f32_u32 v{42+t}, v{42+t}")
spot()
A("s_waitcnt vmcnt(0)")
for i in range(4):
    A(f"v_lshlrev_b32 v{44+2*i}, 16, v{124+i}\nv_and_b32 v{45+2*i}, s26, v{124+i}")
for t in range(2):
    for i in range(8): A(f"v_mul_f32 v{52+8*t+i}, v{42+t}, v{44+i}")
for t in range(2):
    c = 24 + 8*t
    for i in range(8): A(f"v_fma_f32 v{c+i}, v{c+i}, s56, v{52+8*t+i}")
    for i in range(4): A(f"v_cvt_pk_bf16_f32 v{68+4*t+i}, v{c+2*i}, v{c+2*i+1}")
    if t == 1: A("s_mov_b64 exec, s[96:97]")
    A(f"buffer_store_dwordx4 v[{68+4*t}:{71+4*t}], v{4+t}, s[32:35], 0 offen {OPT.get('OSC', '')}")
A("L_fin:")
if TS:
    A("s_mov_b64 exec, -1\ns_waitcnt vmcnt(0)")
    ts(19)
    A(f"""
    s_lshl_b32 s56, s2, 4
    s_add_u32 s56, s56, s3
    s_lshl_b32 s56, s56, 8
    s_add_u32 s56, s56, {WS_TS}
    v_lshlrev_b32 v1, 2, v0
    buffer_store_dword v41, v1, s[44:47], s56 offen
    """)
    if 'DIAG' in OPT:
        A(f"s_cmp_lg_u32 s3, {OPT.get('DW', 0)}\ns_cbranch_scc1 L_end\nv_readlane_b32 s56, v41, 0")
        if OPT['DIAG'] >= 100: A(f"s_mov_b32 s57, {OPT['DIAG']*100}")
        else: A(f"v_readlane_b32 s57, v41, {OPT['DIAG']}\ns_sub_u32 s57, s57, s56\ns_mul_i32 s57, s57, {OPT.get('DMUL', 10)}\ns_min_u32 s57, s57, 200000")
        A("""
        L_diag:
        s_sleep 4
        s_memrealtime s[100:101]
        s_waitcnt lgkmcnt(0)
        s_sub_u32 s58, s100, s56
        s_cmp_lt_u32 s58, s57
        s_cbranch_scc1 L_diag
        """)
A("L_end:\ns_endpgm")
A(";@cold")
A(f"""
L_fill2:
v_readlane_b32 s61, v10, 63
v_add_u32 v9, 64, v0
v_min_u32 v9, s56, v9
v_lshl_add_u32 v9, v9, 2, s57
v_add_u32 v13, 512, v13
v_max_u32 v11, s61, v11
""")
fill(11, 9, "0xffffffff")
A(f"""
s_mov_b64 exec, -1
s_branch L_filled
L_recover:
s_setprio 0
s_waitcnt vmcnt(0) lgkmcnt(0)
s_barrier
s_mov_b32 s54, 0
L_recov_step:
s_add_u32 s54, s54, 1
s_add_u32 s48, s2, s54
s_and_b32 s48, s48, 255
""")
bucket_range(48, 56, 49, 50)
A(f"""
s_cmp_lt_u32 s3, 8
s_cbranch_scc1 L_Gfirst
L_recovL:
s_barrier
L_recovG:
s_waitcnt vmcnt(0) lgkmcnt(0)
s_barrier
s_cmp_lt_u32 s54, 256
s_cbranch_scc1 L_recov_step
s_mov_b32 s27, 0
v_mov_b32 v43, 1
ds_write_b32 v42, v43 offset:{C_ABORT}
ds_write_b32 v42, v43 offset:{C_PFA}
ds_write_b32 v42, v43 offset:{C_PFB}
ds_write_b32 v42, v43 offset:{C_PFC}
v_mov_b32 v43, 0
ds_write_b32 v42, v43 offset:{C_W2}
""")
prep()
A(f"""
s_waitcnt lgkmcnt(0)
s_barrier
s_branch L_B4
L_safe0:
s_mov_b32 s57, 4
s_branch L_pfb
L_safe:
s_mov_b32 s55, 1
s_setprio 0
s_mov_b32 s60, 1.0
s_mov_b32 s61, 1.0
s_mul_i32 s73, s83, 6
s_add_u32 s73, s73, s80
s_lshl_b32 s73, s73, 2
v_lshl_add_u32 v23, v0, 2, s73
s_waitcnt vmcnt(0) lgkmcnt(0)
ds_read_b32 v22, v23 offset:{ROWI}
""")
initnd(ALLND)
srd(28, 10, E*4); srd(32, 8, E*4); srd(36, 6, E*2)
A(f"""
v_lshlrev_b32 v16, 2, v0
v_lshlrev_b32 v17, 1, v0
v_and_b32 v24, 31, v0
v_lshlrev_b32 v24, 4, v24
s_mov_b32 s72, 0
s_movk_i32 s74, {N-1}
s_waitcnt lgkmcnt(0)
v_and_b32 v22, 127, v22
v_sub_u32 v25, 127, v22
""")
for i in range(6): A(f"v_readlane_b32 s{64+i}, v25, {i}")
A("s_cmp_eq_u32 s83, 0\ns_cbranch_scc1 L_sloop")
for i in range(2, 6): A(f"s_mov_b32 s{64+i}, -1")
A(f"""
L_sloop:
s_lshl_b32 s56, s72, 1
buffer_load_dword v18, v16, s[28:31], s56 offen
buffer_load_dword v19, v16, s[32:35], s56 offen
buffer_load_ushort v20, v17, s[36:39], s72 offen
s_waitcnt vmcnt(0)
v_min_u32 v18, s74, v18
v_subrev_u32 v21, s51, v18
v_cmp_gt_u32 s[96:97], s52, v21
s_cmp_eq_u64 s[96:97], 0
s_cbranch_scc1 L_snext
v_mov_b32 v25, 6
""")
for i in range(6): A(f"v_cmp_eq_u32 vcc, s{64+i}, v21\nv_cndmask_b32 v25, v25, {i}, vcc")
A(f"""
v_cmp_gt_u32 vcc, 6, v25
s_and_b64 s[96:97], s[96:97], vcc
L_sbit:
s_mov_b64 exec, -1
s_cmp_eq_u64 s[96:97], 0
s_cbranch_scc1 L_snext
s_ff1_i32_b64 s56, s[96:97]
s_bitset0_b64 s[96:97], s56
v_readlane_b32 s57, v19, s56
v_readlane_b32 s58, v20, s56
v_readlane_b32 s60, v25, s56
s_min_u32 s57, s57, s74
s_lshl_b32 s57, s57, 9
s_lshl_b32 s58, s58, 16
s_mov_b32 s59, s58
buffer_load_dwordx4 v[28:31], v24, s[44:47], s57 offen offset:{PB0} sc1
s_lshl_b64 exec, 1, s60
v_add_u32 v22, 0x100, v22
s_bitcmp1_b32 s60, 0
s_cselect_b32 exec_lo, 0, -1
s_cselect_b32 exec_hi, -1, 0
s_lshr_b32 s60, s60, 1
s_waitcnt vmcnt(0)
""")
for qq in range(3):
    if qq < 2: A(f"s_cmp_lg_u32 s60, {qq}\ns_cbranch_scc1 L_sk{qq+1}")
    for a in range(2):
        k = 2*qq + a; q, n = Q(k), Nn(k); w = (WA, WB)[a]
        A(f"""
        v_pk_fma_f32 v[8:9], s[58:59], v[{w}:{w+1}], v[{q}:{q+1}]
        v_pk_fma_f32 v[10:11], s[58:59], v[{w+2}:{w+3}], v[{q+2}:{q+3}]
        v_mfma_f32_4x4x4_16b_bf16 v[8:11], v[2:3], v[{28+2*a}:{29+2*a}], v[8:11]
        v_exp_f32 v12, v8
        v_exp_f32 v13, v9
        v_exp_f32 v14, v10
        v_exp_f32 v15, v11
        v_pk_add_f32 v[12:13], v[12:13], 1.0 op_sel_hi:[1,0]
        v_pk_add_f32 v[14:15], v[14:15], 1.0 op_sel_hi:[1,0]
        v_rcp_f32 v12, v12
        v_rcp_f32 v13, v13
        v_rcp_f32 v14, v14
        v_rcp_f32 v15, v15
        v_pk_fma_f32 v[{n}:{n+1}], v[8:9], v[12:13], v[{n}:{n+1}]
        v_pk_fma_f32 v[{n+2}:{n+3}], v[10:11], v[14:15], v[{n+2}:{n+3}]
        """)
    A("s_branch L_sbit")
    if qq < 2: A(f"L_sk{qq+1}:")
A(f"""
L_snext:
s_add_u32 s72, s72, 128
s_cmp_lt_u32 s72, {2*E}
s_cbranch_scc1 L_sloop
s_cmp_eq_u32 s83, 0
s_cselect_b32 exec_lo, 63, 3
s_mov_b32 exec_hi, 0
ds_write_b32 v23, v22 offset:{ROWI}
s_mov_b64 exec, -1
s_branch L_flush
""")

KAL = OPT.get('KAL', 12)
body, npad = pad(L, verbose=bool(OPT.get('V')))
hdr = open('standalone__edge_featured_mpnn_mpnn__graph.s.ref').read().split('; Override')[0]
def emit(body):
    out = hdr + f"; @launch grid=(256,1,1) block=(1024,1,1) lds={LDS}\n"
    out += f'.amdgcn_target "amdgcn-amd-amdhsa--gfx950"\n.text\n.globl {KN}\n.p2align {KAL}\n.type {KN},@function\n'
    out += "\n".join(body) + "\n"
    out += f""".section .rodata,"a"
.p2align 6
.amdhsa_kernel {KN}
  .amdhsa_next_free_vgpr 128
  .amdhsa_next_free_sgpr 102
  .amdhsa_accum_offset 128
  .amdhsa_group_segment_fixed_size 0
  .amdhsa_kernarg_size 88
  .amdhsa_user_sgpr_count 2
  .amdhsa_user_sgpr_kernarg_segment_ptr 1
  .amdhsa_system_sgpr_workgroup_id_x 1
.end_amdhsa_kernel
"""
    return out
import subprocess, re
def offsets(body):
    t = []; k = 0
    for b in body:
        if b.startswith(';@'): t.append(f"M_{k}:"); k += 1
        else: t.append(b)
    open('_m.s', 'w').write(emit(t))
    subprocess.run(["clang", "-x", "assembler", "-target", "amdgcn-amd-amdhsa", "-mcpu=gfx950", "-c", "_m.s", "-o", "_m.o"], check=True)
    o = subprocess.run(["llvm-objdump", "-t", "_m.o"], capture_output=True, text=True).stdout
    d = {int(m.group(2)): int(m.group(1), 16) for m in re.finditer(r"^([0-9a-f]+) .* M_(\d+)$", o, re.M)}
    return [d[i] for i in range(k)]
nb = []
for i, b in enumerate(body):
    nb.append(b)
    if b.strip().startswith('s_branch') and i+1 < len(body) and body[i+1].endswith(':'): nb.append(';@dead')
body = nb
def place(body, chosen, chains):
    out = []; k = 0
    for b in body:
        if not b.startswith(';@'): out.append(b); continue
        out.append(b)
        if k in chosen:
            n = chosen[k]
            out.append(f"L_stub{n}:"); out.append(f"    {'s_branch' if b == ';@dead' else 's_cbranch_execz'} {chains[n]}")
        if b in (';@hopL', ';@hopW', ';@hopG') and chosen:
            ws = {';@hopL': range(8, 15), ';@hopW': (15,), ';@hopG': range(8)}[b]
            if b == ';@hopG': out.append("    s_cmp_lg_u32 s54, 0"); out.append("    s_cbranch_scc1 L_Gback")
            out.append("    s_mov_b64 exec, 0")
            for w in ws:
                if w in first:
                    if b == ';@hopW': out.append(f"    s_branch L_stub{first[w]}")
                    else: out.append(f"    s_cmp_eq_u32 s3, {w}"); out.append(f"    s_cbranch_scc1 L_stub{first[w]}")
        k += 1
    return out
if OPT.get('WARM', 1):
    marks = [b for b in body if b.startswith(';@')]
    chosen = {}; chains = {}; first = {}
    COV = OPT.get('COV', 1024)
    for it in range(6):
        off = offsets(place(body, chosen, chains))
        lo = off[marks.index(';@warm')]; hi = off[marks.index(';@cold')]
        cand = [k for k, m in enumerate(marks) if m in (';@spot', ';@dead') and lo <= off[k] < hi]
        sel = []; end = (lo & ~127) + COV; gap = 0
        end = min(end, (lo | 4095) + 1)
        while end < hi:
            c = [k for k in cand if (off[k] & ~127) <= end and (not sel or off[k] > off[sel[-1]]) and (off[k] >> 12) == (end >> 12) and off[k] > end - 640]
            d = [k for k in c if marks[k] == ';@dead' and off[k] > end - 256]
            if d: k = d[-1]
            elif c: k = c[-1]
            else:
                c = [k for k in cand if off[k] > end]
                if not c: break
                k = c[0]; gap += (off[k] & ~127) - end
            sel.append(k)
            end = min((off[k] & ~127) + COV + 128, (off[k] | 4095) + 1)
        new = {k: n for n, k in enumerate(sel)}
        order = [8, 9, 10, 11, 12, 13, 14, 15, 0, 1, 2, 3, 4, 5, 6, 7] if OPT.get('WORD', 0) == 0 else [8, 9, 10, 11, 12, 13, 14, 15]
        per = {w: [] for w in order}
        for n in range(len(sel)): per[order[n % len(order)]].append(n)
        first = {w: v[0] for w, v in per.items() if v}
        chains = {}
        for w, v in per.items():
            back = 'L_Gback' if w < 8 else ('L_W15cont' if w == 15 else 'L_Lcont')
            for i, n in enumerate(v): chains[n] = f"L_stub{v[i+1]}" if i+1 < len(v) else back
        if new == chosen: break
        chosen = new
    print("stubs", len(sel), "gap", gap, [hex(off[k]) + marks[k][2] for k in sel], hex(lo), hex(hi), file=sys.stderr)
    body = place(body, chosen, chains)
body = [b for b in body if not b.startswith(';@')]
open(OPT.get('OUT', 'k.s'), 'w').write(emit(body))
print("pads", npad, "lines", len(body), file=sys.stderr)
```

```python
import sys, os, struct
sys.path.insert(0, os.path.dirname(os.path.abspath(__file__)))
from asmlib import *

OPT = dict(TS=0, FORCE_SAFE=0, FORCE_RECOV=0, FORCE_GUARD=0, POLLMAX=6000, SLP=8, NT=1, PDELAY=16, LPRIO=2, PUBT=0, WBD=2, HOOK=1,
           PRIO='3210')
for a in sys.argv[1:]:
    k, v = a.split('=')
    OPT[k] = int(v) if v.lstrip('-').isdigit() and k != 'PRIO' else v
TS = OPT['TS']; POLLMAX = OPT['POLLMAX']; SLP = OPT['SLP']
SC = 'sc1'
KN = "standalone__edge_featured_mpnn_mpnn__graph_kernel"

def f32(x): return "0x%08x" % struct.unpack('<I', struct.pack('<f', x))[0]
NLOG2E = f32(-1.4426950408889634); NLN2 = f32(-0.6931471805599453)

N = 25000; E = 400000; CH = 1564
PB0 = 512
WS_REC = 0xD00000; REC_STRIDE = 12544; WS_OFF = 0x1040000; WS_PF = 0x1080000; WS_TS = 0x1500000; WS_SIZE = 0x2000000
QBLK = 14336; QROW = 144
CTR = 0; KEY = 256; SORT = 768; ROWI = 1280; CW = 2048; CB = 3072; QB = 4096
STG = QB + 8*QBLK; CNT = STG + 12544; START = CNT + 1024; XB = START + 1024; LDS = 163840
NL = STG; NCAP = 48; WL = NL + 98*NCAP*4; HL = 768; LW = 2*HL; Q3P = 126976
assert XB % 256 == 0 and XB + 29696 <= LDS and WL + 16*LW + 64 <= LDS
C_REC, C_PA, C_GO, C_ABORT, C_W2, C_PB, C_PFB, C_PFA, C_X, C_RL, C_S2, C_S3, C_PFC, C_WB, C_PC = 0, 4, 8, 12, 16, 20, 24, 28, 32, 36, 40, 44, 48, 52, 56
TGT = 64
C_G = 192
C_SLOT = 60
ROT = OPT.get('ROT', 13)
EP = OPT.get('EP', 7) if OPT.get('ALL', 0) else 2
ALL = OPT.get('ALL', 0)
RA = lambda r: f's_add_u32 s{r}, s{r}, s1' if ROT else ''
PARK = QB + 65536; HSB = QB + 65536; HROW = 528
assert HSB + 106*HROW <= Q3P and Q3P + 2048 <= WL
R = 4; NS = 6
SB0 = 56
def Q(k): return SB0 + 12*k
def Nn(k): return SB0 + 12*k + 4
def Dd(k): return SB0 + 12*k + 8
RING = (24, 28, 44, 48); WA = 4; WB = 52; VN = 40
SPIN = 0x100000
BIAS = 128
ASG = [[28, 34, 46, 48], [1, 29, 45], [10, 19, 37], [3, 24, 42], [0, 39, 47], [9, 25, 32], [2, 23, 44], [4, 20, 43], [8, 26, 30], [6, 21, 40], [5, 31, 33], [11, 18, 38], [12, 15, 36], [7, 16, 41], [13, 17, 35], [14, 22, 27]]
assert sorted(sum(ASG, [])) == list(range(49))

L = []
def A(s):
    for line in s.strip('\n').split('\n'):
        line = line.strip()
        if not line: continue
        L.append(line if line.endswith(':') or line.startswith(('.', ';')) else "    " + line)
def srd(r, lo, size, w3="0x00020000"):
    A(f"s_mov_b32 s{r}, s{lo}\ns_mov_b32 s{r+1}, s{lo+1}\ns_mov_b32 s{r+2}, {size}\ns_mov_b32 s{r+3}, {w3}")
def ts(i):
    if TS: A(f"s_memrealtime s[100:101]\ns_waitcnt lgkmcnt(0)\nv_writelane_b32 v41, s100, {i}")
def bar(): A("s_barrier")
def spot(dead=False): A(";@dead" if dead else ";@spot")
uid = [0]
def lab(p):
    uid[0] += 1; return f"L_{p}_{uid[0]}"
def dpp(op, v, ctl, m="row_mask:0xf bank_mask:0xf bound_ctrl:0"):
    A(f"{op}_dpp v{v}, v{v}, v{v} {ctl} {m}")
def dpp_add(v, ctl, m="row_mask:0xf bank_mask:0xf bound_ctrl:0"): dpp("v_add_u32", v, ctl, m)
def bucket_range(cur, b, n0, n1):
    A(f"""
    s_and_b32 s{b}, s{cur}, 7
    s_lshl_b32 s{b}, s{b}, 5
    s_lshr_b32 s27, s{cur}, 3
    s_or_b32 s{b}, s{b}, s27
    s_mul_i32 s{n0}, s{b}, 6400845
    s_add_u32 s{n0}, s{n0}, 65535
    s_add_u32 s{n1}, s{n0}, 6400845
    s_lshr_b32 s{n0}, s{n0}, 16
    s_lshr_b32 s{n1}, s{n1}, 16
    s_min_u32 s{n1}, s{n1}, {N}
    """)
def lds_or(off, val):
    A(f"v_mov_b32 v43, {val}\nds_or_b32 v42, v43 offset:{off}")
def lds_spin(off, dst, cmp_ok, ok, tmp=58, slp=1, av=42):
    l = lab('spin')
    A(f"""
    s_mov_b32 s{tmp}, 0
    {l}:
    ds_read_b32 v43, v{av} offset:{off}
    s_add_u32 s{tmp}, s{tmp}, 1
    s_waitcnt lgkmcnt(0)
    v_readfirstlane_b32 s{dst}, v43
    {cmp_ok}
    s_cbranch_scc1 {ok}
    s_sleep {slp}
    s_cmp_lt_u32 s{tmp}, {SPIN}
    s_cbranch_scc1 {l}
    """)
def lsync(off, tmp=60):
    l = lab('ls'); ok = lab('lsok')
    A(f"""
    s_mov_b64 exec, 1
    ds_add_u32 v42, v10 offset:{off}
    s_mov_b64 exec, -1
    s_mov_b32 s{tmp}, 0
    {l}:
    ds_read_b32 v43, v42 offset:{off}
    s_add_u32 s{tmp}, s{tmp}, 1
    s_waitcnt lgkmcnt(0)
    v_readfirstlane_b32 s{tmp+1}, v43
    s_cmp_ge_u32 s{tmp+1}, 7
    s_cbranch_scc1 {ok}
    s_cmp_lt_u32 s{tmp}, {SPIN}
    s_cbranch_scc1 {l}
    {ok}:
    """)
NT = 'nt' if OPT['NT'] else ''
def caddr(v, t, s, rot=True):
    A(f"""
    v_lshrrev_b32 v{v}, 3, v0
    v_lshlrev_b32 v{v}, 13, v{v}
    v_and_b32 v{t}, 7, v0
    v_lshl_add_u32 v{v}, v{t}, 7, v{v}
    v_lshlrev_b32 v{t}, 2, v0
    s_and_b32 s{s}, s2, 7
    s_lshl_b32 s{s}, s{s}, 10
    s_add_u32 s{s}, s{s}, {WS_PF}
    {RA(s) if rot else ''}
    """)
def signal(ty, v, one, s):
    A(f"""
    s_mov_b64 exec, 0xff
    v_lshlrev_b32 v{v}, 10, v0
    v_mov_b32 v{one}, 1
    s_lshl_b32 s{s}, s2, 4
    s_and_b32 s{s}, s{s}, 0x380
    s_add_u32 s{s}, s{s}, {WS_PF + 8192*ty}
    {RA(s)}
    buffer_atomic_add v{one}, v{v}, s[44:47], s{s} offen sc1
    """)
def snap():
    A(f"""
    v_lshrrev_b32 v27, 1, v0
    s_lshl_b32 s56, s62, 5
    v_add_u32 v27, s56, v27
    v_lshlrev_b32 v25, 10, v27
    s_lshl_b32 s98, s53, 2
    s_add_u32 s98, s98, {WS_OFF}
    """)
def initnd(regs):
    for k in range(NS):
        for r, val in ((Nn(k), "0"), (Dd(k), "s[60:61]")):
            if r in regs: A(f"v_mov_b64 v[{r}:{r+1}], {val}\nv_mov_b64 v[{r+2}:{r+3}], {val}")
ALLND = [r for k in range(NS) for r in (Nn(k), Dd(k))]
def prep():
    spot()
    A("s_mov_b32 s22, 0")
    for w in range(16):
        a = ASG[w] + [0]
        A(f"s_cmp_eq_u32 s3, {w}\ns_cselect_b32 s22, {hex(a[0] | a[1] << 8 | a[2] << 16 | a[3] << 24)}, s22")
    A(f"""
    ;@spot
    v_mul_u32_u24 v33, 43, v0
    v_lshrrev_b32 v33, 7, v33
    v_mul_u32_u24 v34, 24, v33
    v_lshlrev_b32 v32, 3, v0
    v_sub_u32 v32, v32, v34
    v_cmp_lt_u32 vcc, 14, v0
    v_cndmask_b32 v32, v32, 24, vcc
    v_bfe_u32 v32, s22, v32, 8
    v_lshlrev_b32 v32, 3, v32
    v_mad_u32_u24 v33, v33, 6, 8
    v_subrev_u32 v34, 6, v33
    v_min_u32 v33, 26, v33
    v_min_u32 v34, 26, v34
    s_mov_b32 s56, {(127*NCAP + BIAS)*8193}
    v_lshl_add_u32 v35, v0, 26, s56
    v_lshrrev_b32 v43, 5, v0
    s_bfe_u32 s56, s22, 0x80000
    s_bfe_u32 s57, s22, 0x80008
    s_bfe_u32 s58, s22, 0x80010
    s_lshl_b32 s56, s56, 3
    s_lshl_b32 s57, s57, 3
    s_lshl_b32 s58, s58, 3
    v_lshl_add_u32 v36, v43, 2, s56
    v_lshl_add_u32 v37, v43, 2, s57
    v_lshl_add_u32 v38, v43, 2, s58
    ;@spot
    v_bfe_u32 v43, v0, 2, 3
    v_mul_u32_u24 v39, {QBLK}, v43
    v_and_b32 v43, 3, v0
    v_lshl_add_u32 v39, v43, 5, v39
    v_and_b32 v43, 4, v0
    v_lshl_add_u32 v39, v43, 2, v39
    v_and_b32 v43, 8, v0
    v_lshl_add_u32 v39, v43, 4, v39
    v_add_u32 v39, {QB + 127*QROW}, v39
    s_lshl_b32 s56, s3, 6
    v_and_b32 v40, 60, v0
    v_add_u32 v40, s56, v40
    """)

def gaddr():
    A(f"""
    v_lshrrev_b32 v5, 2, v0
    v_lshlrev_b32 v5, 9, v5
    v_lshrrev_b32 v6, 5, v0
    v_lshlrev_b32 v6, 1, v6
    v_and_b32 v7, 3, v0
    v_xor_b32 v6, v6, v7
    v_lshl_add_u32 v5, v6, 4, v5
    v_lshrrev_b32 v7, 4, v0
    v_and_b32 v6, 15, v0
    v_xor_b32 v6, v6, v7
    v_lshlrev_b32 v6, 4, v6
    v_lshl_add_u32 v6, v7, 8, v6
    v_xor_b32 v7, 64, v6
    v_xor_b32 v8, 0x80, v6
    v_xor_b32 v9, 0xc0, v6
    s_and_b32 s61, s3, 3
    s_mul_i32 s63, s61, {QBLK}
    s_add_u32 s63, s63, {QB}
    s_lshl_b32 s60, s61, 6
    s_lshl_b32 s61, s61, 13
    s_add_u32 s64, s61, {XB}
    s_lshl_b32 s65, s49, 8
    s_add_u32 s65, s65, s61
    """)
A(f"""
{KN}:
s_cmp_ge_u32 s2, 256
s_cbranch_scc1 L_end
s_load_dwordx16 s[4:19], s[0:1], 0
s_load_dwordx2 s[20:21], s[0:1], 64
s_load_dwordx2 s[24:25], s[0:1], 80
v_lshrrev_b32 v1, 6, v0
v_and_b32 v0, 63, v0
v_readfirstlane_b32 s3, v1
v_mov_b32 v42, 0
v_mov_b32 v41, 0
s_cmp_lg_u32 s3, 15
s_cbranch_scc1 L_noinit
v_mov_b64 v[16:17], 0
v_mov_b64 v[18:19], 0
s_mov_b32 s56, {CNT}
v_lshl_add_u32 v2, v0, 4, s56
v_lshlrev_b32 v23, 2, v0
v_sub_u32 v20, 127, v0
v_sub_u32 v21, 63, v0
ds_write_b128 v2, v[16:19]
ds_write_b32 v23, v16
ds_write2st64_b32 v23, v20, v21 offset0:{KEY//256} offset1:{KEY//256+1}
L_noinit:
s_mov_b32 s26, 0xffff0000
s_mov_b32 s54, 0
s_mov_b32 s55, 0
s_mov_b32 s48, s2
""")
bucket_range(2, 53, 51, 52)
A("s_mov_b32 s49, s51\ns_mov_b32 s50, s52\ns_sub_u32 s52, s52, s51\ns_sub_u32 s62, s3, 8\ns_mov_b32 s27, 0")
A(f"""
s_mov_b32 s31, 0x00020000
s_mov_b32 s35, 0x00020000
s_mov_b32 s38, {E*2}
s_mov_b32 s39, 0x00020000
s_mov_b32 s46, {0x10000000 if ROT else WS_SIZE}
s_mov_b32 s47, 0x00020000
s_cmp_lt_u32 s3, 8
s_cbranch_scc1 L_Gfirst
s_lshl_b32 s56, s62, 6
v_add_u32 v1, s56, v0
s_mul_i32 s57, s2, {CH}
v_lshl_add_u32 v2, v1, 2, s57
v_lshlrev_b32 v3, 2, v2
v_lshlrev_b32 v4, 1, v2
s_mov_b32 s30, {E*4}
s_mov_b32 s34, {E*4}
s_cmp_eq_u32 s3, 15
s_cbranch_scc1 L_W15
s_waitcnt lgkmcnt(0)
s_mov_b32 s28, s10
s_mov_b32 s29, s11
s_mov_b32 s32, s8
s_mov_b32 s33, s9
s_mov_b32 s36, s6
s_mov_b32 s37, s7
buffer_load_dwordx4 v[44:47], v3, s[28:31], 0 offen {NT}
buffer_load_dwordx4 v[48:51], v3, s[32:35], 0 offen {NT}
buffer_load_dwordx2 v[52:53], v4, s[36:39], 0 offen {NT}
s_barrier
;@hopL
s_branch L_Lcont
L_W15:
""")
SLOTC = f'''s_bfe_u32 s1, s60, {hex(ROT | 3 << 16)}
s_mul_i32 s1, s1, 0x1800000
v_mov_b32 v16, s1
ds_write_b32 v42, v16 offset:{C_SLOT}
s_add_u32 s23, s23, s1''' if ROT else ''
caddr(52, 23, 23, False)
if ROT: A('s_memrealtime s[60:61]')
A(f"""
s_lshr_b32 s56, s2, 3
s_lshl_b32 s56, s56, 11
v_lshl_add_u32 v28, v0, 7, s56
v_add_u32 v29, 0x10000, v28
v_lshrrev_b32 v32, 3, v0
v_lshlrev_b32 v32, 6, v32
v_and_b32 v33, 1, v0
v_lshl_add_u32 v32, v33, 5, v32
v_bfe_u32 v33, v0, 1, 2
v_lshl_add_u32 v32, v33, 3, v32
v_add_u32 v33, 0x20000, v32
s_waitcnt lgkmcnt(0)
{SLOTC}
s_mov_b32 s44, s24
s_mov_b32 s45, s25
s_mov_b64 exec, 0xffffffff
buffer_load_dword v53, v52, s[44:47], s23 offen sc1
s_mov_b64 exec, 0xffff
global_load_dword v30, v28, s[12:13]
global_load_dword v30, v29, s[12:13]
global_load_dword v31, v28, s[16:17]
s_mov_b64 exec, -1
global_load_dwordx2 v[36:37], v33, s[12:13]
global_load_dwordx2 v[38:39], v32, s[14:15]
{'s_waitcnt lgkmcnt(0)' if ROT else ''}
s_barrier
;@hopW
s_branch L_W15cont
L_Gfirst:
""")
gaddr()
A(f"""
s_mov_b32 s30, {257*512}
s_mov_b32 s34, {N*256}
s_waitcnt lgkmcnt(0)
s_mov_b32 s28, s12
s_mov_b32 s29, s13
s_mov_b32 s32, s4
s_mov_b32 s33, s5
""")
ts(0)
bar()
ts(20)
def wpieces(lds, glob, n):
    for blk in range(2):
        A(f"s_add_u32 m0, s63, {lds + blk*4*QBLK}\ns_add_u32 s56, s60, {glob + blk*256}")
        for i in range(n):
            A(f"buffer_load_dwordx4 v5, s[28:31], s56 offen lds")
            if i < n-1: A("s_add_u32 m0, m0, 1024\ns_add_u32 s56, s56, 8192")
A("s_cmp_lt_u32 s3, 4\ns_cbranch_scc1 L_Gx")
wpieces(0, 0, 8)
A(f"""
s_branch L_Gcont
L_Gx:
s_mov_b32 m0, s64
""")
if OPT.get('XD'): A(f"s_sleep {OPT['XD']}")
for i in range(4): A(f"buffer_load_dwordx4 v{6+i}, s[32:35], s65 offen offset:{1024*i} {NT} lds")
A(f"""
s_add_u32 m0, s64, 4096
s_add_u32 s65, s65, 4096
buffer_load_dwordx4 v6, s[32:35], s65 offen {NT} lds
s_cmp_eq_u32 s3, 3
s_cbranch_scc1 L_Gcont
""")
for i in range(1, 4): A(f"buffer_load_dwordx4 v{6+i}, s[32:35], s65 offen offset:{1024*i} {NT} lds")
A("s_branch L_Gcont")
def common():
    A(f"""
    s_mov_b32 s44, s24
    s_mov_b32 s45, s25
    s_mov_b32 s36, s6
    s_mov_b32 s37, s7
    s_mov_b32 s40, s24
    s_and_b32 s41, s25, 0xffff
    s_or_b32 s41, s41, 0x00100000
    s_mov_b32 s42, 64
    s_mov_b32 s43, 0x00800000
    """)
A(";@warm")
A(f"L_Lcont:\ns_mov_b64 exec, -1\ns_setprio {OPT['LPRIO']}\ns_mov_b32 s23, 0\nv_mov_b32 v{Dd(2)}, 0")
common()
ts(0)
ts(20)
A(f"""
s_lshl_b32 s99, s2, 10
s_add_u32 s99, s99, {WS_OFF}
v_lshlrev_b32 v14, 4, v0
{f'ds_read_b32 v16, v42 offset:{C_SLOT}' if ROT else ''}
""")
snap()
A(f"""
v_cmp_gt_u32 vcc, {CH//4}, v1
v_mov_b32 v3, {E}
v_cmp_gt_u32 s[96:97], v3, v2
s_and_b64 s[96:97], s[96:97], vcc
v_mov_b32 v10, 1
s_movk_i32 s56, 2684
s_mov_b32 s57, {CNT}
s_movk_i32 s58, {N-1}
v_lshl_add_u32 v11, v0, 4, s57
""")
ts(22); spot()
A(f"s_waitcnt vmcnt(2)")
ts(1); spot()
A("s_mov_b64 exec, s[96:97]")
for i in range(4):
    A(f"""
    v_min_u32 v{44+i}, s58, v{44+i}
    v_mul_u32_u24 v{54+i}, s56, v{44+i}
    v_lshrrev_b32 v{54+i}, 18, v{54+i}
    v_lshl_add_u32 v{54+i}, v{54+i}, 2, s57
    ds_add_rtn_u32 v{58+i}, v{54+i}, v10
    """)
lsync(C_S2)
if ROT: A(f"v_readfirstlane_b32 s1, v16\n{RA(98)}\n{RA(99)}")
ts(2); spot()
A(f"ds_read_b128 v[64:67], v11\ns_waitcnt vmcnt(0)")
for i in range(4):
    A(f"""
    v_min_u32 v{48+i}, s58, v{48+i}
    v_and_b32 v{44+i}, 127, v{44+i}
    v_bfe_u32 v62, v{48+i}, 4, 2
    v_mad_u32_u24 v62, v62, 6, 8
    v_lshl_or_b32 v{44+i}, v{44+i}, 7, v62
    """)
A(f"""
s_waitcnt lgkmcnt(0)
v_add_u32 v69, v64, v65
v_add_u32 v70, v69, v66
v_add_u32 v72, v70, v67
v_mov_b32 v73, v72
v_lshl_or_b32 v48, v52, 16, v48
v_and_or_b32 v49, v52, s26, v49
""")
dpp_add(73, "row_shr:1")
A("v_lshl_or_b32 v50, v53, 16, v50\nv_and_or_b32 v51, v53, s26, v51")
dpp_add(73, "row_shr:2"); dpp_add(73, "row_shr:4"); dpp_add(73, "row_shr:8")
dpp_add(73, "row_bcast:15", "row_mask:0xa bank_mask:0xf"); dpp_add(73, "row_bcast:31", "row_mask:0xc bank_mask:0xf")
A(f"""
;@spot
v_sub_u32 v76, v73, v72
v_add_u32 v77, v76, v64
v_add_u32 v78, v76, v69
v_add_u32 v79, v76, v70
ds_write_b128 v11, v[76:79] offset:{START-CNT}
s_mov_b64 exec, s[96:97]
""")
for i in range(4): A(f"ds_read_b32 v{54+i}, v{54+i} offset:{START-CNT}")
A(f"s_mov_b32 s57, {STG}")
for i in range(4): A(f"v_lshl_add_u32 v{58+i}, v{58+i}, 3, s57")
for i in range(4):
    A(f"""
    s_waitcnt lgkmcnt(3)
    v_lshl_add_u32 v{54+i}, v{54+i}, 3, v{58+i}
    ds_write2_b32 v{54+i}, v{48+i}, v{44+i} offset0:0 offset1:1
    """)
A(f"""
s_mov_b64 exec, -1
v_lshl_add_u32 v12, v1, 4, s57
v_lshlrev_b32 v13, 4, v1
s_mul_i32 s56, s2, {REC_STRIDE}
s_add_u32 s56, s56, {WS_REC}
{RA(56)}
s_add_u32 s57, s56, 7168
v_cmp_gt_u32 vcc, 334, v1
""")
lsync(C_S3)
ts(3); spot()
A(f"""
ds_read_b128 v[84:87], v12
ds_read_b128 v[88:91], v12 offset:7168
v_lshl_or_b32 v80, v64, 16, v76
v_lshl_or_b32 v81, v65, 16, v77
v_lshl_or_b32 v82, v66, 16, v78
v_lshl_or_b32 v83, v67, 16, v79
s_waitcnt lgkmcnt(1)
buffer_store_dwordx4 v[84:87], v13, s[44:47], s56 offen {SC}
s_cbranch_vccz L_nost2
s_mov_b64 exec, vcc
s_waitcnt lgkmcnt(0)
buffer_store_dwordx4 v[88:91], v13, s[44:47], s57 offen {SC}
s_branch L_st3
L_nost2:
buffer_store_dwordx4 v[80:83], v14, s[44:47], s99 offen {SC}
L_st3:
s_mov_b64 exec, 1
s_waitcnt vmcnt(0) lgkmcnt(0)
ds_add_rtn_u32 v15, v42, v10 offset:{C_REC}
s_mov_b64 exec, -1
s_waitcnt lgkmcnt(0)
v_readfirstlane_b32 s58, v15
s_cmp_lg_u32 s58, 6
s_cbranch_scc1 L_B0
""")
signal(0, 13, 14, 56)
A("s_branch L_B0")
spot(True)
A(f"L_W15cont:\ns_mov_b64 exec, -1\nv_lshlrev_b32 v1, 4, v0\nv_mov_b32 v{Dd(2)}, 0\ns_mov_b32 s28, s10\ns_mov_b32 s29, s11\ns_mov_b32 s32, s8\ns_mov_b32 s33, s9")
common()
ts(0)
snap()
A(f"""
{RA(98)}
s_setprio {OPT['LPRIO']}
s_mov_b32 s56, {NLOG2E}
s_mov_b32 s57, {NLOG2E}
s_waitcnt vmcnt(0)
v_add_u32 v53, 32, v53
v_lshlrev_b32 v4, 16, v36
v_and_b32 v5, s26, v36
v_lshlrev_b32 v6, 16, v37
v_and_b32 v7, s26, v37
v_lshlrev_b32 v32, 16, v38
v_and_b32 v33, s26, v38
v_lshlrev_b32 v34, 16, v39
v_and_b32 v35, s26, v39
v_pk_mul_f32 v[4:5], v[4:5], s[56:57]
v_pk_mul_f32 v[6:7], v[6:7], s[56:57]
v_pk_mul_f32 v[32:33], v[32:33], s[56:57]
v_pk_mul_f32 v[34:35], v[34:35], s[56:57]
ds_write_b128 v1, v[4:7] offset:{CW}
ds_write_b128 v1, v[32:35] offset:{CB}
s_mov_b64 exec, 0xffffffff
ds_write_b32 v23, v53 offset:{TGT}
""")
A("L_B0:\ns_mov_b64 exec, -1")
ts(4); spot()
A(f"""
v_and_b32 v19, 1, v0
v_lshlrev_b32 v19, 1, v19
s_movk_i32 s57, {REC_STRIDE}
v_mul_u32_u24 v10, s57, v27
v_lshl_add_u32 v10, v19, 3, v10
""")
prep()
A("s_cmp_eq_u32 s3, 15\ns_cbranch_scc1 L_w15b")
lds_spin(C_GO, 57, "s_cmp_lg_u32 s57, 0", "L_goseen", slp=2)
A(f"""
L_goseen:
s_cmp_eq_u32 s57, 1
s_cbranch_scc1 L_offok
L_B0_to:
s_mov_b64 exec, -1
""")
lds_or(C_ABORT, 2)
A("s_mov_b32 s63, 0\ns_branch L_B1done")
spot(True)
A("L_w15b:")
srd(28, 12, 257*512)
A(f"""
v_lshrrev_b32 v16, 2, v0
v_lshlrev_b32 v16, 9, v16
v_lshrrev_b32 v17, 5, v0
v_lshlrev_b32 v17, 1, v17
v_and_b32 v18, 3, v0
v_xor_b32 v17, v17, v18
v_lshl_add_u32 v16, v17, 4, v16
""")
WBM = OPT.get('WBM', 2)
if WBM == 2: lds_spin(C_S3, 57, "s_cmp_ge_u32 s57, 7", "L_wb0", slp=1)
if WBM == 3: lds_spin(C_X, 57, "s_cmp_ge_u32 s57, 4", "L_wb0", slp=1)
if WBM != 2: A("s_setprio 0")
A(f"""
L_wb0:
s_sleep {OPT['WBD']}
s_mov_b32 s56, 65536
s_mov_b32 s57, {QB+8192}
L_wb1:
s_mov_b32 m0, s57
s_mov_b32 s58, s56
""")
for i in range(6):
    A("buffer_load_dwordx4 v16, s[28:31], s58 offen lds")
    if i < 5: A("s_add_u32 m0, m0, 1024\ns_add_u32 s58, s58, 8192")
A(f"""
s_add_u32 s56, s56, 64
s_add_u32 s57, s57, {QBLK}
s_cmp_lt_u32 s56, {65536+512}
s_cbranch_scc1 L_wb1
s_setprio {OPT['LPRIO']}
s_waitcnt vmcnt(0)
""")
lds_or(C_WB, 1)
ts(23)
lds_spin(C_REC, 57, "s_cmp_ge_u32 s57, 7", "L_own", slp=2)
A("L_own:")
if OPT['PDELAY']: A(f"s_sleep {OPT['PDELAY']}")
ts(24); spot()
A(f"""
s_mov_b64 exec, 0xff
s_mov_b32 s58, 0
L_offp:
buffer_load_dword v18, v52, s[44:47], s23 offen sc1
s_add_u32 s58, s58, 1
s_waitcnt vmcnt(0)
v_cmp_ne_u32 vcc, v18, v53
""")
if OPT['FORCE_RECOV'] != 4: A("s_cbranch_vccz L_go\ns_mov_b64 exec, vcc")
A(f"""
s_sleep {SLP}
s_cmp_lt_u32 s58, {2 if OPT['FORCE_RECOV'] == 4 else POLLMAX}
s_cbranch_scc1 L_offp
""")
lds_or(C_GO, 2)
A("s_branch L_B0_to\nL_go:")
lds_or(C_GO, 1)
if TS: A("v_writelane_b32 v41, s58, 40")
A("s_mov_b64 exec, -1")
A("L_offok:\nbuffer_load_dword v18, v25, s[44:47], s98 offen sc1")
ts(5); spot()
A("s_waitcnt vmcnt(0)")
ts(6); spot()
A(f"""
v_and_b32 v16, 0xffff, v18
v_lshrrev_b32 v11, 16, v18
v_lshl_add_u32 v10, v16, 3, v10
v_cmp_lt_u32 vcc, 24, v11
v_sub_u32 v11, v11, v19
{f's_add_u32 s56, s1, {WS_REC}' if ROT else f's_mov_b32 s56, {WS_REC}'}
s_mov_b32 s63, 0
""")
for i in range(6):
    m = 72+4*i
    A(f"""
    v_cmp_lt_i32 s[{m}:{m+1}], {4*i}, v11
    s_cmp_eq_u64 s[{m}:{m+1}], 0
    s_cbranch_scc1 L_ldone
    s_mov_b64 exec, s[{m}:{m+1}]
    buffer_load_dwordx4 v[{Nn(i)}:{Nn(i)+3}], v10, s[44:47], s56 offen offset:{32*i} sc1
    v_cmp_lt_i32 s[{m+2}:{m+3}], {4*i+1}, v11
    s_add_u32 s63, s63, 1
    """)
A(f"""
L_ldone:
s_mov_b64 exec, -1
s_cbranch_vccz L_noovf
""")
lds_or(C_ABORT, 1)
A(f"""
L_noovf:
s_lshl_b32 s57, s51, 7
v_mov_b32 v16, 0x41041
s_waitcnt vmcnt(0)
""")
ts(7)
spot()
for i in range(6):
    A(f"s_cmp_le_u32 s63, {i}\ns_cbranch_scc1 L_B1done")
    for j in range(2):
        d1 = Nn(i)+2*j+1; ad = Dd(i)+2*j; rk = ad+1; u = 20+j; m = 72+4*i+2*j
        A(f"""
        s_mov_b64 exec, s[{m}:{m+1}]
        v_subrev_u32 v{ad}, s57, v{d1}
        v_lshlrev_b32 v{u}, v{d1}, v16
        v_bfe_u32 v{ad}, v{ad}, 5, 9
        ds_add_rtn_u32 v{rk}, v{ad}, v{u} offset:{KEY}
        """)
A("L_B1done:\ns_mov_b64 exec, -1\ns_setprio 0\ns_waitcnt lgkmcnt(0)")
ts(8); spot()
bar()
ts(9); spot()
A(f"""
s_mov_b32 s57, {NL}
v_mov_b32 v20, 0
s_cmp_lg_u32 s3, 15
s_cbranch_scc1 L_nopre
s_mov_b64 exec, 0xff00
buffer_load_dword v54, v52, s[44:47], s23 offen sc1
L_nopre:
""")
for i in range(6):
    A(f"s_cmp_le_u32 s63, {i}\ns_cbranch_scc1 L_sc2")
    for j in range(2):
        ad = Dd(i)+2*j; rk = ad+1; m = 72+4*i+2*j; F = 4+2*i+j
        A(f"""
        s_mov_b64 exec, s[{m}:{m+1}]
        ds_read_b32 v{F}, v{ad} offset:{KEY}
        v_max_u32 v20, v20, v{rk}
        v_mad_u32_u24 v{ad}, v{ad}, {NCAP}, s57
        """)
A("L_sc2:\ns_mov_b64 exec, -1\n;@spot\ns_waitcnt lgkmcnt(0)")
for i in range(6):
    A(f"s_cmp_le_u32 s63, {i}\ns_cbranch_scc1 L_sc3")
    for j in range(2):
        w0 = Nn(i)+2*j; d1 = w0+1; ad = Dd(i)+2*j; rk = ad+1; m = 72+4*i+2*j; F = 4+2*i+j
        A(f"""
        s_mov_b64 exec, s[{m}:{m+1}]
        v_sub_u32 v{F}, v{F}, v{rk}
        v_lshl_add_u32 v{F}, v{F}, 6, v{rk}
        v_bfe_u32 v{F}, v{F}, v{d1}, 6
        v_lshl_add_u32 v{F}, v{F}, 2, v{ad}
        ds_write_b32 v{F}, v{w0}
        """)
A(f"""
L_sc3:
s_mov_b64 exec, -1
v_cmp_le_u32 vcc, {hex(NCAP << 26)}, v20
s_cbranch_vccz L_C2
""")
lds_or(C_ABORT, 1)
A("s_branch L_C2")
spot(True)

A(f"""
L_Gcont:
;@hopG
L_Gback:
s_mov_b64 exec, -1
s_lshl_b32 s56, s3, 6
v_add_u32 v1, s56, v5
v_and_b32 v3, 3, v0
s_mul_i32 s59, s3, {QBLK}
s_add_u32 s59, s59, {QB}
s_mov_b32 s23, 0
{f'ds_read_b32 v24, v42 offset:{C_SLOT}' if ROT else ''}
""")
common()
def wdma(base, n=8, ldsoff=0):
    A(f"s_add_u32 m0, s59, {ldsoff}\ns_mov_b32 s56, {base}")
    for i in range(n):
        A(f"buffer_load_dwordx4 v1, s[28:31], s56 offen lds")
        if i < n-1: A("s_add_u32 m0, m0, 1024\ns_add_u32 s56, s56, 8192")
ts(21)
prep()
GSL = f's_waitcnt lgkmcnt(0)\nv_readfirstlane_b32 s1, v24\n{RA(60)}\n{RA(34)}' if ROT else ''
A(f"""
v_lshrrev_b32 v4, 4, v0
v_bfe_u32 v5, v0, 2, 2
v_lshl_add_u32 v5, v4, 3, v5
v_lshlrev_b32 v2, 6, v5
v_lshl_add_u32 v2, v3, 3, v2
v_and_b32 v5, 1, v4
v_lshl_add_u32 v2, v5, 5, v2
v_add_u32 v2, s59, v2
v_xor_b32 v3, 32, v2
v_and_b32 v5, 15, v0
v_xor_b32 v6, v4, v5
v_lshlrev_b32 v6, 4, v6
v_lshl_add_u32 v16, v5, 8, v6
v_add_u32 v16, {XB}, v16
v_xor_b32 v17, 64, v16
v_xor_b32 v18, 0x80, v16
v_xor_b32 v19, 0xc0, v16
;@spot
s_add_u32 s60, s49, 15
s_and_b32 s60, s60, -16
s_sub_u32 s61, s60, s49
v_add_u32 v7, s61, v5
v_and_b32 v6, 15, v7
v_xor_b32 v6, v4, v6
v_lshlrev_b32 v6, 4, v6
v_lshl_add_u32 v20, v7, 8, v6
v_add_u32 v20, {XB}, v20
v_xor_b32 v21, 64, v20
v_xor_b32 v22, 0x80, v20
v_xor_b32 v23, 0xc0, v20
v_lshlrev_b32 v6, 9, v5
v_lshl_add_u32 v6, v4, 4, v6
s_lshl_b32 s56, s3, 6
v_add_u32 v6, s56, v6
v_mul_u32_u24 v7, {QROW}, v5
v_lshl_add_u32 v7, v4, 5, v7
s_and_b32 s56, s3, 1
s_lshl_b32 s56, s56, 4
s_and_b32 s57, s3, 2
s_lshl_b32 s57, s57, 6
s_add_u32 s56, s56, s57
s_add_u32 s56, s56, s59
v_add_u32 v7, s56, v7
;@spot
s_mov_b32 s32, s24
s_mov_b32 s33, s25
s_add_u32 s34, s50, {15+1}
s_and_b32 s34, s34, -16
s_mov_b32 s35, 0x00020000
s_mov_b32 s92, {NLOG2E}
s_mov_b32 s93, {NLOG2E}
s_lshr_b32 s61, s60, 4
s_sub_u32 s61, 0, s61
s_and_b32 s61, s61, 3
s_lshl_b32 s60, s60, 9
s_add_u32 s60, s60, {PB0}
{GSL}
""".replace(f"s_add_u32 s34, s50, {15+1}\ns_and_b32 s34, s34, -16", f"s_add_u32 s34, s50, 15\ns_and_b32 s34, s34, -16\ns_lshl_b32 s34, s34, 9\ns_add_u32 s34, s34, {PB0}"))
for i in range(7):
    A(f"s_lshl_b32 s{64+i}, s61, 12\ns_lshl_b32 s{84+i}, s61, 13\ns_add_u32 s{84+i}, s{84+i}, s60")
    if i < 6: A("s_add_u32 s61, s61, 4\ns_sub_u32 s56, s61, 7\ns_cselect_b32 s61, s61, s56")
ts(22); spot()
AF = 96; BFQ = ((44, 48, 52, 56), (68, 80, 88, 92)); ACC = (8, 24); PK = (8, 24, Nn(0), Dd(0), Nn(1), Dd(1), Nn(2))
PAV = Dd(2)
def afrags(offs=(0, 2048, 4096, 6144)):
    for s in range(4):
        for a in range(2):
            for hf in range(2):
                r = AF + a*16 + s*4 + hf*2
                A(f"ds_read_b64_tr_b16 v[{r}:{r+1}], v{2+a} offset:{offs[s]+256*hf}")
def bfrQ(t):
    for s in range(4):
        r = BFQ[t & 1][s]
        A(f"ds_read_b128 v[{r}:{r+3}], v{16+s} offset:{4096*t}")
def bfrP(t):
    for s in range(4):
        r = BFQ[t & 1][s]
        A(f"v_add_u32 v{4+(s&1)}, s{64+t}, v{20+s}\nds_read_b128 v[{r}:{r+3}], v{4+(s&1)}")
def gemm(bfr, post):
    for t in range(7):
        spot()
        if t < 6: bfr(t+1); A("s_waitcnt lgkmcnt(4)")
        else: A("s_waitcnt lgkmcnt(0)")
        for s in range(4):
            for a in range(2):
                c = ACC[t & 1] + 4*a; ar = AF + a*16 + s*4; br = BFQ[t & 1][s]
                A(f"v_mfma_f32_16x16x32_bf16 v[{c}:{c+3}], v[{ar}:{ar+3}], v[{br}:{br+3}], " + ("0" if s == 0 else f"v[{c}:{c+3}]"))
        if t > 0: post(t-1)
    post(6)
def pst(t, av=6):
    o = PK[t]
    A(f"buffer_store_dwordx4 v[{o}:{o+3}], v{av}, s[32:35], s{84+t} offen {SC}")
def postP(t):
    c = ACC[t & 1]; o = PK[t]
    for i in range(4): A(f"v_pk_mul_f32 v[{c+2*i}:{c+2*i+1}], v[{c+2*i}:{c+2*i+1}], s[92:93]")
    for i in range(4): A(f"v_cvt_pk_bf16_f32 v{o+i}, v{c+2*i}, v{c+2*i+1}")
    if t < EP: pst(t)
    if OPT.get('TSG') and t in (0, 2): ts(32 + t//2)
def postQ(t):
    c = ACC[t & 1]
    if t == 6: A("s_mov_b32 exec_lo, 0x00030003\ns_mov_b32 exec_hi, 0x00030003")
    A(f"ds_write_b128 v7, v[{c}:{c+3}] offset:{2304*t}\nds_write_b128 v7, v[{c+4}:{c+7}] offset:{2304*t+16}")
    if t == 6: A("s_mov_b64 exec, -1")
    if ALL and EP + t < 7: pst(EP + t)
    if t == OPT['PUBT']: pubA()
A(f"""
s_add_u32 s63, s54, 1
s_lshl_b32 s63, s63, 3
v_mov_b32 v4, 1
s_mov_b64 exec, 1
s_waitcnt vmcnt(0)
ds_add_u32 v42, v4 offset:{C_X}
s_mov_b64 exec, -1
""")
ts(2); spot()
lds_spin(C_X, 56, "s_cmp_ge_u32 s56, s63", "L_xok")
A("L_xok:")
ts(3); spot()
afrags()
bfrP(0)
A("s_cmp_eq_u32 s54, 0\ns_cbranch_scc1 L_nowb")
wdma(65536, 6, 8192)
A("L_nowb:\ns_waitcnt lgkmcnt(4)")
if OPT.get('TSG'): ts(30)
wdma(65536+6*8192, 2)
if OPT.get('TSG'): ts(31)
gemm(bfrP, postP)
ts(4); spot()
lds_spin(C_WB, 56, "s_cmp_lg_u32 s56, 0", "L_wbok")
A(f"L_wbok:\ns_waitcnt vmcnt({EP})")
ts(5); spot()
afrags((8192, 10240, 12288, 0)); bfrQ(0)
def pubA():
    A(f"""
    s_cmp_lg_u32 s54, 0
    s_cbranch_scc1 L_nopub
    s_mov_b64 exec, 1
    v_mov_b32 v4, 1
    s_waitcnt vmcnt(0)
    ds_add_rtn_u32 v5, v42, v4 offset:{C_PA}
    s_waitcnt lgkmcnt(0)
    v_readfirstlane_b32 s57, v5
    s_cmp_lg_u32 s57, 7
    s_cbranch_scc1 L_nopub
    """)
    signal(1, 5, 4, 56)
    A("L_nopub:\ns_mov_b64 exec, -1")
    ts(25)
if OPT['PUBT'] < 0: pubA()
gemm(bfrQ, postQ)
ts(6); spot()
A("s_cmp_eq_u32 s54, 0\ns_cbranch_scc1 L_defer")
for t in range(2, 7):
    if not ALL: pst(t)
A("s_branch L_recovG")
spot(True)
A(f"""
L_defer:
s_cmp_eq_u32 s64, 0
s_cselect_b32 s27, {0 if ALL else 2}, {0 if ALL else 1}
v_mov_b32 v{PAV}, v6
v_and_b32 v9, 3, v0
v_mul_u32_u24 v9, 112, v9
v_mov_b32 v14, 0
v_mov_b32 v15, 0
s_waitcnt lgkmcnt(0)
""")
ts(8); spot()
bar()
ts(9); spot()
A(f"ds_read_b32 v10, v40 offset:{KEY}")
for q in range(7): A(f"ds_read_b128 v[{96+4*q}:{99+4*q}], v9 offset:{KEY+16*q}")
if not ALL: pst(2, PAV); pst(3, PAV)
pairs = (96, 98, 56, 60)
for q in range(7):
    spot()
    A(f"s_waitcnt lgkmcnt({6-q})")
    for i in range(4): A(f"v_cmp_gt_u32 s[{pairs[i]}:{pairs[i]+1}], v{96+4*q+i}, v10")
    for i in range(4): A(f"v_addc_co_u32 v{14+(i&1)}, vcc, 0, v{14+(i&1)}, s[{pairs[i]}:{pairs[i]+1}]")
A("v_add_u32 v15, v14, v15")
dpp_add(15, "quad_perm:[1,0,3,2]", "row_mask:0xf bank_mask:0xf")
dpp_add(15, "quad_perm:[2,3,0,1]", "row_mask:0xf bank_mask:0xf")
A(f"""
v_lshlrev_b32 v15, 2, v15
ds_write_b32 v15, v10 offset:{SORT}
L_C2:
s_waitcnt lgkmcnt(0)
""")
ts(10); spot()
bar()
ts(11); spot()
MSK = (1 << 12) | (1 << 13) | (1 << 14) | (1 << 18)
LOV = sum(1 << s for s in range(3, 15)) | (1 << 18)
A(f"""
L_B4:
ds_read_b64 v[4:5], v32 offset:{SORT}
ds_read_b32 v43, v42 offset:{C_ABORT}
ds_read_b32 v36, v36 offset:{SORT}
ds_read_b32 v37, v37 offset:{SORT}
ds_read_b32 v38, v38 offset:{SORT}
s_mul_i32 s59, s3, {LW}
s_add_u32 s59, s59, {WL}
v_lshl_add_u32 v6, v0, 2, s59
v_mov_b32 v8, 0
v_mov_b32 v{VN}, 0
ds_write2st64_b32 v6, v8, v8 offset0:0 offset1:1
s_cmp_eq_u32 s27, 0
s_cbranch_scc1 L_nst1
""")
pst(4, PAV)
A("s_cmp_lg_u32 s27, 2\ns_cbranch_scc1 L_nst1")
pst(5, PAV)
A(f"""
L_nst1:
;@spot
s_mov_b32 s96, {hex(MSK)}
s_mov_b32 s97, 0
s_cmp_eq_u32 s3, 0
s_movk_i32 s98, 0x7fff
s_cselect_b32 s98, {hex(0x7fff | 1 << 15 | 1 << 18)}, s98
s_mov_b32 s99, 0
s_movk_i32 s60, {-NCAP}
s_movk_i32 s61, 8193
s_waitcnt lgkmcnt(4)
v_cndmask_b32 v7, v5, v4, s[96:97]
v_bfe_u32 v9, v4, v33, 6
v_bfe_u32 v11, v4, v34, 6
v_bfe_u32 v12, v5, v34, 6
v_bfe_u32 v10, v7, v33, 6
s_mov_b64 exec, {hex(LOV)}
v_min_u32 v8, v11, v12
s_mov_b64 exec, s[98:99]
v_min_u32 v9, v9, v10
v_sub_u32 v{VN}, v9, v8
s_mov_b64 exec, -1
v_mov_b32 v10, v{VN}
v_and_b32 v11, 127, v4
v_and_b32 v12, 127, v7
""")
dpp_add(10, "row_shr:1")
A("v_lshl_add_u32 v11, v12, 13, v11\nv_readfirstlane_b32 s55, v43")
dpp_add(10, "row_shr:2")
A(f"v_mad_i32_i24 v11, v11, s60, v35\nv_cmp_lt_u32 vcc, 0, v{VN}")
dpp_add(10, "row_shr:4")
A(f"v_lshl_add_u32 v13, v0, 3, s59\nv_lshrrev_b32 v1, 5, v0")
dpp_add(10, "row_shr:8")
A(f"v_mul_u32_u24 v1, {HL}, v1\nv_add_u32 v1, s59, v1")
dpp_add(10, "row_bcast:15", "row_mask:0xa bank_mask:0xf")
A(f"""
v_sub_u32 v12, v10, v{VN}
v_sub_u32 v9, v9, v10
v_readlane_b32 s58, v10, 20
v_lshl_add_u32 v12, v12, 2, s59
v_mad_i32_i24 v11, v9, s61, v11
s_sub_u32 s56, s58, 1
s_cmp_lt_u32 s56, {HL//8 - R}
s_cbranch_scc1 L_capok
s_or_b32 s55, s55, 4
L_capok:
;@spot
""")
if OPT['FORCE_SAFE']: A("s_or_b32 s55, s55, 1")
A(f"""
s_cmp_lg_u32 s55, 0
s_cbranch_scc1 L_nolist
s_mov_b64 exec, vcc
ds_write_b32 v12, v11
s_mov_b64 exec, -1
ds_read2st64_b32 v[10:11], v6 offset0:0 offset1:1
v_min_u32 v9, s56, v0
s_mov_b32 s57, {NL - 4*BIAS}
v_lshl_add_u32 v9, v9, 2, s57
s_movk_i32 s60, 512
s_waitcnt lgkmcnt(0)
""")
def fill(v, pm, ex=None, off=0):
    for c in ("row_shr:1", "row_shr:2", "row_shr:4", "row_shr:8"): dpp("v_max_u32", v, c)
    dpp("v_max_u32", v, "row_bcast:15", "row_mask:0xa bank_mask:0xf")
    dpp("v_max_u32", v, "row_bcast:31", "row_mask:0xc bank_mask:0xf")
    if ex: A(f"s_mov_b64 exec, {ex}")
    A(f"""
    v_and_b32 v14, 0x1fff, v{v}
    v_bfe_u32 v15, v{v}, 13, 13
    v_lshl_add_u32 v14, v14, 2, v{pm}
    v_lshl_add_u32 v15, v15, 2, v{pm}
    ds_read_b32 v14, v14
    ds_read_b32 v15, v15
    s_waitcnt lgkmcnt(1)
    v_mad_u32_u16 v16, v14, s60, s60
    v_and_b32 v14, s26, v14
    ds_write2_b32 v13, v16, v14 offset0:{off} offset1:{off+2*R+1}
    s_waitcnt lgkmcnt(1)
    v_mad_u32_u16 v17, v15, s60, 0
    v_and_b32 v15, s26, v15
    ds_write2_b32 v13, v17, v15 offset0:{off+HL//4} offset1:{off+HL//4+2*R+1}
    """)
fill(10, 9)
A(f"s_cmp_gt_u32 s58, {64-R}\ns_cbranch_scc1 L_fill2\nL_filled:\nL_nolist:")
A(f"""
ds_read_b128 v[8:11], v1
ds_read_b128 v[12:15], v1 offset:16
ds_read_b128 v[16:19], v1 offset:32
ds_read_b128 v[20:23], v1 offset:48
""")
ts(12); spot()
A(f"""
s_movk_i32 s60, {-QROW}
v_and_b32 v36, 127, v36
v_and_b32 v37, 127, v37
v_and_b32 v38, 127, v38
v_mad_i32_i24 v36, v36, s60, v39
v_mad_i32_i24 v37, v37, s60, v39
v_mad_i32_i24 v38, v38, s60, v39
s_bitcmp1_b32 s55, 1
s_cbranch_scc1 L_recover
s_cmp_lg_u32 s3, 15
s_cbranch_scc1 L_pfdone
s_cmp_lg_u32 s54, 0
s_cbranch_scc1 L_pfdone
s_mov_b32 s56, 0
s_mov_b64 exec, 0xff00
v_mov_b32 v55, 1
L_pfp:
s_waitcnt vmcnt(0)
v_cmp_ne_u32 vcc, v54, v53
""")
if OPT['FORCE_RECOV'] != 1: A("s_cbranch_vccz L_pfok\ns_mov_b64 exec, vcc")
A(f"""
buffer_load_dword v54, v52, s[44:47], s23 offen sc1
s_add_u32 s56, s56, 1
s_cmp_lt_u32 s56, {2 if OPT['FORCE_RECOV'] == 1 else POLLMAX}
s_cbranch_scc1 L_pfp
v_mov_b32 v55, 2
L_pfok:
ds_write_b32 v42, v55 offset:{C_PFA}
s_mov_b64 exec, -1
""")
if TS: A("v_writelane_b32 v41, s56, 41")
A("L_pfdone:")
lds_spin(C_PFA, 57, "s_cmp_lg_u32 s57, 0", "L_pfseen", tmp=56)
A("L_pfseen:\ns_cmp_lg_u32 s57, 1\ns_cbranch_scc1 L_recover")
ts(13); spot()
def gather(p, idx):
    if OPT.get('NOG'): return
    if OPT.get('SAFEG'): A(f"v_and_b32 v{idx}, 0x3ffffff, v{idx}")
    A(f"buffer_load_dwordx4 v[{RING[p]}:{RING[p]+3}], v{idx}, s[40:43], {'s1' if ROT else '0'} offen {SC}")
A("s_cmp_lg_u32 s55, 0\ns_cbranch_scc1 L_noring")
for p, idx in enumerate((8, 10, 12, 14)): gather(p, idx)
A("s_branch L_ringd\nL_noring:\ns_waitcnt vmcnt(0)\nL_ringd:")
if OPT.get('NOG'):
    for p in range(4): A(f"v_mov_b64 v[{RING[p]}:{RING[p]+1}], 0\nv_mov_b64 v[{RING[p]+2}:{RING[p]+3}], 0")
spot()
for k in range(NS): A(f"ds_read_b128 v[{Q(k)}:{Q(k)+3}], v{36+(k>>1)} offset:{16*(k&1)}")
A(f"""
v_lshrrev_b32 v32, 26, v4
v_lshrrev_b32 v33, 26, v5
v_and_b32 v4, 127, v4
v_and_b32 v5, 127, v5
v_lshl_or_b32 v32, v32, 8, v4
v_lshl_or_b32 v33, v33, 8, v5
s_mul_i32 s80, s3, 6
s_min_u32 s56, s3, 1
s_lshl1_add_u32 s80, s56, s80
s_lshl_b32 s56, s80, 2
v_min_u32 v34, 3, v0
v_lshl_add_u32 v34, v34, 3, s56
s_and_b32 s98, s98, 0x8007
s_mov_b64 exec, s[98:99]
ds_write_b64 v34, v[32:33] offset:{ROWI}
s_mov_b64 exec, -1
v_and_b32 v34, 31, v0
v_lshlrev_b32 v34, 5, v34
s_cmp_lg_u32 s3, 0
s_cbranch_scc1 L_noq3
v_readlane_b32 s56, v4, 15
v_readlane_b32 s57, v5, 15
v_mov_b32 v35, s56
s_mov_b32 exec_lo, 0
v_mov_b32 v35, s57
s_mov_b32 exec_lo, -1
v_mad_i32_i24 v35, v35, s60, v39
ds_read_b128 v[{Nn(4)}:{Nn(4)+3}], v35
ds_read_b128 v[{Dd(4)}:{Dd(4)+3}], v35 offset:16
L_noq3:
;@spot
ds_read_b128 v[8:11], v34 offset:{CB}
ds_read_b128 v[12:15], v34 offset:{CB+16}
ds_read_b128 v[{WA}:{WA+3}], v34 offset:{CW}
ds_read_b128 v[{WB}:{WB+3}], v34 offset:{CW+16}
v_and_b32 v35, 3, v0
v_lshlrev_b32 v35, 4, v35
v_mov_b32 v36, 0x3f80
v_mov_b32 v37, 0
v_lshlrev_b64 v[2:3], v35, v[36:37]
s_mov_b32 s60, 1.0
s_mov_b32 s61, 1.0
s_mov_b32 s56, {NLOG2E}
s_mov_b32 s57, {NLOG2E}
s_mov_b32 s71, 0
s_mov_b32 s82, 0
s_mov_b32 s83, 0
""")
srd(28, 16, 65536)
LATE = list(PK[2:]) + [PAV, Nn(4), Dd(4)]
initnd([r for r in ALLND if r not in LATE])
A("s_waitcnt lgkmcnt(0)")
ts(28); spot()
bar()
ts(29); spot()
def qscale(r, a):
    b = 8 + 4*a
    A(f"v_pk_fma_f32 v[{r}:{r+1}], v[{r}:{r+1}], s[56:57], v[{b}:{b+1}]\nv_pk_fma_f32 v[{r+2}:{r+3}], v[{r+2}:{r+3}], s[56:57], v[{b+2}:{b+3}]")
for k in range(NS): qscale(Q(k), k & 1)
A(f"""
s_cmp_lg_u32 s3, 0
s_cbranch_scc1 L_noq3b
s_mov_b32 s58, {Q3P}
v_lshl_add_u32 v35, v0, 4, s58
""")
qscale(Nn(4), 0); qscale(Dd(4), 1)
A(f"""
ds_write_b128 v35, v[{Nn(4)}:{Nn(4)+3}]
ds_write_b128 v35, v[{Dd(4)}:{Dd(4)+3}] offset:1024
L_noq3b:
;@spot
s_cmp_eq_u32 s27, 0
s_cbranch_scc1 L_nopark
s_mov_b64 exec, 1
v_mov_b32 v43, 1
s_waitcnt vmcnt({0 if OPT.get('NOG') else 4})
ds_add_rtn_u32 v32, v42, v43 offset:{C_PB}
s_mov_b64 exec, -1
s_lshl_b32 s81, s3, 11
s_add_u32 s81, s81, {PARK}
v_lshl_add_u32 v33, v0, 4, s81
""")
for i in range(2): A(f"ds_write_b128 v33, v[{PK[5+i]}:{PK[5+i]+3}] offset:{1024*i}")
A(f"""
s_waitcnt lgkmcnt(2)
v_readfirstlane_b32 s57, v32
s_cmp_lg_u32 s57, 7
s_cbranch_scc1 L_nopark
""")
signal(2, 32, 43, 56)
A(f"""
s_mov_b64 exec, -1
L_nopark:
;@spot
""")
initnd(LATE)
A(f"""
s_waitcnt lgkmcnt(0)
s_cmp_lg_u32 s55, 0
s_cbranch_scc1 L_safe0
s_setprio {OPT['PRIO'][0]}
""")
ts(14); spot()
if TS: A("s_memtime s[100:101]\ns_waitcnt lgkmcnt(0)\nv_writelane_b32 v41, s100, 46")
SEL = "op_sel:[1,0,0] op_sel_hi:[1,1,1]"
TT = (8, 32)
def H1a(k, p):
    q = Q(k); a = k & 1; pr = 16 + 2*p; t = TT[a]; w = (WA, WB)[a]
    if a == 0 and p % 2 == 0: A("s_waitcnt lgkmcnt(1)")
    A(f"""
    v_pk_fma_f32 v[{t}:{t+1}], v[{pr}:{pr+1}], v[{w}:{w+1}], v[{q}:{q+1}] {SEL}
    v_pk_fma_f32 v[{t+2}:{t+3}], v[{pr}:{pr+1}], v[{w+2}:{w+3}], v[{q+2}:{q+3}] {SEL}
    """)
def H1b(k, p):
    a = k & 1; qd = 16 + 4*(p >> 1); pr = 16 + 2*p; rg = RING[p] + 2*a; t = TT[a]
    if a == 0: A(f"s_waitcnt vmcnt({R-1})\ns_sub_u32 s56, s56, 1")
    A(f"v_mfma_f32_4x4x4_16b_bf16 v[{t}:{t+3}], v[2:3], v[{rg}:{rg+1}], v[{t}:{t+3}]")
    if a == 1:
        gather(p, pr)
        if p % 2 == 1: A(f"ds_read_b128 v[{qd}:{qd+3}], v1 offset:{64+16*(p>>1)}")
        if p == 3: A("v_add_u32 v1, 32, v1")
def H2a(k):
    t = TT[k & 1]
    if OPT.get('NOV'): return
    A(f"v_exp_f32 v12, v{t}\nv_exp_f32 v13, v{t+1}")
def H2b(k):
    n, d = Nn(k), Dd(k); t = TT[k & 1]
    if OPT.get('NOV'): return
    A(f"""
    v_exp_f32 v14, v{t+2}
    v_exp_f32 v15, v{t+3}
    v_pk_fma_f32 v[{t}:{t+1}], v[{t}:{t+1}], v[{d}:{d+1}], v[{n}:{n+1}]
    v_pk_fma_f32 v[{t+2}:{t+3}], v[{t+2}:{t+3}], v[{d+2}:{d+3}], v[{n+2}:{n+3}]
    v_pk_fma_f32 v[{d}:{d+1}], v[{d}:{d+1}], v[12:13], v[{d}:{d+1}]
    v_pk_fma_f32 v[{n}:{n+1}], v[{n}:{n+1}], v[12:13], v[{t}:{t+1}]
    v_pk_fma_f32 v[{d+2}:{d+3}], v[{d+2}:{d+3}], v[14:15], v[{d+2}:{d+3}]
    v_pk_fma_f32 v[{n+2}:{n+3}], v[{n+2}:{n+3}], v[14:15], v[{t+2}:{t+3}]
    """)
def H2(k): H2a(k); H2b(k)
HK = OPT['HOOK']; PR = OPT['PRIO']
def wrap(p):
    A(f"""
    L_E3_{p}:
    s_cmp_lg_u32 s82, 0
    s_cbranch_scc1 L_re{p}
    L_W_{p}:
    s_mov_b32 s57, {p}
    """)
    if TS: A("s_memrealtime s[100:101]\ns_add_u32 s58, s71, 45\ns_min_u32 s58, s58, 63\ns_mov_b32 m0, s58\ns_waitcnt lgkmcnt(0)\nv_writelane_b32 v41, s100, m0")
    A(f"""
    s_cmp_eq_u32 s71, 3
    s_cbranch_scc1 L_wrap1
    s_setprio {PR[2]}
    s_cmp_eq_u32 s71, 6
    s_cbranch_scc1 L_E0_{p}
    s_setprio {PR[3]}
    s_cmp_eq_u32 s71, 9
    s_cbranch_scc1 L_E0_{p}
    s_mov_b32 exec_hi, 0
    s_cmp_eq_u32 s71, 12
    s_cbranch_scc1 L_E0_{p}
    s_cmp_eq_u32 s71, 18
    s_cbranch_scc1 L_E0_{p}
    s_mov_b32 exec_hi, -1
    s_cmp_lg_u32 s3, s83
    s_cbranch_scc1 L_flush
    s_branch L_rs{p}
    """)
    spot(True)
for p in range(4):
    for q in range(3):
        if q > 0:
            A(f"L_T{q-1}_{p}:"); H2(2*q-1)
        A(f"L_E{q}_{p}:")
        if q == HK and not ALL: A(f"s_mov_b32 s57, {p}\ns_cmp_lt_u32 s71, 9\ns_cbranch_scc1 L_hook\nL_H_{p}:")
        if q == HK and ALL: A(f"s_mov_b32 s57, {p}\ns_cmp_eq_u32 s71, {3+HK}\ns_cbranch_scc1 L_hk1\nL_H_{p}:")
        A(f"v_readlane_b32 s56, v{VN}, s71\ns_add_u32 s71, s71, 1\ns_sub_u32 s56, s56, 1\ns_cbranch_scc1 L_E{q+1}_{p}")
        H1a(2*q, p); H1a(2*q+1, p); H1b(2*q, p); H1b(2*q+1, p); H2(2*q)
        A(f"s_cbranch_scc0 L_B{q}_{(p+1)&3}\ns_branch L_T{q}_{(p+1)&3}")
        spot(True)
    A(f"L_T2_{p}:"); H2(5)
    wrap(p)
for q in range(3):
    for p in range(4):
        A(f"L_B{q}_{p}:")
        H1a(2*q, p); H1b(2*q, p); H2(2*q+1); H1a(2*q+1, p); H2a(2*q); H1b(2*q+1, p); H2b(2*q)
        A(f"s_cbranch_scc1 L_T{q}_{(p+1)&3}")
    A(f"s_branch L_B{q}_0")
    spot(True)
def chk(ty, word, n):
    force = OPT['FORCE_RECOV'] == ty
    A(f"""
    L_pf{n}:
    s_mov_b64 exec, 1
    v_mov_b32 v36, 0
    v_mov_b32 v37, 3
    ds_cmpst_rtn_b32 v43, v42, v36, v37 offset:{word}
    s_mov_b64 exec, -1
    s_mov_b32 s58, 0
    s_waitcnt lgkmcnt(0)
    v_readfirstlane_b32 s60, v43
    s_cmp_eq_u32 s60, 1
    s_cbranch_scc1 L_hkok
    s_cmp_lg_u32 s60, 0
    s_cbranch_scc1 L_pf{n}w
    """)
    caddr(38, 37, 60)
    A(f"""
    s_mov_b64 exec, {hex(0xff << (8*ty))}
    ds_read_b32 v37, v37 offset:{TGT}
    L_pf{n}p:
    buffer_load_dword v36, v38, s[44:47], s60 offen sc1
    v_mov_b32 v39, 1
    s_add_u32 s58, s58, 1
    s_waitcnt vmcnt(0) lgkmcnt(0)
    v_cmp_ne_u32 vcc, v36, v37
    """)
    if not force: A(f"s_cbranch_vccz L_pf{n}1\ns_mov_b64 exec, vcc")
    A(f"""
    s_sleep 8
    s_cmp_lt_u32 s58, {2 if force else POLLMAX}
    s_cbranch_scc1 L_pf{n}p
    v_mov_b32 v39, 2
    L_pf{n}1:
    ds_write_b32 v42, v39 offset:{word}
    s_mov_b64 exec, -1
    """)
    if TS: A(f"v_writelane_b32 v41, s58, {40+ty}")
    A(f"L_pf{n}w:")
    lds_spin(word, 60, "s_cmp_lg_u32 s60, 3", f"L_pf{n}2", slp=4)
    A(f"L_pf{n}2:")
    if TS: A(f"v_writelane_b32 v41, s58, {42+ty}")
    A("s_cmp_lg_u32 s60, 1\ns_cbranch_scc1 L_recover")
A(f"""
L_hook:
s_cmp_eq_u32 s71, {3+HK}
s_cbranch_scc1 L_hk1
s_cmp_eq_u32 s71, {6+HK}
s_cbranch_scc1 L_pfc
""")
chk(2, C_PFB, 'b')
A("s_branch L_hkok")
spot(True)
chk(3, C_PFC, 'c')
A(f"L_hkok:\nv_readlane_b32 s58, v{VN}, s71")
for k in range(HK+1, 3): A(f"s_add_u32 s61, s71, {k-HK}\nv_readlane_b32 s60, v{VN}, s61\ns_add_u32 s58, s58, s60")
A(f"s_cmp_lt_u32 s58, {R}\ns_cselect_b32 s82, 1, 0")
if OPT.get('FORCE_RE'): A("s_mov_b32 s82, 1")
A("L_hkret:")
for p in range(4): A(f"s_cmp_eq_u32 s57, {p}\ns_cbranch_scc1 L_H_{p}")
A(f"""
s_add_u32 s71, s71, 3
s_cmp_eq_u32 s71, 3
s_cbranch_scc1 L_wrap1b
s_cmp_eq_u32 s71, 6
s_cbranch_scc1 {'L_safe' if ALL else 'L_pfc'}
s_branch L_safe
L_hk1:
s_mov_b64 exec, 1
v_mov_b32 v43, 1
s_waitcnt vmcnt(0)
ds_add_u32 v42, v43 offset:{C_W2}
s_cmp_eq_u32 s27, 0
s_cbranch_scc1 L_nopubC
ds_add_rtn_u32 v36, v42, v43 offset:{C_PC}
s_waitcnt lgkmcnt(0)
v_readfirstlane_b32 s58, v36
s_cmp_lg_u32 s58, 7
s_cbranch_scc1 L_nopubC
""")
signal(3, 36, 43, 58)
A("L_nopubC:\ns_mov_b64 exec, -1")
ts(27)
A(f"""
s_branch L_hkret
L_wrap1:
s_setprio {PR[1]}
L_wrap1b:
""")
ts(26); spot()
A(f"""
v_lshrrev_b32 v37, 4, v0
v_lshlrev_b32 v38, 2, v37
v_and_b32 v39, 15, v0
v_xor_b32 v38, v38, v39
v_lshlrev_b32 v38, 4, v38
v_lshl_add_u32 v38, v37, 8, v38
s_lshl_b32 s58, s3, 12
s_add_u32 m0, s58, {QB}
""")
for i in range(4): A(f"buffer_load_dwordx4 v38, s[28:31], s58 offen offset:{1024*i} lds")
A(f"""
s_cmp_eq_u32 s27, 0
s_cbranch_scc1 L_w1r
v_lshl_add_u32 v36, v0, 4, s81
ds_read_b128 v[8:11], v36 offset:1024
ds_read_b128 v[12:15], v36
v_lshlrev_b32 v36, 9, v39
v_lshl_add_u32 v36, v37, 4, v36
s_lshl_b32 s58, s3, 6
v_add_u32 v36, s58, v36
s_waitcnt lgkmcnt(0)
buffer_store_dwordx4 v[8:11], v36, s[32:35], s90 offen {SC}
s_cmp_eq_u32 s27, 2
s_cbranch_scc1 L_w1r
buffer_store_dwordx4 v[12:15], v36, s[32:35], s89 offen {SC}
L_w1r:
""")
for p in range(4): A(f"s_cmp_eq_u32 s57, {p}\ns_cbranch_scc1 L_E0_{p}")
A("s_branch L_hk1")
spot(True)
for p in range(4):
    A(f"""
    L_rs{p}:
    v_readfirstlane_b32 s58, v1
    s_add_u32 s58, s58, {HL}
    s_mov_b32 exec_lo, 0
    v_mov_b32 v1, s58
    s_mov_b32 exec_lo, -1
    ds_read_b128 v[16:19], v1 offset:{32 if p < 2 else 64}
    ds_read_b128 v[20:23], v1 offset:48
    s_mov_b32 s81, {p}
    L_re{p}:
    ds_read2_b32 v[36:37], v1 offset0:{2*p} offset1:{2*p+2}
    ds_read2_b32 v[38:39], v1 offset0:{2*p+4} offset1:{2*p+6}
    s_mov_b32 s82, 0
    s_waitcnt lgkmcnt(0)
    """)
    for i in range(4): gather((p+i) & 3, 36+i)
    A(f"s_cmp_lt_u32 s71, 15\ns_cbranch_scc1 L_W_{p}")
    if p < 3: A("s_branch L_flush")
A("L_flush:\ns_waitcnt lgkmcnt(0)")
ts(15); spot()
if TS: A("s_memtime s[100:101]\ns_waitcnt lgkmcnt(0)\nv_writelane_b32 v41, s100, 47")
A(f"""
v_lshrrev_b32 v36, 5, v0
v_add_u32 v36, s80, v36
v_mul_u32_u24 v36, {HROW}, v36
v_bfe_u32 v37, v0, 2, 3
v_lshl_add_u32 v36, v37, 6, v36
v_and_b32 v37, 3, v0
v_lshl_add_u32 v36, v37, 3, v36
v_add_u32 v36, {HSB}, v36
s_cmp_lg_u32 s83, 0
s_cbranch_scc1 L_flush2
""")
def guard(ks, ok):
    for k in ks:
        if k == ks[0]: A(f"v_pk_mul_f32 v[32:33], v[{Nn(k)}:{Nn(k)+1}], v[{Dd(k)}:{Dd(k)+1}]\nv_pk_mul_f32 v[34:35], v[{Nn(k)+2}:{Nn(k)+3}], v[{Dd(k)+2}:{Dd(k)+3}]")
        else: A(f"v_pk_fma_f32 v[32:33], v[{Nn(k)}:{Nn(k)+1}], v[{Dd(k)}:{Dd(k)+1}], v[32:33]\nv_pk_fma_f32 v[34:35], v[{Nn(k)+2}:{Nn(k)+3}], v[{Dd(k)+2}:{Dd(k)+3}], v[34:35]")
    A(f"""
    v_pk_add_f32 v[32:33], v[32:33], v[34:35]
    v_add_f32 v32, v32, v33
    v_mov_b32 v33, 0x207
    v_cmp_class_f32 vcc, v32, v33
    s_cmp_lg_u32 s55, 0
    s_cbranch_scc1 {ok}
    """)
    if OPT['FORCE_GUARD'] == 1 and len(ks) > 2: A("s_bitcmp0_b32 s3, 0\ns_cbranch_scc1 L_safe")
    if OPT['FORCE_GUARD'] == 2 and len(ks) == 2: A("s_branch L_safe")
    A(f"s_cbranch_vccnz L_safe\n{ok}:")
def hout(k, off):
    spot()
    n, d = Nn(k), Dd(k); o = 8 + 2*(k & 1)
    for i in range(4): A(f"v_rcp_f32 v{d+i}, v{d+i}")
    A(f"""
    v_pk_mul_f32 v[{n}:{n+1}], v[{n}:{n+1}], v[{d}:{d+1}]
    v_pk_mul_f32 v[{n+2}:{n+3}], v[{n+2}:{n+3}], v[{d+2}:{d+3}]
    v_cvt_pk_bf16_f32 v{o}, v{n}, v{n+1}
    v_cvt_pk_bf16_f32 v{o+1}, v{n+2}, v{n+3}
    ds_write_b64 v36, v[{o}:{o+1}] offset:{off}
    """)
guard(list(range(NS)), "L_fl2")
spot()
for k in range(NS): hout(k, 2*HROW*(k >> 1) + 32*(k & 1))
A(f"""
s_cmp_lg_u32 s3, 0
s_cbranch_scc1 L_fl3
s_mov_b32 s58, {Q3P}
v_lshl_add_u32 v37, v0, 4, s58
ds_read_b128 v[{Q(0)}:{Q(0)+3}], v37
ds_read_b128 v[{Q(1)}:{Q(1)+3}], v37 offset:1024
s_mov_b32 s60, 1.0
s_mov_b32 s61, 1.0
s_mov_b32 s83, 1
""")
initnd([Nn(0), Dd(0), Nn(1), Dd(1)])
A("s_waitcnt lgkmcnt(0)\ns_cmp_lg_u32 s55, 0\ns_cbranch_scc1 L_safe")
for p in range(3): A(f"s_cmp_eq_u32 s81, {p}\ns_cbranch_scc1 L_E0_{p}")
A("s_branch L_E0_3")
spot(True)
A("L_flush2:")
guard([0, 1], "L_fl2b")
for k in range(2): hout(k, 2*HROW*3 + 32*k)
A("L_fl3:")
ts(16); spot()
A(f"""
s_and_b32 s60, s3, 3
s_lshr_b32 s61, s3, 2
s_lshl_b32 s59, s61, 2
v_mov_b32 v2, s59
v_mov_b32 v3, 1
s_waitcnt lgkmcnt(0)
s_mov_b64 exec, 1
ds_add_u32 v2, v3 offset:{C_G}
s_mov_b64 exec, -1
v_lshrrev_b32 v4, 4, v0
v_and_b32 v5, 15, v0
s_lshl_b32 s56, s60, 6
v_lshl_add_u32 v6, v4, 4, s56
global_load_dwordx4 v[124:127], v6, s[18:19]
v_bfe_u32 v7, v0, 2, 2
v_lshl_add_u32 v1, v4, 3, v7
v_lshlrev_b32 v1, 8, v1
v_xor_b32 v7, s60, v7
v_lshl_add_u32 v1, v7, 6, v1
v_and_b32 v7, 3, v0
v_lshl_add_u32 v1, v7, 4, v1
""")
lds_spin(C_W2, 57, "s_cmp_ge_u32 s57, 16", "L_w2ok")
A("L_w2ok:\ns_waitcnt vmcnt(1)")
spot()
for s in range(8):
    for a in range(2):
        for hf in range(2):
            r = 44 + a*32 + s*4 + hf*2
            A(f"ds_read_b64_tr_b16 v[{r}:{r+1}], v1 offset:{QB+8192*s+1024*hf+8*a}")
A(f"""
s_mul_i32 s56, s61, 24
s_min_u32 s57, s61, 1
s_lshl1_add_u32 s56, s57, s56
v_add_u32 v5, s56, v5
v_lshlrev_b32 v3, 2, v5
v_mul_u32_u24 v1, {HROW}, v5
v_lshl_add_u32 v1, v4, 4, v1
v_add_u32 v1, {HSB}, v1
s_mov_b32 s32, s20
s_mov_b32 s33, s21
s_add_u32 s34, s51, s52
s_lshl_b32 s34, s34, 8
s_mov_b32 s35, 0x00020000
s_add_u32 s59, s51, 127
s_lshl_b32 s59, s59, 8
v_add_u32 v6, s59, v6
s_cmp_eq_u32 s61, 0
s_mov_b32 s96, 0x00ff00ff
s_cselect_b32 s96, 0x03ff03ff, s96
s_mov_b32 s97, s96
s_movk_i32 s59, -256
s_mov_b32 s56, {NLN2}
""")
ts(17); spot()
lds_spin(C_G, 57, "s_cmp_ge_u32 s57, 4", "L_gok", av=2)
A("L_gok:")
ts(18)
spot()
A(f"ds_read_b32 v42, v3 offset:{ROWI}\nds_read_b32 v43, v3 offset:{ROWI+64}")
BB = (108, 8)
def rd(qg):
    for t in range(2):
        for h in range(2):
            r = BB[qg & 1] + 8*t + 4*h
            A(f"ds_read_b128 v[{r}:{r+3}], v1 offset:{16*HROW*t + 64*(2*qg+h)}")
rd(0)
for qg in range(4):
    spot()
    if qg < 3: rd(qg+1); A(f"s_waitcnt lgkmcnt(4)")
    else: A("s_waitcnt lgkmcnt(0)")
    for h in range(2):
        s = 2*qg + h
        for t in range(2):
            for a in range(2):
                c = 24 + 8*t + 4*a; ar = 44 + a*32 + s*4; br = BB[qg & 1] + 8*t + 4*h
                A(f"v_mfma_f32_16x16x32_bf16 v[{c}:{c+3}], v[{ar}:{ar+3}], v[{br}:{br+3}], " + ("0" if s == 0 else f"v[{c}:{c+3}]"))
    if qg == 0:
        for t in range(2):
            A(f"v_and_b32 v{4+t}, 127, v{42+t}\nv_lshrrev_b32 v{42+t}, 8, v{42+t}\nv_mad_i32_i24 v{4+t}, v{4+t}, s59, v6\nv_cvt_f32_u32 v{42+t}, v{42+t}")
spot()
A("s_waitcnt vmcnt(0)")
for i in range(4):
    A(f"v_lshlrev_b32 v{44+2*i}, 16, v{124+i}\nv_and_b32 v{45+2*i}, s26, v{124+i}")
for t in range(2):
    for i in range(8): A(f"v_mul_f32 v{52+8*t+i}, v{42+t}, v{44+i}")
for t in range(2):
    c = 24 + 8*t
    for i in range(8): A(f"v_fma_f32 v{c+i}, v{c+i}, s56, v{52+8*t+i}")
    for i in range(4): A(f"v_cvt_pk_bf16_f32 v{68+4*t+i}, v{c+2*i}, v{c+2*i+1}")
    if t == 1: A("s_mov_b64 exec, s[96:97]")
    A(f"buffer_store_dwordx4 v[{68+4*t}:{71+4*t}], v{4+t}, s[32:35], 0 offen {OPT.get('OSC', '')}")
A("L_fin:")
if TS:
    A("s_mov_b64 exec, -1\ns_waitcnt vmcnt(0)")
    ts(19)
    A(f"""
    s_lshl_b32 s56, s2, 4
    s_add_u32 s56, s56, s3
    s_lshl_b32 s56, s56, 8
    s_add_u32 s56, s56, {WS_TS}
    v_lshlrev_b32 v1, 2, v0
    buffer_store_dword v41, v1, s[44:47], s56 offen
    """)
    if 'DIAG' in OPT:
        A(f"s_cmp_lg_u32 s3, {OPT.get('DW', 0)}\ns_cbranch_scc1 L_end\nv_readlane_b32 s56, v41, 0")
        if OPT['DIAG'] >= 100: A(f"s_mov_b32 s57, {OPT['DIAG']*100}")
        else: A(f"v_readlane_b32 s57, v41, {OPT['DIAG']}\ns_sub_u32 s57, s57, s56\ns_mul_i32 s57, s57, {OPT.get('DMUL', 10)}\ns_min_u32 s57, s57, 200000")
        A("""
        L_diag:
        s_sleep 4
        s_memrealtime s[100:101]
        s_waitcnt lgkmcnt(0)
        s_sub_u32 s58, s100, s56
        s_cmp_lt_u32 s58, s57
        s_cbranch_scc1 L_diag
        """)
A("L_end:\ns_endpgm")
A(";@cold")
A(f"""
L_fill2:
v_readlane_b32 s61, v10, 63
v_add_u32 v9, 64, v0
v_min_u32 v9, s56, v9
v_lshl_add_u32 v9, v9, 2, s57
v_add_u32 v13, 512, v13
v_max_u32 v11, s61, v11
""")
fill(11, 9, "0xffffffff")
A(f"""
s_mov_b64 exec, -1
s_branch L_filled
L_recover:
s_setprio 0
s_waitcnt vmcnt(0) lgkmcnt(0)
s_barrier
s_mov_b32 s54, 0
L_recov_step:
s_add_u32 s54, s54, 1
s_add_u32 s48, s2, s54
s_and_b32 s48, s48, 255
""")
bucket_range(48, 56, 49, 50)
A(f"""
s_cmp_lt_u32 s3, 8
s_cbranch_scc1 L_Gfirst
L_recovL:
s_barrier
L_recovG:
s_waitcnt vmcnt(0) lgkmcnt(0)
s_barrier
s_cmp_lt_u32 s54, 256
s_cbranch_scc1 L_recov_step
s_mov_b32 s27, 0
v_mov_b32 v43, 1
ds_write_b32 v42, v43 offset:{C_ABORT}
ds_write_b32 v42, v43 offset:{C_PFA}
ds_write_b32 v42, v43 offset:{C_PFB}
ds_write_b32 v42, v43 offset:{C_PFC}
v_mov_b32 v43, 0
ds_write_b32 v42, v43 offset:{C_W2}
""")
prep()
A(f"""
s_waitcnt lgkmcnt(0)
s_barrier
s_branch L_B4
L_safe0:
s_mov_b32 s57, 4
s_branch {'L_hkret' if ALL else 'L_pfb'}
L_safe:
s_mov_b32 s55, 1
s_setprio 0
s_mov_b32 s60, 1.0
s_mov_b32 s61, 1.0
s_mul_i32 s73, s83, 6
s_add_u32 s73, s73, s80
s_lshl_b32 s73, s73, 2
v_lshl_add_u32 v23, v0, 2, s73
s_waitcnt vmcnt(0) lgkmcnt(0)
ds_read_b32 v22, v23 offset:{ROWI}
""")
initnd(ALLND)
srd(28, 10, E*4); srd(32, 8, E*4); srd(36, 6, E*2)
A(f"""
v_lshlrev_b32 v16, 2, v0
v_lshlrev_b32 v17, 1, v0
v_and_b32 v24, 31, v0
v_lshlrev_b32 v24, 4, v24
s_mov_b32 s72, 0
s_movk_i32 s74, {N-1}
s_waitcnt lgkmcnt(0)
v_and_b32 v22, 127, v22
v_sub_u32 v25, 127, v22
""")
for i in range(6): A(f"v_readlane_b32 s{64+i}, v25, {i}")
A("s_cmp_eq_u32 s83, 0\ns_cbranch_scc1 L_sloop")
for i in range(2, 6): A(f"s_mov_b32 s{64+i}, -1")
A(f"""
L_sloop:
s_lshl_b32 s56, s72, 1
buffer_load_dword v18, v16, s[28:31], s56 offen
buffer_load_dword v19, v16, s[32:35], s56 offen
buffer_load_ushort v20, v17, s[36:39], s72 offen
s_waitcnt vmcnt(0)
v_min_u32 v18, s74, v18
v_subrev_u32 v21, s51, v18
v_cmp_gt_u32 s[96:97], s52, v21
s_cmp_eq_u64 s[96:97], 0
s_cbranch_scc1 L_snext
v_mov_b32 v25, 6
""")
for i in range(6): A(f"v_cmp_eq_u32 vcc, s{64+i}, v21\nv_cndmask_b32 v25, v25, {i}, vcc")
A(f"""
v_cmp_gt_u32 vcc, 6, v25
s_and_b64 s[96:97], s[96:97], vcc
L_sbit:
s_mov_b64 exec, -1
s_cmp_eq_u64 s[96:97], 0
s_cbranch_scc1 L_snext
s_ff1_i32_b64 s56, s[96:97]
s_bitset0_b64 s[96:97], s56
v_readlane_b32 s57, v19, s56
v_readlane_b32 s58, v20, s56
v_readlane_b32 s60, v25, s56
s_min_u32 s57, s57, s74
s_lshl_b32 s57, s57, 9
{RA(57)}
s_lshl_b32 s58, s58, 16
s_mov_b32 s59, s58
buffer_load_dwordx4 v[28:31], v24, s[44:47], s57 offen offset:{PB0} sc1
s_lshl_b64 exec, 1, s60
v_add_u32 v22, 0x100, v22
s_bitcmp1_b32 s60, 0
s_cselect_b32 exec_lo, 0, -1
s_cselect_b32 exec_hi, -1, 0
s_lshr_b32 s60, s60, 1
s_waitcnt vmcnt(0)
""")
for qq in range(3):
    if qq < 2: A(f"s_cmp_lg_u32 s60, {qq}\ns_cbranch_scc1 L_sk{qq+1}")
    for a in range(2):
        k = 2*qq + a; q, n = Q(k), Nn(k); w = (WA, WB)[a]
        A(f"""
        v_pk_fma_f32 v[8:9], s[58:59], v[{w}:{w+1}], v[{q}:{q+1}]
        v_pk_fma_f32 v[10:11], s[58:59], v[{w+2}:{w+3}], v[{q+2}:{q+3}]
        v_mfma_f32_4x4x4_16b_bf16 v[8:11], v[2:3], v[{28+2*a}:{29+2*a}], v[8:11]
        v_exp_f32 v12, v8
        v_exp_f32 v13, v9
        v_exp_f32 v14, v10
        v_exp_f32 v15, v11
        v_pk_add_f32 v[12:13], v[12:13], 1.0 op_sel_hi:[1,0]
        v_pk_add_f32 v[14:15], v[14:15], 1.0 op_sel_hi:[1,0]
        v_rcp_f32 v12, v12
        v_rcp_f32 v13, v13
        v_rcp_f32 v14, v14
        v_rcp_f32 v15, v15
        v_pk_fma_f32 v[{n}:{n+1}], v[8:9], v[12:13], v[{n}:{n+1}]
        v_pk_fma_f32 v[{n+2}:{n+3}], v[10:11], v[14:15], v[{n+2}:{n+3}]
        """)
    A("s_branch L_sbit")
    if qq < 2: A(f"L_sk{qq+1}:")
A(f"""
L_snext:
s_add_u32 s72, s72, 128
s_cmp_lt_u32 s72, {2*E}
s_cbranch_scc1 L_sloop
s_cmp_eq_u32 s83, 0
s_cselect_b32 exec_lo, 63, 3
s_mov_b32 exec_hi, 0
ds_write_b32 v23, v22 offset:{ROWI}
s_mov_b64 exec, -1
s_branch L_flush
""")

KAL = OPT.get('KAL', 12)
body, npad = pad(L, verbose=bool(OPT.get('V')))
hdr = open('standalone__edge_featured_mpnn_mpnn__graph.s.ref').read().split('; Override')[0]
def emit(body):
    out = hdr + f"; @launch grid=(256,1,1) block=(1024,1,1) lds={LDS}\n"
    out += f'.amdgcn_target "amdgcn-amd-amdhsa--gfx950"\n.text\n.globl {KN}\n.p2align {KAL}\n.type {KN},@function\n'
    out += "\n".join(body) + "\n"
    out += f""".section .rodata,"a"
.p2align 6
.amdhsa_kernel {KN}
  .amdhsa_next_free_vgpr 128
  .amdhsa_next_free_sgpr 102
  .amdhsa_accum_offset 128
  .amdhsa_group_segment_fixed_size 0
  .amdhsa_kernarg_size 88
  .amdhsa_user_sgpr_count 2
  .amdhsa_user_sgpr_kernarg_segment_ptr 1
  .amdhsa_system_sgpr_workgroup_id_x 1
.end_amdhsa_kernel
"""
    return out
import subprocess, re
def offsets(body):
    t = []; k = 0
    for b in body:
        if b.startswith(';@'): t.append(f"M_{k}:"); k += 1
        else: t.append(b)
    open('_m.s', 'w').write(emit(t))
    subprocess.run(["clang", "-x", "assembler", "-target", "amdgcn-amd-amdhsa", "-mcpu=gfx950", "-c", "_m.s", "-o", "_m.o"], check=True)
    o = subprocess.run(["llvm-objdump", "-t", "_m.o"], capture_output=True, text=True).stdout
    d = {int(m.group(2)): int(m.group(1), 16) for m in re.finditer(r"^([0-9a-f]+) .* M_(\d+)$", o, re.M)}
    return [d[i] for i in range(k)]
nb = []
for i, b in enumerate(body):
    nb.append(b)
    if b.strip().startswith('s_branch') and i+1 < len(body) and body[i+1].endswith(':'): nb.append(';@dead')
body = nb
def place(body, chosen, chains):
    out = []; k = 0
    for b in body:
        if not b.startswith(';@'): out.append(b); continue
        out.append(b)
        if k in chosen:
            n = chosen[k]
            out.append(f"L_stub{n}:"); out.append(f"    {'s_branch' if b == ';@dead' else 's_cbranch_execz'} {chains[n]}")
        if b in (';@hopL', ';@hopW', ';@hopG') and chosen:
            ws = {';@hopL': range(8, 15), ';@hopW': (15,), ';@hopG': range(8)}[b]
            if not any(w in first for w in ws): k += 1; continue
            if b == ';@hopG': out.append("    s_cmp_lg_u32 s54, 0"); out.append("    s_cbranch_scc1 L_Gback")
            out.append("    s_mov_b64 exec, 0")
            for w in ws:
                if w in first:
                    if b == ';@hopW': out.append(f"    s_branch L_stub{first[w]}")
                    else: out.append(f"    s_cmp_eq_u32 s3, {w}"); out.append(f"    s_cbranch_scc1 L_stub{first[w]}")
        k += 1
    return out
if OPT.get('WARM', 1):
    marks = [b for b in body if b.startswith(';@')]
    chosen = {}; chains = {}; first = {}
    COV = OPT.get('COV', 1024)
    for it in range(6):
        off = offsets(place(body, chosen, chains))
        lo = off[marks.index(';@warm')]; hi = off[marks.index(';@cold')]
        cand = [k for k, m in enumerate(marks) if m in (';@spot', ';@dead') and lo <= off[k] < hi]
        sel = []; end = (lo & ~127) + COV; gap = 0
        end = min(end, (lo | 4095) + 1)
        while end < hi:
            c = [k for k in cand if (off[k] & ~127) <= end and (not sel or off[k] > off[sel[-1]]) and (off[k] >> 12) == (end >> 12) and off[k] > end - 640]
            d = [k for k in c if marks[k] == ';@dead' and off[k] > end - 256]
            if d: k = d[-1]
            elif c: k = c[-1]
            else:
                c = [k for k in cand if off[k] > end]
                if not c: break
                k = c[0]; gap += (off[k] & ~127) - end
            sel.append(k)
            end = min((off[k] & ~127) + COV + 128, (off[k] | 4095) + 1)
        new = {k: n for n, k in enumerate(sel)}
        order = {0: [8, 9, 10, 11, 12, 13, 14, 15, 0, 1, 2, 3, 4, 5, 6, 7], 1: [8, 9, 10, 11, 12, 13, 14, 15], 2: [0, 1, 2, 3, 4, 5, 6, 7], 3: [15, 0, 1, 2, 3, 4, 5, 6, 7], 4: [0, 1, 2, 3], 5: [15, 0, 1, 2, 3]}[OPT.get('WORD', 0)]
        per = {w: [] for w in order}
        for n in range(len(sel)): per[order[n % len(order)]].append(n)
        first = {w: v[0] for w, v in per.items() if v}
        chains = {}
        for w, v in per.items():
            back = 'L_Gback' if w < 8 else ('L_W15cont' if w == 15 else 'L_Lcont')
            for i, n in enumerate(v): chains[n] = f"L_stub{v[i+1]}" if i+1 < len(v) else back
        if new == chosen: break
        chosen = new
    print("stubs", len(sel), "gap", gap, [hex(off[k]) + marks[k][2] for k in sel], hex(lo), hex(hi), file=sys.stderr)
    body = place(body, chosen, chains)
body = [b for b in body if not b.startswith(';@')]
open(OPT.get('OUT', 'k.s'), 'w').write(emit(body))
print("pads", npad, "lines", len(body), file=sys.stderr)
```

```python
import sys, os, struct
sys.path.insert(0, os.path.dirname(os.path.abspath(__file__)))
from asmlib import *

OPT = dict(TS=0, FORCE_SAFE=0, FORCE_RECOV=0, FORCE_GUARD=0, POLLMAX=6000, SLP=8, NT=1, PDELAY=16, LPRIO=2, PUBT=6, HOOK=1, EP=0, WBM=6,
           PRIO='3210')
for a in sys.argv[1:]:
    k, v = a.split('=')
    OPT[k] = int(v) if v.lstrip('-').isdigit() and k not in ('PRIO', 'GPRIO') else v
TS = OPT['TS']; POLLMAX = OPT['POLLMAX']; SLP = OPT['SLP']
SC = 'sc1'
KN = "standalone__edge_featured_mpnn_mpnn__graph_kernel"

def f32(x): return "0x%08x" % struct.unpack('<I', struct.pack('<f', x))[0]
NLOG2E = f32(-1.4426950408889634); NLN2 = f32(-0.6931471805599453)

N = 25000; E = 400000; CH = 1564
PB0 = 512
WS_REC = 0xD00000; REC_STRIDE = 12544; WS_OFF = 0x1040000; WS_PF = 0x1080000; WS_TS = 0x1500000; WS_SIZE = 0x2000000
QBLK = 14336; QROW = 144
CTR = 0; KEY = 256; SORT = 768; ROWI = 1280; CW = 2048; CB = 3072; QB = 4096
STG = QB + 8*QBLK; CNT = STG + 12544; START = CNT + 1024; XB = START + 1024; LDS = 163840
NL = STG; NCAP = 46; WL = NL + 98*NCAP*4; HL = 768; LW = 2*HL; Q3P = LDS - 2048
assert XB % 256 == 0 and XB + 28672 <= LDS and WL + 16*LW + 64 <= Q3P and WL % 16 == 0
C_REC, C_PA, C_GO, C_ABORT, C_W2, C_Q, C_PFA, C_X, C_S2, C_S3, C_WB = 0, 4, 8, 12, 16, 20, 28, 32, 40, 44, 48
TAIL7 = XB + 25600
TGT = 64
C_G = 192
C_SLOT = 60
ROT = OPT.get('ROT', 0); DBK = OPT.get('DBK', 4); DP = 's[0:1]'
EP = OPT['EP']; WBM = OPT['WBM']; assert OPT['PUBT'] >= 6 - EP and STG + 7*2048 <= XB
RA = lambda r: f's_add_u32 s{r}, s{r}, s1' if ROT else ''
HSB = QB + 65536; HROW = 528
assert HSB + 106*HROW <= WL
R = 4; NS = 6
SB0 = 56
def Q(k): return SB0 + 12*k
def Nn(k): return SB0 + 12*k + 4
def Dd(k): return SB0 + 12*k + 8
RING = (24, 28, 44, 48); WA = 4; WB = 52; VN = 40
SPIN = 0x100000
BIAS = 128
ASG = [[28, 34, 46, 48], [1, 29, 45], [10, 19, 37], [3, 24, 42], [0, 39, 47], [9, 25, 32], [2, 23, 44], [4, 20, 43], [8, 26, 30], [6, 21, 40], [5, 31, 33], [11, 18, 38], [12, 15, 36], [7, 16, 41], [13, 17, 35], [14, 22, 27]]
assert sorted(sum(ASG, [])) == list(range(49))

L = []
def A(s):
    for line in s.strip('\n').split('\n'):
        line = line.strip()
        if not line: continue
        L.append(line if line.endswith(':') or line.startswith(('.', ';')) else "    " + line)
def srd(r, lo, size, w3="0x00020000"):
    A(f"s_mov_b32 s{r}, s{lo}\ns_mov_b32 s{r+1}, s{lo+1}\ns_mov_b32 s{r+2}, {size}\ns_mov_b32 s{r+3}, {w3}")
def ts(i):
    if TS: A(f"s_memrealtime s[100:101]\ns_waitcnt lgkmcnt(0)\nv_writelane_b32 v41, s100, {i}")
def bar(): A("s_barrier")
def spot(dead=False): A(";@dead" if dead else ";@spot")
uid = [0]
def lab(p):
    uid[0] += 1; return f"L_{p}_{uid[0]}"
def dpp(op, v, ctl, m="row_mask:0xf bank_mask:0xf bound_ctrl:0"):
    A(f"{op}_dpp v{v}, v{v}, v{v} {ctl} {m}")
def dpp_add(v, ctl, m="row_mask:0xf bank_mask:0xf bound_ctrl:0"): dpp("v_add_u32", v, ctl, m)
def bucket_range(cur, b, n0, n1):
    A(f"""
    s_and_b32 s{b}, s{cur}, 7
    s_lshl_b32 s{b}, s{b}, 5
    s_lshr_b32 s27, s{cur}, 3
    s_or_b32 s{b}, s{b}, s27
    s_mul_i32 s{n0}, s{b}, 6400845
    s_add_u32 s{n0}, s{n0}, 65535
    s_add_u32 s{n1}, s{n0}, 6400845
    s_lshr_b32 s{n0}, s{n0}, 16
    s_lshr_b32 s{n1}, s{n1}, 16
    s_min_u32 s{n1}, s{n1}, {N}
    """)
def lds_or(off, val):
    A(f"v_mov_b32 v43, {val}\nds_or_b32 v42, v43 offset:{off}")
def lds_spin(off, dst, cmp_ok, ok, tmp=58, slp=1, av=42):
    l = lab('spin')
    A(f"""
    s_mov_b32 s{tmp}, 0
    {l}:
    ds_read_b32 v43, v{av} offset:{off}
    s_add_u32 s{tmp}, s{tmp}, 1
    s_waitcnt lgkmcnt(0)
    v_readfirstlane_b32 s{dst}, v43
    {cmp_ok}
    s_cbranch_scc1 {ok}
    s_sleep {slp}
    s_cmp_lt_u32 s{tmp}, {SPIN}
    s_cbranch_scc1 {l}
    """)
def lsync(off, tmp=60):
    l = lab('ls'); ok = lab('lsok')
    A(f"""
    s_mov_b64 exec, 1
    ds_add_u32 v42, v10 offset:{off}
    s_mov_b64 exec, -1
    s_mov_b32 s{tmp}, 0
    {l}:
    ds_read_b32 v43, v42 offset:{off}
    s_add_u32 s{tmp}, s{tmp}, 1
    s_waitcnt lgkmcnt(0)
    v_readfirstlane_b32 s{tmp+1}, v43
    s_cmp_ge_u32 s{tmp+1}, 7
    s_cbranch_scc1 {ok}
    s_cmp_lt_u32 s{tmp}, {SPIN}
    s_cbranch_scc1 {l}
    {ok}:
    """)
NT = 'nt' if OPT['NT'] else ''
def caddr(v, t, s, rot=True):
    A(f"""
    v_lshrrev_b32 v{v}, 3, v0
    v_lshlrev_b32 v{v}, 13, v{v}
    v_and_b32 v{t}, 7, v0
    v_lshl_add_u32 v{v}, v{t}, 7, v{v}
    v_lshlrev_b32 v{t}, 2, v0
    s_and_b32 s{s}, s2, 7
    s_lshl_b32 s{s}, s{s}, 10
    s_add_u32 s{s}, s{s}, {WS_PF}
    {RA(s) if rot else ''}
    """)
def signal(ty, v, one, s):
    A(f"""
    s_mov_b64 exec, 0xff
    v_lshlrev_b32 v{v}, 10, v0
    v_mov_b32 v{one}, 1
    s_lshl_b32 s{s}, s2, 4
    s_and_b32 s{s}, s{s}, 0x380
    s_add_u32 s{s}, s{s}, {WS_PF + 8192*ty}
    {RA(s)}
    buffer_atomic_add v{one}, v{v}, s[44:47], s{s} offen sc1
    """)
    if ty == 1: A(f"s_mov_b64 exec, 1\nglobal_atomic_add v42, v{one}, {DP} sc1")
def snap():
    A(f"""
    v_lshrrev_b32 v27, 1, v0
    s_lshl_b32 s56, s62, 5
    v_add_u32 v27, s56, v27
    v_lshlrev_b32 v25, 10, v27
    s_lshl_b32 s98, s53, 2
    s_add_u32 s98, s98, {WS_OFF}
    """)
def initnd(regs):
    for k in range(NS):
        for r, val in ((Nn(k), "0"), (Dd(k), "s[60:61]")):
            if r in regs: A(f"v_mov_b64 v[{r}:{r+1}], {val}\nv_mov_b64 v[{r+2}:{r+3}], {val}")
ALLND = [r for k in range(NS) for r in (Nn(k), Dd(k))]
def prep():
    spot()
    A("s_mov_b32 s22, 0")
    for w in range(16):
        a = ASG[w] + [0]
        A(f"s_cmp_eq_u32 s3, {w}\ns_cselect_b32 s22, {hex(a[0] | a[1] << 8 | a[2] << 16 | a[3] << 24)}, s22")
    A(f"""
    ;@spot
    v_mul_u32_u24 v33, 43, v0
    v_lshrrev_b32 v33, 7, v33
    v_mul_u32_u24 v34, 24, v33
    v_lshlrev_b32 v32, 3, v0
    v_sub_u32 v32, v32, v34
    v_cmp_lt_u32 vcc, 14, v0
    v_cndmask_b32 v32, v32, 24, vcc
    v_bfe_u32 v32, s22, v32, 8
    v_lshlrev_b32 v32, 3, v32
    v_mad_u32_u24 v33, v33, 6, 8
    v_subrev_u32 v34, 6, v33
    v_min_u32 v33, 26, v33
    v_min_u32 v34, 26, v34
    s_mov_b32 s56, {(127*NCAP + BIAS)*8193}
    v_lshl_add_u32 v35, v0, 26, s56
    v_lshrrev_b32 v43, 5, v0
    s_bfe_u32 s56, s22, 0x80000
    s_bfe_u32 s57, s22, 0x80008
    s_bfe_u32 s58, s22, 0x80010
    s_lshl_b32 s56, s56, 3
    s_lshl_b32 s57, s57, 3
    s_lshl_b32 s58, s58, 3
    v_lshl_add_u32 v36, v43, 2, s56
    v_lshl_add_u32 v37, v43, 2, s57
    v_lshl_add_u32 v38, v43, 2, s58
    ;@spot
    v_bfe_u32 v43, v0, 2, 3
    v_mul_u32_u24 v39, {QBLK}, v43
    v_and_b32 v43, 3, v0
    v_lshl_add_u32 v39, v43, 5, v39
    v_and_b32 v43, 4, v0
    v_lshl_add_u32 v39, v43, 2, v39
    v_and_b32 v43, 8, v0
    v_lshl_add_u32 v39, v43, 4, v39
    v_add_u32 v39, {QB + 127*QROW}, v39
    s_lshl_b32 s56, s3, 6
    v_and_b32 v40, 60, v0
    v_add_u32 v40, s56, v40
    """)

def gaddr():
    A(f"""
    v_lshrrev_b32 v7, 4, v0
    v_and_b32 v6, 15, v0
    v_xor_b32 v6, v6, v7
    s_and_b32 s61, s3, 3
    s_lshl_b32 s61, s61, 2
    v_xor_b32 v6, s61, v6
    v_lshlrev_b32 v6, 4, v6
    v_lshl_add_u32 v6, v7, 8, v6
    s_lshl_b32 s61, s3, 10
    s_add_u32 s64, s61, {XB}
    s_lshl_b32 s65, s49, 8
    s_add_u32 s65, s65, s61
    v_lshrrev_b32 v5, 2, v0
    v_lshlrev_b32 v5, 9, v5
    v_lshrrev_b32 v8, 5, v0
    v_lshlrev_b32 v8, 1, v8
    v_and_b32 v3, 3, v0
    v_xor_b32 v8, v8, v3
    v_lshl_add_u32 v5, v8, 4, v5
    s_lshl_b32 s56, s3, 6
    v_add_u32 v1, s56, v5
    s_mul_i32 s59, s3, {QBLK}
    s_add_u32 s59, s59, {QB}
    """)
def tailb(b, d):
    A(f"s_lshl_b32 s{d}, s{b}, 11\ns_add_u32 s{d}, s{d}, {STG}\ns_cmp_eq_u32 s{b}, 7\ns_cselect_b32 s{d}, {TAIL7}, s{d}")
def wdma(base, n=8, ldsoff=0, av=1, sb=59):
    A(f"s_add_u32 m0, s{sb}, {ldsoff}\ns_mov_b32 s56, {base}")
    for i in range(n):
        A(f"buffer_load_dwordx4 v{av}, s[28:31], s56 offen lds")
        if i < n-1: A("s_add_u32 m0, m0, 1024\ns_add_u32 s56, s56, 8192")
A(f"""
{KN}:
s_cmp_ge_u32 s2, 256
s_cbranch_scc1 L_end
s_load_dwordx16 s[4:19], s[0:1], 0
s_load_dwordx2 s[20:21], s[0:1], 64
s_load_dwordx2 s[24:25], s[0:1], 80
s_load_dwordx2 s[0:1], s[0:1], 72
v_lshrrev_b32 v1, 6, v0
v_and_b32 v0, 63, v0
v_readfirstlane_b32 s3, v1
v_mov_b32 v42, 0
v_mov_b32 v41, 0
s_cmp_lg_u32 s3, 15
s_cbranch_scc1 L_noinit
v_mov_b64 v[16:17], 0
v_mov_b64 v[18:19], 0
s_mov_b32 s56, {CNT}
v_lshl_add_u32 v2, v0, 4, s56
v_lshlrev_b32 v23, 2, v0
v_sub_u32 v20, 127, v0
v_sub_u32 v21, 63, v0
ds_write_b128 v2, v[16:19]
ds_write_b32 v23, v16
ds_write2st64_b32 v23, v20, v21 offset0:{KEY//256} offset1:{KEY//256+1}
L_noinit:
s_mov_b32 s26, 0xffff0000
s_mov_b32 s54, 0
s_mov_b32 s55, 0
s_mov_b32 s48, s2
""")
bucket_range(2, 53, 51, 52)
A("s_mov_b32 s49, s51\ns_mov_b32 s50, s52\ns_sub_u32 s52, s52, s51\ns_sub_u32 s62, s3, 8")
A(f"""
s_mov_b32 s31, 0x00020000
s_mov_b32 s35, 0x00020000
s_mov_b32 s38, {E*2}
s_mov_b32 s39, 0x00020000
s_mov_b32 s46, {0x10000000 if ROT else WS_SIZE}
s_mov_b32 s47, 0x00020000
s_cmp_lt_u32 s3, 8
s_cbranch_scc1 L_Gfirst
s_lshl_b32 s56, s62, 6
v_add_u32 v1, s56, v0
s_mul_i32 s57, s2, {CH}
v_lshl_add_u32 v2, v1, 2, s57
v_lshlrev_b32 v3, 2, v2
v_lshlrev_b32 v4, 1, v2
s_mov_b32 s30, {E*4}
s_mov_b32 s34, {E*4}
s_cmp_eq_u32 s3, 15
s_cbranch_scc1 L_W15
s_waitcnt lgkmcnt(0)
s_mov_b32 s28, s10
s_mov_b32 s29, s11
s_mov_b32 s32, s8
s_mov_b32 s33, s9
s_mov_b32 s36, s6
s_mov_b32 s37, s7
buffer_load_dwordx4 v[44:47], v3, s[28:31], 0 offen {NT}
buffer_load_dwordx4 v[48:51], v3, s[32:35], 0 offen {NT}
buffer_load_dwordx2 v[52:53], v4, s[36:39], 0 offen {NT}
s_barrier
s_branch L_Lcont
L_W15:
""")
CPF = '''v_cmp_gt_u32 vcc, s58, v34
s_and_b64 exec, exec, vcc
s_cbranch_execz L_nocpf
global_load_dword v35, v34, s[56:57]
L_nocpf:
s_mov_b64 exec, 0xffff
''' if OPT.get('CPF', 1) else ''
SLOTC = f'''s_bfe_u32 s1, s60, {hex(ROT | 3 << 16)}
s_mul_i32 s1, s1, 0x1800000
v_mov_b32 v16, s1
ds_write_b32 v42, v16 offset:{C_SLOT}
s_add_u32 s23, s23, s1''' if ROT else ''
caddr(52, 23, 23, False)
if ROT: A('s_memrealtime s[60:61]')
A(f"""
s_lshr_b32 s56, s2, 3
s_lshl_b32 s56, s56, 11
v_lshl_add_u32 v28, v0, 7, s56
v_add_u32 v29, 0x10000, v28
v_lshrrev_b32 v32, 3, v0
v_lshlrev_b32 v32, 6, v32
v_and_b32 v33, 1, v0
v_lshl_add_u32 v32, v33, 5, v32
v_bfe_u32 v33, v0, 1, 2
v_lshl_add_u32 v32, v33, 3, v32
v_add_u32 v33, 0x20000, v32
v_lshrrev_b32 v34, 1, v28
v_and_b32 v34, 0xffffff80, v34
s_getpc_b64 s[56:57]
L_pc:
s_mov_b32 s58, L_last-L_pc
s_waitcnt lgkmcnt(0)
{SLOTC}
s_mov_b32 s44, s24
s_mov_b32 s45, s25
s_mov_b64 exec, 0xffff
buffer_load_dword v53, v52, s[44:47], s23 offen sc1
{CPF}global_load_dword v30, v28, s[12:13]
global_load_dword v30, v29, s[12:13]
global_load_dword v31, v28, s[16:17]
s_mov_b64 exec, -1
global_load_dwordx2 v[36:37], v33, s[12:13]
global_load_dwordx2 v[38:39], v32, s[14:15]
{'s_waitcnt lgkmcnt(0)' if ROT else ''}
s_barrier
;@hopW
s_branch L_W15cont
L_Gfirst:
""")
gaddr()
A(f"""
s_mov_b32 s30, {257*512}
s_mov_b32 s34, {N*256}
s_waitcnt lgkmcnt(0)
s_mov_b32 s28, s12
s_mov_b32 s29, s13
s_mov_b32 s32, s4
s_mov_b32 s33, s5
""")
ts(0)
bar()
ts(20)
A("s_mov_b32 m0, s64")
for i in range(3): A(f"buffer_load_dwordx4 v6, s[32:35], s65 offen {NT} lds\ns_add_u32 m0, m0, 8192\ns_add_u32 s65, s65, 8192")
A(f"s_cmp_lg_u32 s3, 0\ns_cbranch_scc1 L_Gw\nbuffer_load_dwordx4 v6, s[32:35], s65 offen {NT} lds\nL_Gw:")
wdma(0, 8)
A("s_branch L_Gcont")
def common():
    A(f"""
    s_mov_b32 s44, s24
    s_mov_b32 s45, s25
    s_mov_b32 s36, s6
    s_mov_b32 s37, s7
    s_mov_b32 s40, s24
    s_and_b32 s41, s25, 0xffff
    s_or_b32 s41, s41, 0x00100000
    s_mov_b32 s42, 64
    s_mov_b32 s43, 0x00800000
    """)
A(";@warm")
A(f"L_Lcont:\ns_mov_b64 exec, -1\ns_setprio {OPT['LPRIO']}\ns_mov_b32 s23, 0")
common()
ts(0)
ts(20)
DG = OPT.get('DG', 0)
if DG == 1: A("s_branch L_fin")
A(f"""
s_lshl_b32 s99, s2, 10
s_add_u32 s99, s99, {WS_OFF}
v_lshlrev_b32 v14, 4, v0
{f'ds_read_b32 v16, v42 offset:{C_SLOT}' if ROT else ''}
""")
snap()
A(f"""
v_cmp_gt_u32 vcc, {CH//4}, v1
v_mov_b32 v3, {E}
v_cmp_gt_u32 s[96:97], v3, v2
s_and_b64 s[96:97], s[96:97], vcc
v_mov_b32 v10, 1
s_movk_i32 s56, 2684
s_mov_b32 s57, {CNT}
s_movk_i32 s58, {N-1}
v_lshl_add_u32 v11, v0, 4, s57
""")
ts(22); spot()
A(f"s_waitcnt vmcnt(2)")
ts(1); spot()
A("s_mov_b64 exec, s[96:97]")
for i in range(4):
    A(f"""
    v_min_u32 v{44+i}, s58, v{44+i}
    v_mul_u32_u24 v{54+i}, s56, v{44+i}
    v_lshrrev_b32 v{54+i}, 18, v{54+i}
    v_lshl_add_u32 v{54+i}, v{54+i}, 2, s57
    ds_add_rtn_u32 v{58+i}, v{54+i}, v10
    """)
lsync(C_S2)
if ROT: A(f"v_readfirstlane_b32 s1, v16\n{RA(98)}\n{RA(99)}")
ts(2); spot()
A(f"ds_read_b128 v[64:67], v11\ns_waitcnt vmcnt(0)")
for i in range(4):
    A(f"""
    v_min_u32 v{48+i}, s58, v{48+i}
    v_and_b32 v{44+i}, 127, v{44+i}
    v_bfe_u32 v62, v{48+i}, 4, 2
    v_mad_u32_u24 v62, v62, 6, 8
    v_lshl_or_b32 v{44+i}, v{44+i}, 7, v62
    """)
A(f"""
s_waitcnt lgkmcnt(0)
v_add_u32 v69, v64, v65
v_add_u32 v70, v69, v66
v_add_u32 v72, v70, v67
v_mov_b32 v73, v72
v_lshl_or_b32 v48, v52, 16, v48
v_and_or_b32 v49, v52, s26, v49
""")
dpp_add(73, "row_shr:1")
A("v_lshl_or_b32 v50, v53, 16, v50\nv_and_or_b32 v51, v53, s26, v51")
dpp_add(73, "row_shr:2"); dpp_add(73, "row_shr:4"); dpp_add(73, "row_shr:8")
dpp_add(73, "row_bcast:15", "row_mask:0xa bank_mask:0xf"); dpp_add(73, "row_bcast:31", "row_mask:0xc bank_mask:0xf")
A(f"""
;@spot
v_sub_u32 v76, v73, v72
v_add_u32 v77, v76, v64
v_add_u32 v78, v76, v69
v_add_u32 v79, v76, v70
ds_write_b128 v11, v[76:79] offset:{START-CNT}
s_mov_b64 exec, s[96:97]
""")
for i in range(4): A(f"ds_read_b32 v{54+i}, v{54+i} offset:{START-CNT}")
A(f"s_mov_b32 s57, {STG}")
for i in range(4): A(f"v_lshl_add_u32 v{58+i}, v{58+i}, 3, s57")
for i in range(4):
    A(f"""
    s_waitcnt lgkmcnt(3)
    v_lshl_add_u32 v{54+i}, v{54+i}, 3, v{58+i}
    ds_write2_b32 v{54+i}, v{48+i}, v{44+i} offset0:0 offset1:1
    """)
A(f"""
s_mov_b64 exec, -1
v_lshl_add_u32 v12, v1, 4, s57
v_lshlrev_b32 v13, 4, v1
s_mul_i32 s56, s2, {REC_STRIDE}
s_add_u32 s56, s56, {WS_REC}
{RA(56)}
s_add_u32 s57, s56, 7168
v_cmp_gt_u32 vcc, 334, v1
""")
lsync(C_S3)
ts(3); spot()
A(f"""
ds_read_b128 v[84:87], v12
ds_read_b128 v[88:91], v12 offset:7168
v_lshl_or_b32 v80, v64, 16, v76
v_lshl_or_b32 v81, v65, 16, v77
v_lshl_or_b32 v82, v66, 16, v78
v_lshl_or_b32 v83, v67, 16, v79
s_waitcnt lgkmcnt(1)
buffer_store_dwordx4 v[84:87], v13, s[44:47], s56 offen {SC}
s_cbranch_vccz L_nost2
s_mov_b64 exec, vcc
s_waitcnt lgkmcnt(0)
buffer_store_dwordx4 v[88:91], v13, s[44:47], s57 offen {SC}
s_branch L_st3
L_nost2:
buffer_store_dwordx4 v[80:83], v14, s[44:47], s99 offen {SC}
L_st3:
s_mov_b64 exec, 1
s_waitcnt vmcnt(0) lgkmcnt(0)
ds_add_rtn_u32 v15, v42, v10 offset:{C_REC}
s_mov_b64 exec, -1
s_waitcnt lgkmcnt(0)
v_readfirstlane_b32 s58, v15
s_cmp_lg_u32 s58, 6
s_cbranch_scc1 L_B0
""")
signal(0, 13, 14, 56)
A("s_branch L_B0")
spot(True)
A(f"L_W15cont:\ns_mov_b64 exec, -1\nv_lshlrev_b32 v1, 4, v0\ns_mov_b32 s28, s10\ns_mov_b32 s29, s11\ns_mov_b32 s32, s8\ns_mov_b32 s33, s9")
common()
ts(0)
snap()
A(f"""
{RA(98)}
s_setprio {OPT['LPRIO']}
s_mov_b32 s56, {NLOG2E}
s_mov_b32 s57, {NLOG2E}
s_waitcnt vmcnt(0)
v_add_u32 v53, {33 if OPT.get('FORCE_LATE') else 32}, v53
v_lshlrev_b32 v4, 16, v36
v_and_b32 v5, s26, v36
v_lshlrev_b32 v6, 16, v37
v_and_b32 v7, s26, v37
v_lshlrev_b32 v32, 16, v38
v_and_b32 v33, s26, v38
v_lshlrev_b32 v34, 16, v39
v_and_b32 v35, s26, v39
v_pk_mul_f32 v[4:5], v[4:5], s[56:57]
v_pk_mul_f32 v[6:7], v[6:7], s[56:57]
v_pk_mul_f32 v[32:33], v[32:33], s[56:57]
v_pk_mul_f32 v[34:35], v[34:35], s[56:57]
ds_write_b128 v1, v[4:7] offset:{CW}
ds_write_b128 v1, v[32:35] offset:{CB}
""")
A("L_B0:\ns_mov_b64 exec, -1")
ts(4); spot()
if DG in (1, 2): A("s_branch L_fin")
srd(28, 12, 257*512)
A(f"""
v_lshrrev_b32 v16, 2, v0
v_lshlrev_b32 v16, 9, v16
v_lshrrev_b32 v17, 5, v0
v_lshlrev_b32 v17, 1, v17
v_and_b32 v18, 3, v0
v_xor_b32 v17, v17, v18
v_lshl_add_u32 v16, v17, 4, v16
s_lshl_b32 s56, s62, 6
v_add_u32 v16, s56, v16
s_mul_i32 s59, s62, {QBLK}
s_add_u32 s59, s59, {QB}
s_cmp_lg_u32 s3, 15
s_cbranch_scc1 L_wb0
""")
lds_spin(C_S3, 57, "s_cmp_ge_u32 s57, 7", "L_wb0", slp=2)
A("L_wb0:")
wdma(65536, 6, 8192, 16)
tailb(62, 64)
A(f"""
v_and_b32 v19, 1, v0
v_lshlrev_b32 v19, 1, v19
s_movk_i32 s57, {REC_STRIDE}
v_mul_u32_u24 v10, s57, v27
v_lshl_add_u32 v10, v19, 3, v10
""")
prep()
lds_spin(C_REC, 57, "s_cmp_ge_u32 s57, 7", "L_own", slp=1)
A("L_own:")
wdma(65536+6*8192, 2, 0, 16, 64)
A(f"v_mov_b32 v17, 1\ns_mov_b64 exec, 1\ns_waitcnt vmcnt(0)\nds_add_u32 v42, v17 offset:{C_WB}\ns_mov_b64 exec, -1")
ts(23)
A("s_cmp_eq_u32 s3, 15\ns_cbranch_scc1 L_w15b\n;@hopB\nL_Bback:\ns_mov_b64 exec, -1")
lds_spin(C_GO, 57, "s_cmp_lg_u32 s57, 0", "L_goseen", slp=2)
A(f"""
L_goseen:
s_cmp_eq_u32 s57, 1
s_cbranch_scc1 L_offok
L_B0_to:
s_mov_b64 exec, -1
""")
lds_or(C_ABORT, 2)
A("s_mov_b32 s63, 0\ns_branch L_B1done")
spot(True)
A("L_w15b:")
if OPT['PDELAY']: A(f"s_sleep {OPT['PDELAY']}")
ts(24); spot()
A(f"""
s_mov_b64 exec, 0xff
s_mov_b32 s58, 0
L_offp:
buffer_load_dword v18, v52, s[44:47], s23 offen sc1
s_add_u32 s58, s58, 1
s_waitcnt vmcnt(0)
v_cmp_ne_u32 vcc, v18, v53
""")
if OPT['FORCE_RECOV'] != 4: A("s_cbranch_vccz L_go\ns_mov_b64 exec, vcc")
def dbg(cnt, ty, v, ok):
    l = lab('dk')
    A(f"""
    s_cmp_lt_u32 s{cnt}, {(6, 16)[ty]}
    s_cbranch_scc1 {l}
    global_load_dword v{v}, v42, {DP} sc1
    s_waitcnt vmcnt(0)
    v_readfirstlane_b32 s57, v{v}
    s_cmp_eq_u32 s57, 256
    s_cbranch_scc1 {ok}
    {l}:
    """)
if OPT['FORCE_RECOV'] != 4: dbg(58, 0, 18, "L_go")
A(f"""
s_sleep {SLP}
s_cmp_lt_u32 s58, {2 if OPT['FORCE_RECOV'] == 4 else POLLMAX}
s_cbranch_scc1 L_offp
""")
lds_or(C_GO, 2)
A("s_branch L_B0_to\nL_go:")
lds_or(C_GO, 1)
if TS: A("v_writelane_b32 v41, s58, 40")
A("s_mov_b64 exec, -1")
A("L_offok:\nbuffer_load_dword v18, v25, s[44:47], s98 offen sc1")
ts(5); spot()
A("s_waitcnt vmcnt(0)")
ts(6); spot()
A(f"""
v_and_b32 v16, 0xffff, v18
v_lshrrev_b32 v11, 16, v18
v_lshl_add_u32 v10, v16, 3, v10
v_cmp_lt_u32 vcc, 24, v11
v_sub_u32 v11, v11, v19
{f's_add_u32 s56, s1, {WS_REC}' if ROT else f's_mov_b32 s56, {WS_REC}'}
s_mov_b32 s63, 0
""")
for i in range(6):
    m = 72+4*i
    A(f"""
    v_cmp_lt_i32 s[{m}:{m+1}], {4*i}, v11
    s_cmp_eq_u64 s[{m}:{m+1}], 0
    s_cbranch_scc1 L_ldone
    s_mov_b64 exec, s[{m}:{m+1}]
    buffer_load_dwordx4 v[{Nn(i)}:{Nn(i)+3}], v10, s[44:47], s56 offen offset:{32*i} sc1
    v_cmp_lt_i32 s[{m+2}:{m+3}], {4*i+1}, v11
    s_add_u32 s63, s63, 1
    """)
A(f"""
L_ldone:
s_mov_b64 exec, -1
s_cbranch_vccz L_noovf
""")
lds_or(C_ABORT, 1)
A(f"""
L_noovf:
s_lshl_b32 s57, s51, 7
v_mov_b32 v16, 0x41041
s_waitcnt vmcnt(0)
""")
ts(7)
spot()
for i in range(6):
    A(f"s_cmp_le_u32 s63, {i}\ns_cbranch_scc1 L_B1done")
    for j in range(2):
        d1 = Nn(i)+2*j+1; ad = Dd(i)+2*j; rk = ad+1; u = 20+j; m = 72+4*i+2*j
        A(f"""
        s_mov_b64 exec, s[{m}:{m+1}]
        v_subrev_u32 v{ad}, s57, v{d1}
        v_lshlrev_b32 v{u}, v{d1}, v16
        v_bfe_u32 v{ad}, v{ad}, 5, 9
        ds_add_rtn_u32 v{rk}, v{ad}, v{u} offset:{KEY}
        """)
A("L_B1done:\ns_mov_b64 exec, -1\ns_setprio 0\ns_waitcnt lgkmcnt(0)")
ts(8); spot()
if DG: A("s_branch L_fin")
bar()
ts(9); spot()
A(f"""
s_mov_b32 s57, {NL}
v_mov_b32 v20, 0
s_cmp_lg_u32 s3, 15
s_cbranch_scc1 L_nopre
s_mov_b64 exec, 0xff00
buffer_load_dword v54, v52, s[44:47], s23 offen sc1
L_nopre:
""")
for i in range(6):
    A(f"s_cmp_le_u32 s63, {i}\ns_cbranch_scc1 L_sc2")
    for j in range(2):
        ad = Dd(i)+2*j; rk = ad+1; m = 72+4*i+2*j; F = 4+2*i+j
        A(f"""
        s_mov_b64 exec, s[{m}:{m+1}]
        ds_read_b32 v{F}, v{ad} offset:{KEY}
        v_max_u32 v20, v20, v{rk}
        v_mad_u32_u24 v{ad}, v{ad}, {NCAP}, s57
        """)
A("L_sc2:\ns_mov_b64 exec, -1\n;@spot\ns_waitcnt lgkmcnt(0)")
for i in range(6):
    A(f"s_cmp_le_u32 s63, {i}\ns_cbranch_scc1 L_sc3")
    for j in range(2):
        w0 = Nn(i)+2*j; d1 = w0+1; ad = Dd(i)+2*j; rk = ad+1; m = 72+4*i+2*j; F = 4+2*i+j
        A(f"""
        s_mov_b64 exec, s[{m}:{m+1}]
        v_sub_u32 v{F}, v{F}, v{rk}
        v_lshl_add_u32 v{F}, v{F}, 6, v{rk}
        v_bfe_u32 v{F}, v{F}, v{d1}, 6
        v_lshl_add_u32 v{F}, v{F}, 2, v{ad}
        ds_write_b32 v{F}, v{w0}
        """)
A(f"""
L_sc3:
s_mov_b64 exec, -1
v_cmp_le_u32 vcc, {hex(NCAP << 26)}, v20
s_cbranch_vccz L_C2
""")
lds_or(C_ABORT, 1)
A("s_branch L_C2")
spot(True)

A(f"""
;@g0
L_Gcont:
;@spot
s_mov_b32 s23, 0
{f'ds_read_b32 v24, v42 offset:{C_SLOT}' if ROT else ''}
""")
common()
ts(21)
GSL = f's_waitcnt lgkmcnt(0)\nv_readfirstlane_b32 s1, v24\n{RA(60)}\n{RA(34)}' if ROT else ''
A(f"""
v_lshrrev_b32 v4, 4, v0
v_bfe_u32 v5, v0, 2, 2
v_lshl_add_u32 v5, v4, 3, v5
v_lshlrev_b32 v2, 6, v5
v_lshl_add_u32 v2, v3, 3, v2
v_and_b32 v5, 1, v4
v_lshl_add_u32 v2, v5, 5, v2
v_add_u32 v2, s59, v2
v_xor_b32 v3, 32, v2
v_and_b32 v5, 15, v0
v_xor_b32 v6, v4, v5
v_lshlrev_b32 v6, 4, v6
v_lshl_add_u32 v16, v5, 8, v6
v_add_u32 v16, {XB}, v16
v_xor_b32 v17, 64, v16
v_xor_b32 v18, 0x80, v16
v_xor_b32 v19, 0xc0, v16
;@spot
v_lshlrev_b32 v6, 9, v5
v_lshl_add_u32 v6, v4, 4, v6
s_lshl_b32 s56, s3, 6
v_add_u32 v6, s56, v6
v_mul_u32_u24 v7, {QROW}, v5
v_lshl_add_u32 v7, v4, 5, v7
s_and_b32 s56, s3, 1
s_lshl_b32 s56, s56, 4
s_and_b32 s57, s3, 2
s_lshl_b32 s57, s57, 6
s_add_u32 s56, s56, s57
s_add_u32 s56, s56, s59
v_add_u32 v7, s56, v7
;@spot
s_mov_b32 s32, s24
s_mov_b32 s33, s25
s_lshl_b32 s34, s50, 9
s_add_u32 s34, s34, {PB0}
s_mov_b32 s35, 0x00020000
s_mov_b32 s92, {NLOG2E}
s_lshl_b32 s60, s49, 9
s_add_u32 s60, s60, {PB0}
{GSL}
""")
tailb(3, 64)
A("s_sub_u32 s56, s64, s59\nv_add_u32 v20, s56, v2\nv_add_u32 v21, s56, v3")
ts(22); spot()
AF = 96; BFQ = ((44, 48, 52, 56), (68, 80, 88, 92)); ACC = (8, 24); PK = (32, 36, Nn(0), Dd(0), Nn(1), Dd(1), Nn(2))
def afrags(offs=(0, 2048, 4096, 6144)):
    for s in range(4):
        for a in range(2):
            for hf in range(2):
                r = AF + a*16 + s*4 + hf*2
                A(f"ds_read_b64_tr_b16 v[{r}:{r+1}], v{(2 if offs[s] >= 0 else 20)+a} offset:{max(offs[s], 0)+256*hf}")
def bfrQ(t):
    for s in range(4):
        r = BFQ[t & 1][s]
        A(f"ds_read_b128 v[{r}:{r+3}], v{16+s} offset:{4096*t}")
def grab(f, *a):
    n = len(L); f(*a); r = L[n:]; del L[n:]; return r
GP = OPT.get('GPRIO', '2211')
def gemm(post, nw, tail=None, pr='00'):
    for t in range(7):
        spot()
        if t == 0 or (t == OPT.get('GPT', 4) and pr[0] != pr[1]): A(f"s_setprio {pr[min(t, 1)]}")
        A(f"s_waitcnt lgkmcnt({nw if t > 1 else 0})")
        rd = grab(bfrQ, t+1) if t < 6 else []
        po = grab(post, t-1) if t > 0 else []
        gaps = [rd[0:2], rd[2:4]] + [[] for _ in range(6)]
        g = 2; c = 0
        for x in po:
            gaps[g].append(x)
            if not x.strip().startswith('s_'): c += 1
            if c == FPG and g < 7: g += 1; c = 0
        for s in range(4):
            for a in range(2):
                c = ACC[t & 1] + 4*a; ar = AF + a*16 + s*4; br = BFQ[t & 1][s]
                A(f"v_mfma_f32_16x16x32_bf16 v[{c}:{c+3}], v[{ar}:{ar+3}], v[{br}:{br+3}], " + ("0" if s == 0 else f"v[{c}:{c+3}]"))
                L.extend(gaps[2*s+a])
        if nw and t == OPT['PUBT'] + 1: pubA()
    if tail: tail()
    post(6)
FPG = OPT.get('FPG', 2); SPT = OPT.get('SPT', 1)
def pst(t):
    o = PK[t]
    if not OPT.get('NOST'): A(f"buffer_store_dwordx4 v[{o}:{o+3}], v6, s[32:35], s60 offen {SC}\ns_add_u32 s60, s60, 8192")
def postP(t):
    c = ACC[t & 1]; o = PK[t]
    for i in range(4):
        A(f"v_mul_f32 v{c+2*i}, s92, v{c+2*i}\nv_mul_f32 v{c+2*i+1}, s92, v{c+2*i+1}")
        if i: A(f"v_cvt_pk_bf16_f32 v{o+i-1}, v{c+2*i-2}, v{c+2*i-1}")
    A(f"v_cvt_pk_bf16_f32 v{o+3}, v{c+6}, v{c+7}")
    if t < EP: pst(t)
def postQ(t):
    c = ACC[t & 1]
    if t == 6: A("s_mov_b32 exec_lo, 0x00030003\ns_mov_b32 exec_hi, 0x00030003")
    A(f"ds_write_b128 v7, v[{c}:{c+3}] offset:{2304*t}\nds_write_b128 v7, v[{c+4}:{c+7}] offset:{2304*t+16}")
    if t == 6: A("s_mov_b64 exec, -1")
    for i in range(SPT):
        if EP + SPT*t + i < 7: pst(EP + SPT*t + i)
A(f"""
s_add_u32 s63, s54, 1
s_lshl_b32 s63, s63, 3
v_mov_b32 v4, 1
s_mov_b64 exec, 1
s_waitcnt vmcnt(0)
ds_add_u32 v42, v4 offset:{C_X}
s_mov_b64 exec, -1
""")
ts(2); spot()
lds_spin(C_X, 56, "s_cmp_ge_u32 s56, s63", "L_xok")
A("L_xok:")
ts(3); spot()
if DG: A("s_memtime s[100:101]\ns_waitcnt lgkmcnt(0)\nv_writelane_b32 v41, s100, 46"); ts(14)
afrags()
bfrQ(0)
A("s_cmp_eq_u32 s54, 0\ns_cbranch_scc1 L_nowb")
wdma(65536, 6, 8192)
wdma(65536+6*8192, 2, 0, 1, 64)
A("s_waitcnt vmcnt(0)\nL_nowb:")
def mid():
    lds_spin(C_WB, 56, "s_cmp_ge_u32 s56, 8", "L_wbok")
    A("L_wbok:")
    ts(5)
    afrags((8192, 10240, 12288, -1)); bfrQ(0)
gemm(postP, 0, mid, GP[0:2])
ts(4); spot()
def pubA():
    A(f"""
    s_cmp_lg_u32 s54, 0
    s_cbranch_scc1 L_nopub
    s_mov_b64 exec, 1
    v_mov_b32 v4, 1
    s_waitcnt vmcnt(0)
    ds_add_rtn_u32 v5, v42, v4 offset:{C_PA}
    s_waitcnt lgkmcnt(0)
    v_readfirstlane_b32 s57, v5
    s_cmp_lg_u32 s57, 7
    s_cbranch_scc1 L_nopub
    """)
    signal(1, 5, 4, 56)
    A("L_nopub:\ns_mov_b64 exec, -1")
    ts(25)
gemm(postQ, 2, None, GP[2:4])
A('s_setprio 0')
ts(7)
prep()
if OPT['PUBT'] == 6: pubA()
ts(6); spot()
if DG: A("s_memtime s[100:101]\ns_waitcnt lgkmcnt(0)\nv_writelane_b32 v41, s100, 47"); ts(15)
A(f"""
s_cmp_lg_u32 s54, 0
s_cbranch_scc1 L_recovG
v_and_b32 v9, 3, v0
v_mul_u32_u24 v9, 112, v9
v_mov_b32 v14, 0
v_mov_b32 v15, 0
s_waitcnt lgkmcnt(0)
""")
A(';@g1')
ts(8); spot()
if DG: A("s_branch L_fin")
bar()
ts(9); spot()
A(f"ds_read_b32 v10, v40 offset:{KEY}")
for q in range(7): A(f"ds_read_b128 v[{96+4*q}:{99+4*q}], v9 offset:{KEY+16*q}")
pairs = (96, 98, 56, 60)
for q in range(7):
    spot()
    A(f"s_waitcnt lgkmcnt({6-q})")
    for i in range(4): A(f"v_cmp_gt_u32 s[{pairs[i]}:{pairs[i]+1}], v{96+4*q+i}, v10")
    for i in range(4): A(f"v_addc_co_u32 v{14+(i&1)}, vcc, 0, v{14+(i&1)}, s[{pairs[i]}:{pairs[i]+1}]")
A("v_add_u32 v15, v14, v15")
dpp_add(15, "quad_perm:[1,0,3,2]", "row_mask:0xf bank_mask:0xf")
dpp_add(15, "quad_perm:[2,3,0,1]", "row_mask:0xf bank_mask:0xf")
A(f"""
v_lshlrev_b32 v15, 2, v15
ds_write_b32 v15, v10 offset:{SORT}
L_C2:
s_waitcnt lgkmcnt(0)
""")
ts(10); spot()
bar()
ts(11); spot()
MSK = (1 << 12) | (1 << 13) | (1 << 14) | (1 << 18)
LOV = sum(1 << s for s in range(3, 15)) | (1 << 18)
A(f"""
L_B4:
ds_read_b64 v[4:5], v32 offset:{SORT}
ds_read_b32 v43, v42 offset:{C_ABORT}
ds_read_b32 v36, v36 offset:{SORT}
ds_read_b32 v37, v37 offset:{SORT}
ds_read_b32 v38, v38 offset:{SORT}
s_mul_i32 s59, s3, {LW}
s_add_u32 s59, s59, {WL}
v_lshl_add_u32 v6, v0, 2, s59
v_mov_b32 v8, 0
v_mov_b32 v{VN}, 0
ds_write2st64_b32 v6, v8, v8 offset0:0 offset1:1
;@spot
s_mov_b32 s96, {hex(MSK)}
s_mov_b32 s97, 0
s_cmp_eq_u32 s3, 0
s_movk_i32 s98, 0x7fff
s_cselect_b32 s98, {hex(0x7fff | 1 << 15 | 1 << 18)}, s98
s_mov_b32 s99, 0
s_movk_i32 s60, {-NCAP}
s_movk_i32 s61, 8193
s_waitcnt lgkmcnt(4)
v_cndmask_b32 v7, v5, v4, s[96:97]
v_bfe_u32 v9, v4, v33, 6
v_bfe_u32 v11, v4, v34, 6
v_bfe_u32 v12, v5, v34, 6
v_bfe_u32 v10, v7, v33, 6
s_mov_b64 exec, {hex(LOV)}
v_min_u32 v8, v11, v12
s_mov_b64 exec, s[98:99]
v_min_u32 v9, v9, v10
v_sub_u32 v{VN}, v9, v8
s_mov_b64 exec, -1
v_mov_b32 v10, v{VN}
v_and_b32 v11, 127, v4
v_and_b32 v12, 127, v7
""")
dpp_add(10, "row_shr:1")
A("v_lshl_add_u32 v11, v12, 13, v11\nv_readfirstlane_b32 s55, v43")
dpp_add(10, "row_shr:2")
A(f"v_mad_i32_i24 v11, v11, s60, v35\nv_cmp_lt_u32 vcc, 0, v{VN}")
dpp_add(10, "row_shr:4")
A(f"v_lshl_add_u32 v13, v0, 3, s59\nv_lshrrev_b32 v1, 5, v0")
dpp_add(10, "row_shr:8")
A(f"v_mul_u32_u24 v1, {HL}, v1\nv_add_u32 v1, s59, v1")
dpp_add(10, "row_bcast:15", "row_mask:0xa bank_mask:0xf")
A(f"""
v_sub_u32 v12, v10, v{VN}
v_sub_u32 v9, v9, v10
v_readlane_b32 s58, v10, 20
v_lshl_add_u32 v12, v12, 2, s59
v_mad_i32_i24 v11, v9, s61, v11
s_sub_u32 s56, s58, 1
s_cmp_lt_u32 s56, {HL//8 - R}
s_cbranch_scc1 L_capok
s_or_b32 s55, s55, 4
L_capok:
;@spot
""")
if OPT['FORCE_SAFE']: A("s_or_b32 s55, s55, 1")
A(f"""
s_cmp_lg_u32 s55, 0
s_cbranch_scc1 L_nolist
s_mov_b64 exec, vcc
ds_write_b32 v12, v11
s_mov_b64 exec, -1
ds_read2st64_b32 v[10:11], v6 offset0:0 offset1:1
v_min_u32 v9, s56, v0
s_mov_b32 s57, {NL - 4*BIAS}
v_lshl_add_u32 v9, v9, 2, s57
s_movk_i32 s60, 512
s_waitcnt lgkmcnt(0)
""")
def fill(v, pm, ex=None, off=0):
    for c in ("row_shr:1", "row_shr:2", "row_shr:4", "row_shr:8"): dpp("v_max_u32", v, c)
    dpp("v_max_u32", v, "row_bcast:15", "row_mask:0xa bank_mask:0xf")
    dpp("v_max_u32", v, "row_bcast:31", "row_mask:0xc bank_mask:0xf")
    if ex: A(f"s_mov_b64 exec, {ex}")
    A(f"""
    v_and_b32 v14, 0x1fff, v{v}
    v_bfe_u32 v15, v{v}, 13, 13
    v_lshl_add_u32 v14, v14, 2, v{pm}
    v_lshl_add_u32 v15, v15, 2, v{pm}
    ds_read_b32 v14, v14
    ds_read_b32 v15, v15
    s_waitcnt lgkmcnt(1)
    v_mad_u32_u16 v16, v14, s60, s60
    v_and_b32 v14, s26, v14
    ds_write2_b32 v13, v16, v14 offset0:{off} offset1:{off+2*R+1}
    s_waitcnt lgkmcnt(1)
    v_mad_u32_u16 v17, v15, s60, 0
    v_and_b32 v15, s26, v15
    ds_write2_b32 v13, v17, v15 offset0:{off+HL//4} offset1:{off+HL//4+2*R+1}
    """)
fill(10, 9)
A(f"s_cmp_gt_u32 s58, {64-R}\ns_cbranch_scc1 L_fill2\nL_filled:\nL_nolist:")
A(f"""
ds_read_b128 v[8:11], v1
ds_read_b128 v[12:15], v1 offset:16
ds_read_b128 v[16:19], v1 offset:32
ds_read_b128 v[20:23], v1 offset:48
""")
ts(12); spot()
A(f"""
s_movk_i32 s60, {-QROW}
v_and_b32 v36, 127, v36
v_and_b32 v37, 127, v37
v_and_b32 v38, 127, v38
v_mad_i32_i24 v36, v36, s60, v39
v_mad_i32_i24 v37, v37, s60, v39
v_mad_i32_i24 v38, v38, s60, v39
s_bitcmp1_b32 s55, 1
s_cbranch_scc1 L_recover
s_cmp_lg_u32 s3, 15
s_cbranch_scc1 L_pfdone
s_cmp_lg_u32 s54, 0
s_cbranch_scc1 L_pfdone
s_mov_b32 s56, 0
s_mov_b64 exec, 0xff00
v_mov_b32 v55, 1
L_pfp:
s_waitcnt vmcnt(0)
v_cmp_ne_u32 vcc, v54, v53
""")
if OPT['FORCE_RECOV'] != 1: A("s_cbranch_vccz L_pfok\ns_mov_b64 exec, vcc"); dbg(56, 1, 54, "L_pfok")
A(f"""
buffer_load_dword v54, v52, s[44:47], s23 offen sc1
s_add_u32 s56, s56, 1
s_cmp_lt_u32 s56, {2 if OPT['FORCE_RECOV'] == 1 else POLLMAX}
s_cbranch_scc1 L_pfp
v_mov_b32 v55, 2
L_pfok:
ds_write_b32 v42, v55 offset:{C_PFA}
s_mov_b64 exec, -1
""")
if TS: A("v_writelane_b32 v41, s56, 41")
A(f"L_pfdone:\nds_read_b32 v43, v42 offset:{C_PFA}")
def gather(p, idx):
    A(f"buffer_load_dwordx4 v[{RING[p]}:{RING[p]+3}], v{idx}, s[40:43], {'s1' if ROT else '0'} offen {SC}")
for k in range(NS): A(f"ds_read_b128 v[{Q(k)}:{Q(k)+3}], v{36+(k>>1)} offset:{16*(k&1)}")
A(f"""
v_lshrrev_b32 v32, 26, v4
v_lshrrev_b32 v33, 26, v5
v_and_b32 v4, 127, v4
v_and_b32 v5, 127, v5
v_lshl_or_b32 v32, v32, 8, v4
v_lshl_or_b32 v33, v33, 8, v5
s_mul_i32 s80, s3, 6
s_min_u32 s56, s3, 1
s_lshl1_add_u32 s80, s56, s80
s_lshl_b32 s56, s80, 2
v_min_u32 v34, 3, v0
v_lshl_add_u32 v34, v34, 3, s56
s_and_b32 s98, s98, 0x8007
s_waitcnt lgkmcnt(6)
v_readfirstlane_b32 s82, v43
s_cmp_lg_u32 s55, 0
s_cselect_b32 s82, 0, s82
s_cmp_lg_u32 s82, 1
s_cbranch_scc1 L_noring
""")
for p, idx in enumerate((8, 10, 12, 14)): gather(p, idx)
ts(13)
A(f"""
L_noring:
;@spot
s_mov_b64 exec, s[98:99]
ds_write_b64 v34, v[32:33] offset:{ROWI}
s_mov_b64 exec, -1
v_and_b32 v34, 31, v0
v_lshlrev_b32 v34, 5, v34
s_cmp_lg_u32 s3, 0
s_cbranch_scc1 L_noq3
v_readlane_b32 s56, v4, 15
v_readlane_b32 s57, v5, 15
v_mov_b32 v35, s56
s_mov_b32 exec_lo, 0
v_mov_b32 v35, s57
s_mov_b32 exec_lo, -1
v_mad_i32_i24 v35, v35, s60, v39
ds_read_b128 v[{Nn(4)}:{Nn(4)+3}], v35
ds_read_b128 v[{Dd(4)}:{Dd(4)+3}], v35 offset:16
L_noq3:
;@spot
ds_read_b128 v[{Nn(5)}:{Nn(5)+3}], v34 offset:{CB}
ds_read_b128 v[{Dd(5)}:{Dd(5)+3}], v34 offset:{CB+16}
ds_read_b128 v[{WA}:{WA+3}], v34 offset:{CW}
ds_read_b128 v[{WB}:{WB+3}], v34 offset:{CW+16}
v_and_b32 v35, 3, v0
v_lshlrev_b32 v35, 4, v35
v_mov_b32 v36, 0x3f80
v_mov_b32 v37, 0
v_lshlrev_b64 v[2:3], v35, v[36:37]
v_mov_b32 v43, 1
s_mov_b32 s60, 1.0
s_mov_b32 s61, 1.0
s_mov_b32 s56, {NLOG2E}
s_mov_b32 s57, {NLOG2E}
s_mov_b32 s71, 0
s_mov_b32 s83, 0
""")
srd(28, 16, 65536)
LATE = [Nn(4), Dd(4), Nn(5), Dd(5)]
initnd([r for r in ALLND if r not in LATE])
A(f"s_waitcnt lgkmcnt(2)\ns_mov_b64 exec, 1\nds_add_u32 v42, v43 offset:{C_Q}\ns_mov_b64 exec, -1")
ts(28); spot()
def qscale(r, a):
    b = (Nn(5), Dd(5))[a]
    A(f"v_pk_fma_f32 v[{r}:{r+1}], v[{r}:{r+1}], s[56:57], v[{b}:{b+1}]\nv_pk_fma_f32 v[{r+2}:{r+3}], v[{r+2}:{r+3}], s[56:57], v[{b+2}:{b+3}]")
for k in range(NS): qscale(Q(k), k & 1)
A(f"""
s_cmp_lg_u32 s3, 0
s_cbranch_scc1 L_noq3b
s_mov_b32 s58, {Q3P}
v_lshl_add_u32 v35, v0, 4, s58
""")
qscale(Nn(4), 0); qscale(Dd(4), 1)
A(f"""
ds_write_b128 v35, v[{Nn(4)}:{Nn(4)+3}]
ds_write_b128 v35, v[{Dd(4)}:{Dd(4)+3}] offset:1024
s_waitcnt lgkmcnt(0)
L_noq3b:
;@spot
""")
initnd(LATE)
A("s_cmp_eq_u32 s82, 1\ns_cbranch_scc1 L_ringd")
lds_spin(C_PFA, 57, "s_cmp_lg_u32 s57, 0", "L_pfseen", tmp=56)
A("L_pfseen:\ns_cmp_lg_u32 s57, 1\ns_cbranch_scc1 L_recover\ns_cmp_lg_u32 s55, 0\ns_cbranch_scc1 L_safe0")
for p, idx in enumerate((8, 10, 12, 14)): gather(p, idx)
ts(13)
A(f"""
L_ringd:
s_waitcnt lgkmcnt(0)
s_setprio {OPT['PRIO'][0]}
""")
ts(14); spot()
if TS: A("s_memtime s[100:101]\ns_waitcnt lgkmcnt(0)\nv_writelane_b32 v41, s100, 46")
SEL = "op_sel:[1,0,0] op_sel_hi:[1,1,1]"
TT = (8, 32)
def H1a(k, p):
    q = Q(k); a = k & 1; pr = 16 + 2*p; t = TT[a]; w = (WA, WB)[a]
    if a == 0 and p % 2 == 0: A("s_waitcnt lgkmcnt(1)")
    A(f"""
    v_pk_fma_f32 v[{t}:{t+1}], v[{pr}:{pr+1}], v[{w}:{w+1}], v[{q}:{q+1}] {SEL}
    v_pk_fma_f32 v[{t+2}:{t+3}], v[{pr}:{pr+1}], v[{w+2}:{w+3}], v[{q+2}:{q+3}] {SEL}
    """)
def H1b(k, p):
    a = k & 1; qd = 16 + 4*(p >> 1); pr = 16 + 2*p; rg = RING[p] + 2*a; t = TT[a]
    if a == 0: A(f"s_waitcnt vmcnt({R-1})\ns_sub_u32 s56, s56, 1")
    A(f"v_mfma_f32_4x4x4_16b_bf16 v[{t}:{t+3}], v[2:3], v[{rg}:{rg+1}], v[{t}:{t+3}]")
    if a == 1:
        gather(p, pr)
        if p % 2 == 1: A(f"ds_read_b128 v[{qd}:{qd+3}], v1 offset:{64+16*(p>>1)}")
        if p == 3: A("v_add_u32 v1, 32, v1")
def H2a(k):
    t = TT[k & 1]
    if OPT.get('NOV'): return
    A(f"v_exp_f32 v12, v{t}\nv_exp_f32 v13, v{t+1}")
def H2b(k):
    n, d = Nn(k), Dd(k); t = TT[k & 1]
    if OPT.get('NOV'): return
    A(f"""
    v_exp_f32 v14, v{t+2}
    v_exp_f32 v15, v{t+3}
    v_pk_fma_f32 v[{t}:{t+1}], v[{t}:{t+1}], v[{d}:{d+1}], v[{n}:{n+1}]
    v_pk_fma_f32 v[{t+2}:{t+3}], v[{t+2}:{t+3}], v[{d+2}:{d+3}], v[{n+2}:{n+3}]
    v_pk_fma_f32 v[{d}:{d+1}], v[{d}:{d+1}], v[12:13], v[{d}:{d+1}]
    v_pk_fma_f32 v[{n}:{n+1}], v[{n}:{n+1}], v[12:13], v[{t}:{t+1}]
    v_pk_fma_f32 v[{d+2}:{d+3}], v[{d+2}:{d+3}], v[14:15], v[{d+2}:{d+3}]
    v_pk_fma_f32 v[{n+2}:{n+3}], v[{n+2}:{n+3}], v[14:15], v[{t+2}:{t+3}]
    """)
def H2(k): H2a(k); H2b(k)
HK = OPT['HOOK']; PR = OPT['PRIO']
def wrap(p):
    A(f"""
    L_E3_{p}:
    s_mov_b32 s57, {p}
    """)
    if TS: A("s_memrealtime s[100:101]\ns_add_u32 s58, s71, 45\ns_min_u32 s58, s58, 63\ns_mov_b32 m0, s58\ns_waitcnt lgkmcnt(0)\nv_writelane_b32 v41, s100, m0")
    A(f"""
    s_cmp_eq_u32 s71, 3
    s_cbranch_scc1 L_wrap1
    s_setprio {PR[2]}
    s_cmp_eq_u32 s71, 6
    s_cbranch_scc1 L_E0_{p}
    s_setprio {PR[3]}
    s_cmp_eq_u32 s71, 9
    s_cbranch_scc1 L_E0_{p}
    s_mov_b32 exec_hi, 0
    s_cmp_eq_u32 s71, 12
    s_cbranch_scc1 L_E0_{p}
    s_cmp_eq_u32 s71, 18
    s_cbranch_scc1 L_E0_{p}
    s_mov_b32 exec_hi, -1
    s_cmp_lg_u32 s3, s83
    s_cbranch_scc1 L_flush
    s_branch L_rs{p}
    """)
    spot(True)
for p in range(4):
    for q in range(3):
        if q > 0:
            A(f"L_T{q-1}_{p}:"); H2(2*q-1)
        A(f"L_E{q}_{p}:")
        if q == HK: A(f"s_mov_b32 s57, {p}\ns_cmp_eq_u32 s71, {3+HK}\ns_cbranch_scc1 L_hk1\nL_H_{p}:")
        A(f"v_readlane_b32 s56, v{VN}, s71\ns_add_u32 s71, s71, 1\ns_sub_u32 s56, s56, 1\ns_cbranch_scc1 L_E{q+1}_{p}")
        H1a(2*q, p); H1a(2*q+1, p); H1b(2*q, p); H1b(2*q+1, p); H2(2*q)
        A(f"s_cbranch_scc0 L_B{q}_{(p+1)&3}\ns_branch L_T{q}_{(p+1)&3}")
        spot(True)
    A(f"L_T2_{p}:"); H2(5)
    wrap(p)
for q in range(3):
    for p in range(4):
        A(f"L_B{q}_{p}:")
        H1a(2*q, p); H1b(2*q, p); H2(2*q+1); H1a(2*q+1, p); H2a(2*q); H1b(2*q+1, p); H2b(2*q)
        A(f"s_cbranch_scc1 L_T{q}_{(p+1)&3}")
    A(f"s_branch L_B{q}_0")
    spot(True)
A(f"""
L_hk1:
s_mov_b64 exec, 1
v_mov_b32 v43, 1
s_waitcnt vmcnt(0)
ds_add_u32 v42, v43 offset:{C_W2}
s_mov_b64 exec, -1
""")
ts(27)
for p in range(4): A(f"s_cmp_eq_u32 s57, {p}\ns_cbranch_scc1 L_H_{p}")
A(f"""
s_branch L_safe
L_wrap1:
s_setprio {PR[1]}
L_wrap1b:
""")
ts(26); spot()
A(f"""
v_lshrrev_b32 v37, 4, v0
v_lshlrev_b32 v38, 2, v37
v_and_b32 v39, 15, v0
v_xor_b32 v38, v38, v39
v_lshlrev_b32 v38, 4, v38
v_lshl_add_u32 v38, v37, 8, v38
""")
lds_spin(C_Q, 60, "s_cmp_ge_u32 s60, 16", "L_qrd")
A(f"L_qrd:\ns_lshl_b32 s58, s3, 12\ns_add_u32 m0, s58, {QB}")
for i in range(4): A(f"buffer_load_dwordx4 v38, s[28:31], s58 offen offset:{1024*i} lds")
for p in range(4): A(f"s_cmp_eq_u32 s57, {p}\ns_cbranch_scc1 L_E0_{p}")
A("s_branch L_hk1")
spot(True)
for p in range(4):
    A(f"""
    L_rs{p}:
    v_readfirstlane_b32 s58, v1
    s_add_u32 s58, s58, {HL}
    s_mov_b32 exec_lo, 0
    v_mov_b32 v1, s58
    s_mov_b32 exec_lo, -1
    ds_read_b128 v[16:19], v1 offset:{32 if p < 2 else 64}
    ds_read_b128 v[20:23], v1 offset:48
    s_mov_b32 s81, {p}
    ds_read2_b32 v[36:37], v1 offset0:{2*p} offset1:{2*p+2}
    ds_read2_b32 v[38:39], v1 offset0:{2*p+4} offset1:{2*p+6}
    s_waitcnt lgkmcnt(0)
    """)
    for i in range(4): gather((p+i) & 3, 36+i)
    if p < 3: A("s_branch L_flush")
A("L_flush:\ns_waitcnt lgkmcnt(0)")
ts(15); spot()
if TS: A("s_memtime s[100:101]\ns_waitcnt lgkmcnt(0)\nv_writelane_b32 v41, s100, 47")
A(f"""
v_lshrrev_b32 v36, 5, v0
v_add_u32 v36, s80, v36
v_mul_u32_u24 v36, {HROW}, v36
v_bfe_u32 v37, v0, 2, 3
v_lshl_add_u32 v36, v37, 6, v36
v_and_b32 v37, 3, v0
v_lshl_add_u32 v36, v37, 3, v36
v_add_u32 v36, {HSB}, v36
s_cmp_lg_u32 s83, 0
s_cbranch_scc1 L_flush2
""")
def guard(ks, ok):
    for k in ks:
        if k == ks[0]: A(f"v_pk_mul_f32 v[32:33], v[{Nn(k)}:{Nn(k)+1}], v[{Dd(k)}:{Dd(k)+1}]\nv_pk_mul_f32 v[34:35], v[{Nn(k)+2}:{Nn(k)+3}], v[{Dd(k)+2}:{Dd(k)+3}]")
        else: A(f"v_pk_fma_f32 v[32:33], v[{Nn(k)}:{Nn(k)+1}], v[{Dd(k)}:{Dd(k)+1}], v[32:33]\nv_pk_fma_f32 v[34:35], v[{Nn(k)+2}:{Nn(k)+3}], v[{Dd(k)+2}:{Dd(k)+3}], v[34:35]")
    A(f"""
    v_pk_add_f32 v[32:33], v[32:33], v[34:35]
    v_add_f32 v32, v32, v33
    v_mov_b32 v33, 0x207
    v_cmp_class_f32 vcc, v32, v33
    s_cmp_lg_u32 s55, 0
    s_cbranch_scc1 {ok}
    """)
    if OPT['FORCE_GUARD'] == 1 and len(ks) > 2: A("s_bitcmp0_b32 s3, 0\ns_cbranch_scc1 L_safe")
    if OPT['FORCE_GUARD'] == 2 and len(ks) == 2: A("s_branch L_safe")
    A(f"s_cbranch_vccnz L_safe\n{ok}:")
def hout(k, off):
    spot()
    n, d = Nn(k), Dd(k); o = 8 + 2*(k & 1)
    for i in range(4): A(f"v_rcp_f32 v{d+i}, v{d+i}")
    A(f"""
    v_pk_mul_f32 v[{n}:{n+1}], v[{n}:{n+1}], v[{d}:{d+1}]
    v_pk_mul_f32 v[{n+2}:{n+3}], v[{n+2}:{n+3}], v[{d+2}:{d+3}]
    v_cvt_pk_bf16_f32 v{o}, v{n}, v{n+1}
    v_cvt_pk_bf16_f32 v{o+1}, v{n+2}, v{n+3}
    ds_write_b64 v36, v[{o}:{o+1}] offset:{off}
    """)
guard(list(range(NS)), "L_fl2")
spot()
for k in range(NS): hout(k, 2*HROW*(k >> 1) + 32*(k & 1))
A(f"""
s_cmp_lg_u32 s3, 0
s_cbranch_scc1 L_fl3
s_mov_b32 s58, {Q3P}
v_lshl_add_u32 v37, v0, 4, s58
ds_read_b128 v[{Q(0)}:{Q(0)+3}], v37
ds_read_b128 v[{Q(1)}:{Q(1)+3}], v37 offset:1024
s_mov_b32 s60, 1.0
s_mov_b32 s61, 1.0
s_mov_b32 s83, 1
""")
initnd([Nn(0), Dd(0), Nn(1), Dd(1)])
A("s_waitcnt lgkmcnt(0)\ns_cmp_lg_u32 s55, 0\ns_cbranch_scc1 L_safe")
for p in range(3): A(f"s_cmp_eq_u32 s81, {p}\ns_cbranch_scc1 L_E0_{p}")
A("s_branch L_E0_3")
spot(True)
A("L_flush2:")
guard([0, 1], "L_fl2b")
for k in range(2): hout(k, 2*HROW*3 + 32*k)
A("L_fl3:")
ts(16); spot()
A(f"""
s_and_b32 s60, s3, 3
s_lshr_b32 s61, s3, 2
s_lshl_b32 s59, s61, 2
v_mov_b32 v2, s59
v_mov_b32 v3, 1
s_waitcnt lgkmcnt(0)
s_mov_b64 exec, 1
ds_add_u32 v2, v3 offset:{C_G}
s_mov_b64 exec, -1
v_lshrrev_b32 v4, 4, v0
v_and_b32 v5, 15, v0
s_lshl_b32 s56, s60, 6
v_lshl_add_u32 v6, v4, 4, s56
global_load_dwordx4 v[124:127], v6, s[18:19]
v_bfe_u32 v7, v0, 2, 2
v_lshl_add_u32 v1, v4, 3, v7
v_lshlrev_b32 v1, 8, v1
v_xor_b32 v7, s60, v7
v_lshl_add_u32 v1, v7, 6, v1
v_and_b32 v7, 3, v0
v_lshl_add_u32 v1, v7, 4, v1
""")
lds_spin(C_W2, 57, "s_cmp_ge_u32 s57, 16", "L_w2ok")
A("L_w2ok:\ns_waitcnt vmcnt(1)")
spot()
for s in range(8):
    for a in range(2):
        for hf in range(2):
            r = 44 + a*32 + s*4 + hf*2
            A(f"ds_read_b64_tr_b16 v[{r}:{r+1}], v1 offset:{QB+8192*s+1024*hf+8*a}")
A(f"""
s_mul_i32 s56, s61, 24
s_min_u32 s57, s61, 1
s_lshl1_add_u32 s56, s57, s56
v_add_u32 v5, s56, v5
v_lshlrev_b32 v3, 2, v5
v_mul_u32_u24 v1, {HROW}, v5
v_lshl_add_u32 v1, v4, 4, v1
v_add_u32 v1, {HSB}, v1
s_mov_b32 s32, s20
s_mov_b32 s33, s21
s_add_u32 s34, s51, s52
s_lshl_b32 s34, s34, 8
s_mov_b32 s35, 0x00020000
s_add_u32 s59, s51, 127
s_lshl_b32 s59, s59, 8
v_add_u32 v6, s59, v6
s_cmp_eq_u32 s61, 0
s_mov_b32 s96, 0x00ff00ff
s_cselect_b32 s96, 0x03ff03ff, s96
s_mov_b32 s97, s96
s_movk_i32 s59, -256
s_mov_b32 s56, {NLN2}
""")
ts(17); spot()
lds_spin(C_G, 57, "s_cmp_ge_u32 s57, 4", "L_gok", av=2)
A("L_gok:")
ts(18)
spot()
A(f"ds_read_b32 v42, v3 offset:{ROWI}\nds_read_b32 v43, v3 offset:{ROWI+64}")
BB = (108, 8)
def rd(qg):
    for t in range(2):
        for h in range(2):
            r = BB[qg & 1] + 8*t + 4*h
            A(f"ds_read_b128 v[{r}:{r+3}], v1 offset:{16*HROW*t + 64*(2*qg+h)}")
rd(0)
for qg in range(4):
    spot()
    if qg < 3: rd(qg+1); A(f"s_waitcnt lgkmcnt(4)")
    else: A("s_waitcnt lgkmcnt(0)")
    for h in range(2):
        s = 2*qg + h
        for t in range(2):
            for a in range(2):
                c = 24 + 8*t + 4*a; ar = 44 + a*32 + s*4; br = BB[qg & 1] + 8*t + 4*h
                A(f"v_mfma_f32_16x16x32_bf16 v[{c}:{c+3}], v[{ar}:{ar+3}], v[{br}:{br+3}], " + ("0" if s == 0 else f"v[{c}:{c+3}]"))
    if qg == 0:
        for t in range(2):
            A(f"v_and_b32 v{4+t}, 127, v{42+t}\nv_lshrrev_b32 v{42+t}, 8, v{42+t}\nv_mad_i32_i24 v{4+t}, v{4+t}, s59, v6\nv_cvt_f32_u32 v{42+t}, v{42+t}")
spot()
A("s_waitcnt vmcnt(0)")
for i in range(4):
    A(f"v_lshlrev_b32 v{44+2*i}, 16, v{124+i}\nv_and_b32 v{45+2*i}, s26, v{124+i}")
for t in range(2):
    for i in range(8): A(f"v_mul_f32 v{52+8*t+i}, v{42+t}, v{44+i}")
for t in range(2):
    c = 24 + 8*t
    for i in range(8): A(f"v_fma_f32 v{c+i}, v{c+i}, s56, v{52+8*t+i}")
    for i in range(4): A(f"v_cvt_pk_bf16_f32 v{68+4*t+i}, v{c+2*i}, v{c+2*i+1}")
    if t == 1: A("s_mov_b64 exec, s[96:97]")
    A(f"buffer_store_dwordx4 v[{68+4*t}:{71+4*t}], v{4+t}, s[32:35], 0 offen {OPT.get('OSC', '')}")
A("L_fin:")
if TS:
    A("s_mov_b64 exec, -1\ns_waitcnt vmcnt(0)")
    ts(19)
    A(f"""
    s_lshl_b32 s56, s2, 4
    s_add_u32 s56, s56, s3
    s_lshl_b32 s56, s56, 8
    s_add_u32 s56, s56, {WS_TS}
    v_lshlrev_b32 v1, 2, v0
    buffer_store_dword v41, v1, s[44:47], s56 offen
    """)
    if 'DIAG' in OPT:
        A(f"s_cmp_lg_u32 s3, {OPT.get('DW', 0)}\ns_cbranch_scc1 L_end\nv_readlane_b32 s56, v41, 0")
        if OPT['DIAG'] >= 100: A(f"s_mov_b32 s57, {OPT['DIAG']*100}")
        else: A(f"v_readlane_b32 s57, v41, {OPT['DIAG']}\ns_sub_u32 s57, s57, s56\ns_mul_i32 s57, s57, {OPT.get('DMUL', 10)}\ns_min_u32 s57, s57, 200000")
        A("""
        L_diag:
        s_sleep 4
        s_memrealtime s[100:101]
        s_waitcnt lgkmcnt(0)
        s_sub_u32 s58, s100, s56
        s_cmp_lt_u32 s58, s57
        s_cbranch_scc1 L_diag
        """)
A("L_end:\ns_endpgm")
A(";@cold")
A(f"""
L_fill2:
v_readlane_b32 s61, v10, 63
v_add_u32 v9, 64, v0
v_min_u32 v9, s56, v9
v_lshl_add_u32 v9, v9, 2, s57
v_add_u32 v13, 512, v13
v_max_u32 v11, s61, v11
""")
fill(11, 9, "0xffffffff")
A(f"""
s_mov_b64 exec, -1
s_branch L_filled
L_recover:
s_setprio 0
s_waitcnt vmcnt(0) lgkmcnt(0)
s_barrier
s_mov_b32 s54, 0
L_recov_step:
s_add_u32 s54, s54, 1
s_add_u32 s48, s2, s54
s_and_b32 s48, s48, 255
""")
bucket_range(48, 56, 49, 50)
A(f"""
s_cmp_lt_u32 s3, 8
s_cbranch_scc1 L_Gfirst
L_recovL:
s_barrier
L_recovG:
s_waitcnt vmcnt(0) lgkmcnt(0)
s_barrier
s_cmp_lt_u32 s54, 256
s_cbranch_scc1 L_recov_step
v_mov_b32 v43, 1
ds_write_b32 v42, v43 offset:{C_ABORT}
ds_write_b32 v42, v43 offset:{C_PFA}
v_mov_b32 v43, 0
ds_write_b32 v42, v43 offset:{C_W2}
ds_write_b32 v42, v43 offset:{C_Q}
""")
prep()
A(f"""
s_waitcnt lgkmcnt(0)
s_barrier
s_branch L_B4
L_safe0:
s_mov_b32 s57, 4
s_branch L_wrap1b
L_safe:
s_mov_b32 s55, 1
s_setprio 0
s_mov_b32 s60, 1.0
s_mov_b32 s61, 1.0
s_mul_i32 s73, s83, 6
s_add_u32 s73, s73, s80
s_lshl_b32 s73, s73, 2
v_lshl_add_u32 v23, v0, 2, s73
s_waitcnt vmcnt(0) lgkmcnt(0)
ds_read_b32 v22, v23 offset:{ROWI}
""")
initnd(ALLND)
srd(28, 10, E*4); srd(32, 8, E*4); srd(36, 6, E*2)
A(f"""
v_lshlrev_b32 v16, 2, v0
v_lshlrev_b32 v17, 1, v0
v_and_b32 v24, 31, v0
v_lshlrev_b32 v24, 4, v24
s_mov_b32 s72, 0
s_movk_i32 s74, {N-1}
s_waitcnt lgkmcnt(0)
v_and_b32 v22, 127, v22
v_sub_u32 v25, 127, v22
""")
for i in range(6): A(f"v_readlane_b32 s{64+i}, v25, {i}")
A("s_cmp_eq_u32 s83, 0\ns_cbranch_scc1 L_sloop")
for i in range(2, 6): A(f"s_mov_b32 s{64+i}, -1")
A(f"""
L_sloop:
s_lshl_b32 s56, s72, 1
buffer_load_dword v18, v16, s[28:31], s56 offen
buffer_load_dword v19, v16, s[32:35], s56 offen
buffer_load_ushort v20, v17, s[36:39], s72 offen
s_waitcnt vmcnt(0)
v_min_u32 v18, s74, v18
v_subrev_u32 v21, s51, v18
v_cmp_gt_u32 s[96:97], s52, v21
s_cmp_eq_u64 s[96:97], 0
s_cbranch_scc1 L_snext
v_mov_b32 v25, 6
""")
for i in range(6): A(f"v_cmp_eq_u32 vcc, s{64+i}, v21\nv_cndmask_b32 v25, v25, {i}, vcc")
A(f"""
v_cmp_gt_u32 vcc, 6, v25
s_and_b64 s[96:97], s[96:97], vcc
L_sbit:
s_mov_b64 exec, -1
s_cmp_eq_u64 s[96:97], 0
s_cbranch_scc1 L_snext
s_ff1_i32_b64 s56, s[96:97]
s_bitset0_b64 s[96:97], s56
v_readlane_b32 s57, v19, s56
v_readlane_b32 s58, v20, s56
v_readlane_b32 s60, v25, s56
s_min_u32 s57, s57, s74
s_lshl_b32 s57, s57, 9
{RA(57)}
s_lshl_b32 s58, s58, 16
s_mov_b32 s59, s58
buffer_load_dwordx4 v[28:31], v24, s[44:47], s57 offen offset:{PB0} sc1
s_lshl_b64 exec, 1, s60
v_add_u32 v22, 0x100, v22
s_bitcmp1_b32 s60, 0
s_cselect_b32 exec_lo, 0, -1
s_cselect_b32 exec_hi, -1, 0
s_lshr_b32 s60, s60, 1
s_waitcnt vmcnt(0)
""")
for qq in range(3):
    if qq < 2: A(f"s_cmp_lg_u32 s60, {qq}\ns_cbranch_scc1 L_sk{qq+1}")
    for a in range(2):
        k = 2*qq + a; q, n = Q(k), Nn(k); w = (WA, WB)[a]
        A(f"""
        v_pk_fma_f32 v[8:9], s[58:59], v[{w}:{w+1}], v[{q}:{q+1}]
        v_pk_fma_f32 v[10:11], s[58:59], v[{w+2}:{w+3}], v[{q+2}:{q+3}]
        v_mfma_f32_4x4x4_16b_bf16 v[8:11], v[2:3], v[{28+2*a}:{29+2*a}], v[8:11]
        v_exp_f32 v12, v8
        v_exp_f32 v13, v9
        v_exp_f32 v14, v10
        v_exp_f32 v15, v11
        v_pk_add_f32 v[12:13], v[12:13], 1.0 op_sel_hi:[1,0]
        v_pk_add_f32 v[14:15], v[14:15], 1.0 op_sel_hi:[1,0]
        v_rcp_f32 v12, v12
        v_rcp_f32 v13, v13
        v_rcp_f32 v14, v14
        v_rcp_f32 v15, v15
        v_pk_fma_f32 v[{n}:{n+1}], v[8:9], v[12:13], v[{n}:{n+1}]
        v_pk_fma_f32 v[{n+2}:{n+3}], v[10:11], v[14:15], v[{n+2}:{n+3}]
        """)
    A("s_branch L_sbit")
    if qq < 2: A(f"L_sk{qq+1}:")
A(f"""
L_snext:
s_add_u32 s72, s72, 128
s_cmp_lt_u32 s72, {2*E}
s_cbranch_scc1 L_sloop
s_cmp_eq_u32 s83, 0
s_cselect_b32 exec_lo, 63, 3
s_mov_b32 exec_hi, 0
ds_write_b32 v23, v22 offset:{ROWI}
s_mov_b64 exec, -1
L_last:
s_branch L_flush
""")

KAL = OPT.get('KAL', 12)
body, npad = pad(L, verbose=bool(OPT.get('V')))
hdr = open('standalone__edge_featured_mpnn_mpnn__graph.s.ref').read().split('; Override')[0]
def emit(body):
    out = hdr + f"; @launch grid=(256,1,1) block=(1024,1,1) lds={LDS}\n"
    out += f'.amdgcn_target "amdgcn-amd-amdhsa--gfx950"\n.text\n.globl {KN}\n.p2align {KAL}\n.type {KN},@function\n'
    out += "\n".join(body) + "\n"
    out += f""".section .rodata,"a"
.p2align 6
.amdhsa_kernel {KN}
  .amdhsa_next_free_vgpr 128
  .amdhsa_next_free_sgpr 102
  .amdhsa_accum_offset 128
  .amdhsa_group_segment_fixed_size 0
  .amdhsa_kernarg_size 88
  .amdhsa_user_sgpr_count 2
  .amdhsa_user_sgpr_kernarg_segment_ptr 1
  .amdhsa_system_sgpr_workgroup_id_x 1
.end_amdhsa_kernel
"""
    return out
import subprocess, re
def offsets(body):
    t = []; k = 0
    for b in body:
        if b.startswith(';@'): t.append(f"M_{k}:"); k += 1
        else: t.append(b)
    open('_m.s', 'w').write(emit(t))
    subprocess.run(["clang", "-x", "assembler", "-target", "amdgcn-amd-amdhsa", "-mcpu=gfx950", "-c", "_m.s", "-o", "_m.o"], check=True)
    o = subprocess.run(["llvm-objdump", "-t", "_m.o"], capture_output=True, text=True).stdout
    d = {int(m.group(2)): int(m.group(1), 16) for m in re.finditer(r"^([0-9a-f]+) .* M_(\d+)$", o, re.M)}
    return [d[i] for i in range(k)]
nb = []
for i, b in enumerate(body):
    nb.append(b)
    if b.strip().startswith('s_branch') and i+1 < len(body) and body[i+1].endswith(':'): nb.append(';@dead')
body = nb
def place(body, chosen, chains):
    out = []; k = 0
    for b in body:
        if not b.startswith(';@'): out.append(b); continue
        out.append(b)
        if k in chosen:
            n = chosen[k]
            out.append(f"L_stub{n}:"); out.append(f"    {'s_branch' if b == ';@dead' else 's_cbranch_execz'} {chains[n]}")
        if b in (';@hopB', ';@hopW') and chosen:
            ws = {';@hopB': range(8, 15), ';@hopW': (15,)}[b]
            if any(w in first for w in ws): out.append("    s_mov_b64 exec, 0")
            for w in ws:
                if w in first:
                    if b == ';@hopW': out.append(f"    s_branch L_stub{first[w]}")
                    else: out.append(f"    s_cmp_eq_u32 s3, {w}"); out.append(f"    s_cbranch_scc1 L_stub{first[w]}")
        k += 1
    return out
if OPT.get('WARM', 1):
    marks = [b for b in body if b.startswith(';@')]
    chosen = {}; chains = {}; first = {}
    COV = OPT.get('COV', 1024)
    for it in range(6):
        off = offsets(place(body, chosen, chains))
        g0 = off[marks.index(';@g0')]; g1 = off[marks.index(';@g1')]; b0 = off[marks.index(';@hopB')]
        sel = []; gap = 0
        for lo, hi, forced in ((b0, g0 - 64, 0), (g0 - 64, off[marks.index(';@cold')], 1)):
            cand = [k for k, m in enumerate(marks) if m in (';@spot', ';@dead') and lo <= off[k] < hi and m != ';@hopB']
            end = min((lo & ~127) + COV, (lo | 4095) + 1)
            if forced: sel.append(cand[0]); end = min((off[cand[0]] & ~127) + COV + 128, (off[cand[0]] | 4095) + 1)
            while end < hi:
                c = [k for k in cand if (off[k] & ~127) <= end and (not sel or off[k] > off[sel[-1]]) and (off[k] >> 12) == (end >> 12) and off[k] > end - 640]
                d = [k for k in c if marks[k] == ';@dead' and off[k] > end - 256]
                if d: k = d[-1]
                elif c: k = c[-1]
                else:
                    c = [k for k in cand if off[k] > end]
                    if not c: break
                    k = c[0]; gap += (off[k] & ~127) - end
                sel.append(k)
                end = min((off[k] & ~127) + COV + 128, (off[k] | 4095) + 1)
        new = {k: n for n, k in enumerate(sel)}
        per = {w: [] for w in range(8, 16)}; j = 0
        for n, k in enumerate(sel):
            if g0 - 64 <= off[k] < g1: per[15].append(n)
            else: per[8 + j % 7].append(n); j += 1
        first = {w: v[0] for w, v in per.items() if v}
        chains = {}
        for w, v in per.items():
            back = 'L_W15cont' if w == 15 else 'L_Bback'
            for i, n in enumerate(v): chains[n] = f"L_stub{v[i+1]}" if i+1 < len(v) else back
        if new == chosen: break
        chosen = new
    print("stubs", len(sel), "gap", gap, [hex(off[k]) + marks[k][2] for k in sel], hex(b0), hex(g0), hex(g1), hex(hi), file=sys.stderr)
    body = place(body, chosen, chains)
body = [b for b in body if not b.startswith(';@')]
open(OPT.get('OUT', 'k.s'), 'w').write(emit(body))
print("pads", npad, "lines", len(body), file=sys.stderr)
```

```python
import sys, os, struct
sys.path.insert(0, os.path.dirname(os.path.abspath(__file__)))
from asmlib import *

OPT = dict(TS=0, FORCE_SAFE=0, FORCE_RECOV=0, FORCE_GUARD=0, POLLMAX=6000, SLP=8, NT=1, PDELAY=8, LPRIO=2, PUBT=6, HOOK=1, EP=0, WBM=6,
           PRIO='3210')
for a in sys.argv[1:]:
    k, v = a.split('=')
    OPT[k] = int(v) if v.lstrip('-').isdigit() and k not in ('PRIO', 'GPRIO') else v
TS = OPT['TS']; POLLMAX = OPT['POLLMAX']; SLP = OPT['SLP']
SC = 'sc1'
KN = "standalone__edge_featured_mpnn_mpnn__graph_kernel"

def f32(x): return "0x%08x" % struct.unpack('<I', struct.pack('<f', x))[0]
NLOG2E = f32(-1.4426950408889634); NLN2 = f32(-0.6931471805599453)

N = 25000; E = 400000; CH = 1564
PB0 = 512
WS_REC = 0xD00000; REC_STRIDE = 12544; WS_OFF = 0x1040000; WS_PF = 0x1080000; WS_TS = 0x1500000; WS_SIZE = 0x2000000
QBLK = 14336; QROW = 144
CTR = 0; KEY = 256; SORT = 768; ROWI = 1280; CW = 2048; CB = 3072; QB = 4096
STG = QB + 8*QBLK; CNT = STG + 12544; START = CNT + 1024; XB = START + 1024; LDS = 163840
NL = STG; NCAP = 46; WL = NL + 98*NCAP*4; HL = 768; LW = 2*HL; Q3P = LDS - 2048
assert XB % 256 == 0 and XB + 28672 <= LDS and WL + 16*LW + 64 <= Q3P and WL % 16 == 0
C_REC, C_PA, C_GO, C_ABORT, C_W2, C_Q, C_PFA, C_X, C_S2, C_S3, C_WB = 0, 4, 8, 12, 16, 20, 28, 32, 40, 44, 48
TAIL7 = XB + 25600
TGT = 64
C_G = 192
C_SLOT = 60
ROT = OPT.get('ROT', 0); DBK = OPT.get('DBK', 4); DP = 's[0:1]'
EP = OPT['EP']; WBM = OPT['WBM']; assert OPT['PUBT'] >= 6 - EP and STG + 7*2048 <= XB
RA = lambda r: f's_add_u32 s{r}, s{r}, s1' if ROT else ''
HSB = QB + 65536; HROW = 528
assert HSB + 106*HROW <= WL
R = 4; NS = 6
SB0 = 56
def Q(k): return SB0 + 12*k
def Nn(k): return SB0 + 12*k + 4
def Dd(k): return SB0 + 12*k + 8
RING = (24, 28, 44, 48); WA = 4; WB = 52; VN = 40
SPIN = 0x100000
BIAS = 128
ASG = [[28, 34, 46, 48], [1, 29, 45], [10, 19, 37], [3, 24, 42], [0, 39, 47], [9, 25, 32], [2, 23, 44], [4, 20, 43], [8, 26, 30], [6, 21, 40], [5, 31, 33], [11, 18, 38], [12, 15, 36], [7, 16, 41], [13, 17, 35], [14, 22, 27]]
assert sorted(sum(ASG, [])) == list(range(49))

L = []
def A(s):
    for line in s.strip('\n').split('\n'):
        line = line.strip()
        if not line: continue
        L.append(line if line.endswith(':') or line.startswith(('.', ';')) else "    " + line)
def srd(r, lo, size, w3="0x00020000"):
    A(f"s_mov_b32 s{r}, s{lo}\ns_mov_b32 s{r+1}, s{lo+1}\ns_mov_b32 s{r+2}, {size}\ns_mov_b32 s{r+3}, {w3}")
def ts(i):
    if TS: A(f"s_memrealtime s[100:101]\ns_waitcnt lgkmcnt(0)\nv_writelane_b32 v41, s100, {i}")
def bar(): A("s_barrier")
def spot(dead=False): A(";@dead" if dead else ";@spot")
uid = [0]
def lab(p):
    uid[0] += 1; return f"L_{p}_{uid[0]}"
def dpp(op, v, ctl, m="row_mask:0xf bank_mask:0xf bound_ctrl:0"):
    A(f"{op}_dpp v{v}, v{v}, v{v} {ctl} {m}")
def dpp_add(v, ctl, m="row_mask:0xf bank_mask:0xf bound_ctrl:0"): dpp("v_add_u32", v, ctl, m)
def bucket_range(cur, b, n0, n1):
    A(f"""
    s_and_b32 s{b}, s{cur}, 7
    s_lshl_b32 s{b}, s{b}, 5
    s_lshr_b32 s27, s{cur}, 3
    s_or_b32 s{b}, s{b}, s27
    s_mul_i32 s{n0}, s{b}, 6400845
    s_add_u32 s{n0}, s{n0}, 65535
    s_add_u32 s{n1}, s{n0}, 6400845
    s_lshr_b32 s{n0}, s{n0}, 16
    s_lshr_b32 s{n1}, s{n1}, 16
    s_min_u32 s{n1}, s{n1}, {N}
    """)
def lds_or(off, val):
    A(f"v_mov_b32 v43, {val}\nds_or_b32 v42, v43 offset:{off}")
def lds_spin(off, dst, cmp_ok, ok, tmp=58, slp=1, av=42):
    l = lab('spin')
    A(f"""
    s_mov_b32 s{tmp}, 0
    {l}:
    ds_read_b32 v43, v{av} offset:{off}
    s_add_u32 s{tmp}, s{tmp}, 1
    s_waitcnt lgkmcnt(0)
    v_readfirstlane_b32 s{dst}, v43
    {cmp_ok}
    s_cbranch_scc1 {ok}
    s_sleep {slp}
    s_cmp_lt_u32 s{tmp}, {SPIN}
    s_cbranch_scc1 {l}
    """)
def lsync(off, tmp=60):
    l = lab('ls'); ok = lab('lsok')
    A(f"""
    s_mov_b64 exec, 1
    ds_add_u32 v42, v10 offset:{off}
    s_mov_b64 exec, -1
    s_mov_b32 s{tmp}, 0
    {l}:
    ds_read_b32 v43, v42 offset:{off}
    s_add_u32 s{tmp}, s{tmp}, 1
    s_waitcnt lgkmcnt(0)
    v_readfirstlane_b32 s{tmp+1}, v43
    s_cmp_ge_u32 s{tmp+1}, 7
    s_cbranch_scc1 {ok}
    s_cmp_lt_u32 s{tmp}, {SPIN}
    s_cbranch_scc1 {l}
    {ok}:
    """)
NT = 'nt' if OPT['NT'] else ''
def caddr(v, t, s, rot=True):
    A(f"""
    v_lshrrev_b32 v{v}, 3, v0
    v_lshlrev_b32 v{v}, 13, v{v}
    v_and_b32 v{t}, 7, v0
    v_lshl_add_u32 v{v}, v{t}, 7, v{v}
    v_lshlrev_b32 v{t}, 2, v0
    s_and_b32 s{s}, s2, 7
    s_lshl_b32 s{s}, s{s}, 10
    s_add_u32 s{s}, s{s}, {WS_PF}
    {RA(s) if rot else ''}
    """)
def signal(ty, v, one, s):
    A(f"""
    s_mov_b64 exec, 0xff
    v_lshlrev_b32 v{v}, 10, v0
    v_mov_b32 v{one}, 1
    s_lshl_b32 s{s}, s2, 4
    s_and_b32 s{s}, s{s}, 0x380
    s_add_u32 s{s}, s{s}, {WS_PF + 8192*ty}
    {RA(s)}
    buffer_atomic_add v{one}, v{v}, s[44:47], s{s} offen sc1
    """)
    if ty == 1: A(f"s_mov_b64 exec, 1\nglobal_atomic_add v42, v{one}, {DP} sc1")
def snap():
    A(f"""
    v_lshrrev_b32 v27, 1, v0
    s_lshl_b32 s56, s62, 5
    v_add_u32 v27, s56, v27
    v_lshlrev_b32 v25, 10, v27
    s_lshl_b32 s98, s53, 2
    s_add_u32 s98, s98, {WS_OFF}
    """)
def initnd(regs):
    for k in range(NS):
        for r, val in ((Nn(k), "0"), (Dd(k), "s[60:61]")):
            if r in regs: A(f"v_mov_b64 v[{r}:{r+1}], {val}\nv_mov_b64 v[{r+2}:{r+3}], {val}")
ALLND = [r for k in range(NS) for r in (Nn(k), Dd(k))]
def prep():
    spot()
    A("s_mov_b32 s22, 0")
    for w in range(16):
        a = ASG[w] + [0]
        A(f"s_cmp_eq_u32 s3, {w}\ns_cselect_b32 s22, {hex(a[0] | a[1] << 8 | a[2] << 16 | a[3] << 24)}, s22")
    A(f"""
    ;@spot
    v_mul_u32_u24 v33, 43, v0
    v_lshrrev_b32 v33, 7, v33
    v_mul_u32_u24 v34, 24, v33
    v_lshlrev_b32 v32, 3, v0
    v_sub_u32 v32, v32, v34
    v_cmp_lt_u32 vcc, 14, v0
    v_cndmask_b32 v32, v32, 24, vcc
    v_bfe_u32 v32, s22, v32, 8
    v_lshlrev_b32 v32, 3, v32
    v_mad_u32_u24 v33, v33, 6, 8
    v_subrev_u32 v34, 6, v33
    v_min_u32 v33, 26, v33
    v_min_u32 v34, 26, v34
    s_mov_b32 s56, {(127*NCAP + BIAS)*8193}
    v_lshl_add_u32 v35, v0, 26, s56
    v_lshrrev_b32 v43, 5, v0
    s_bfe_u32 s56, s22, 0x80000
    s_bfe_u32 s57, s22, 0x80008
    s_bfe_u32 s58, s22, 0x80010
    s_lshl_b32 s56, s56, 3
    s_lshl_b32 s57, s57, 3
    s_lshl_b32 s58, s58, 3
    v_lshl_add_u32 v36, v43, 2, s56
    v_lshl_add_u32 v37, v43, 2, s57
    v_lshl_add_u32 v38, v43, 2, s58
    ;@spot
    v_bfe_u32 v43, v0, 2, 3
    v_mul_u32_u24 v39, {QBLK}, v43
    v_and_b32 v43, 3, v0
    v_lshl_add_u32 v39, v43, 5, v39
    v_and_b32 v43, 4, v0
    v_lshl_add_u32 v39, v43, 2, v39
    v_and_b32 v43, 8, v0
    v_lshl_add_u32 v39, v43, 4, v39
    v_add_u32 v39, {QB + 127*QROW}, v39
    s_lshl_b32 s56, s3, 6
    v_and_b32 v40, 60, v0
    v_add_u32 v40, s56, v40
    """)

def gaddr():
    A(f"""
    v_lshrrev_b32 v7, 4, v0
    v_and_b32 v6, 15, v0
    v_xor_b32 v6, v6, v7
    s_and_b32 s61, s3, 3
    s_lshl_b32 s61, s61, 2
    v_xor_b32 v6, s61, v6
    v_lshlrev_b32 v6, 4, v6
    v_lshl_add_u32 v6, v7, 8, v6
    s_lshl_b32 s61, s3, 10
    s_add_u32 s64, s61, {XB}
    s_lshl_b32 s65, s49, 8
    s_add_u32 s65, s65, s61
    v_lshrrev_b32 v5, 2, v0
    v_lshlrev_b32 v5, 9, v5
    v_lshrrev_b32 v8, 5, v0
    v_lshlrev_b32 v8, 1, v8
    v_and_b32 v3, 3, v0
    v_xor_b32 v8, v8, v3
    v_lshl_add_u32 v5, v8, 4, v5
    s_lshl_b32 s56, s3, 6
    v_add_u32 v1, s56, v5
    s_mul_i32 s59, s3, {QBLK}
    s_add_u32 s59, s59, {QB}
    """)
def tailb(b, d):
    A(f"s_lshl_b32 s{d}, s{b}, 11\ns_add_u32 s{d}, s{d}, {STG}\ns_cmp_eq_u32 s{b}, 7\ns_cselect_b32 s{d}, {TAIL7}, s{d}")
def wdma(base, n=8, ldsoff=0, av=1, sb=59):
    A(f"s_add_u32 m0, s{sb}, {ldsoff}\ns_mov_b32 s56, {base}")
    for i in range(n):
        A(f"buffer_load_dwordx4 v{av}, s[28:31], s56 offen lds")
        if i < n-1: A("s_add_u32 m0, m0, 1024\ns_add_u32 s56, s56, 8192")
A(f"""
{KN}:
s_cmp_ge_u32 s2, 256
s_cbranch_scc1 L_end
s_load_dwordx16 s[4:19], s[0:1], 0
s_load_dwordx2 s[20:21], s[0:1], 64
s_load_dwordx2 s[24:25], s[0:1], 80
s_load_dwordx2 s[0:1], s[0:1], 72
v_lshrrev_b32 v1, 6, v0
v_and_b32 v0, 63, v0
v_readfirstlane_b32 s3, v1
v_mov_b32 v42, 0
v_mov_b32 v41, 0
s_cmp_lg_u32 s3, 15
s_cbranch_scc1 L_noinit
v_mov_b64 v[16:17], 0
v_mov_b64 v[18:19], 0
s_mov_b32 s56, {CNT}
v_lshl_add_u32 v2, v0, 4, s56
v_lshlrev_b32 v23, 2, v0
v_sub_u32 v20, 127, v0
v_sub_u32 v21, 63, v0
ds_write_b128 v2, v[16:19]
ds_write_b32 v23, v16
ds_write2st64_b32 v23, v20, v21 offset0:{KEY//256} offset1:{KEY//256+1}
L_noinit:
s_mov_b32 s26, 0xffff0000
s_mov_b32 s54, 0
s_mov_b32 s55, 0
s_mov_b32 s48, s2
""")
bucket_range(2, 53, 51, 52)
A("s_mov_b32 s49, s51\ns_mov_b32 s50, s52\ns_sub_u32 s52, s52, s51\ns_sub_u32 s62, s3, 8")
A(f"""
s_mov_b32 s31, 0x00020000
s_mov_b32 s35, 0x00020000
s_mov_b32 s38, {E*2}
s_mov_b32 s39, 0x00020000
s_mov_b32 s46, {0x10000000 if ROT else WS_SIZE}
s_mov_b32 s47, 0x00020000
s_cmp_lt_u32 s3, 8
s_cbranch_scc1 L_Gfirst
s_lshl_b32 s56, s62, 6
v_add_u32 v1, s56, v0
s_mul_i32 s57, s2, {CH}
v_lshl_add_u32 v2, v1, 2, s57
v_lshlrev_b32 v3, 2, v2
v_lshlrev_b32 v4, 1, v2
s_mov_b32 s30, {E*4}
s_mov_b32 s34, {E*4}
s_cmp_eq_u32 s3, 15
s_cbranch_scc1 L_W15
s_waitcnt lgkmcnt(0)
s_mov_b32 s28, s10
s_mov_b32 s29, s11
s_mov_b32 s32, s8
s_mov_b32 s33, s9
s_mov_b32 s36, s6
s_mov_b32 s37, s7
buffer_load_dwordx4 v[44:47], v3, s[28:31], 0 offen {NT}
buffer_load_dwordx4 v[48:51], v3, s[32:35], 0 offen {NT}
buffer_load_dwordx2 v[52:53], v4, s[36:39], 0 offen {NT}
s_barrier
s_branch L_Lcont
L_W15:
""")
CPF = '''v_cmp_gt_u32 vcc, s58, v34
s_and_b64 exec, exec, vcc
s_cbranch_execz L_nocpf
global_load_dword v35, v34, s[56:57]
L_nocpf:
s_mov_b64 exec, 0xffff
''' if OPT.get('CPF', 1) else ''
SLOTC = f'''s_bfe_u32 s1, s60, {hex(ROT | 3 << 16)}
s_mul_i32 s1, s1, 0x1800000
v_mov_b32 v16, s1
ds_write_b32 v42, v16 offset:{C_SLOT}
s_add_u32 s23, s23, s1''' if ROT else ''
caddr(52, 23, 23, False)
if ROT: A('s_memrealtime s[60:61]')
A(f"""
s_lshr_b32 s56, s2, 3
s_lshl_b32 s56, s56, 11
v_lshl_add_u32 v28, v0, 7, s56
v_add_u32 v29, 0x10000, v28
v_lshrrev_b32 v32, 3, v0
v_lshlrev_b32 v32, 6, v32
v_and_b32 v33, 1, v0
v_lshl_add_u32 v32, v33, 5, v32
v_bfe_u32 v33, v0, 1, 2
v_lshl_add_u32 v32, v33, 3, v32
v_add_u32 v33, 0x20000, v32
v_lshrrev_b32 v34, 1, v28
v_and_b32 v34, 0xffffff80, v34
s_getpc_b64 s[56:57]
L_pc:
s_mov_b32 s58, L_last-L_pc
s_waitcnt lgkmcnt(0)
{SLOTC}
s_mov_b32 s44, s24
s_mov_b32 s45, s25
s_mov_b64 exec, 0xffff
buffer_load_dword v53, v52, s[44:47], s23 offen sc1
{CPF}global_load_dword v30, v28, s[12:13]
global_load_dword v30, v29, s[12:13]
global_load_dword v31, v28, s[16:17]
s_mov_b64 exec, -1
global_load_dwordx2 v[36:37], v33, s[12:13]
global_load_dwordx2 v[38:39], v32, s[14:15]
{'s_waitcnt lgkmcnt(0)' if ROT else ''}
s_barrier
;@hopW
s_branch L_W15cont
L_Gfirst:
""")
gaddr()
A(f"""
s_mov_b32 s30, {257*512}
s_mov_b32 s34, {N*256}
s_waitcnt lgkmcnt(0)
s_mov_b32 s28, s12
s_mov_b32 s29, s13
s_mov_b32 s32, s4
s_mov_b32 s33, s5
""")
if OPT.get('GDP'): A(f"s_setprio {OPT['GDP']}")
ts(0)
bar()
ts(20)
A("s_mov_b32 m0, s64")
for i in range(3): A(f"buffer_load_dwordx4 v6, s[32:35], s65 offen {NT} lds\ns_add_u32 m0, m0, 8192\ns_add_u32 s65, s65, 8192")
A(f"s_cmp_lg_u32 s3, 0\ns_cbranch_scc1 L_Gw\nbuffer_load_dwordx4 v6, s[32:35], s65 offen {NT} lds\nL_Gw:")
wdma(0, 8)
A("s_branch L_Gcont")
def common():
    A(f"""
    s_mov_b32 s44, s24
    s_mov_b32 s45, s25
    s_mov_b32 s36, s6
    s_mov_b32 s37, s7
    s_mov_b32 s40, s24
    s_and_b32 s41, s25, 0xffff
    s_or_b32 s41, s41, 0x00100000
    s_mov_b32 s42, 64
    s_mov_b32 s43, 0x00800000
    """)
A(";@warm")
A(f"L_Lcont:\ns_mov_b64 exec, -1\ns_setprio {OPT['LPRIO']}\ns_mov_b32 s23, 0")
common()
ts(0)
ts(20)
DG = OPT.get('DG', 0)
if DG == 1: A("s_branch L_fin")
A(f"""
s_lshl_b32 s99, s2, 10
s_add_u32 s99, s99, {WS_OFF}
v_lshlrev_b32 v14, 4, v0
{f'ds_read_b32 v16, v42 offset:{C_SLOT}' if ROT else ''}
""")
snap()
A(f"""
v_cmp_gt_u32 vcc, {CH//4}, v1
v_mov_b32 v3, {E}
v_cmp_gt_u32 s[96:97], v3, v2
s_and_b64 s[96:97], s[96:97], vcc
v_mov_b32 v10, 1
s_movk_i32 s56, 2684
s_mov_b32 s57, {CNT}
s_movk_i32 s58, {N-1}
v_lshl_add_u32 v11, v0, 4, s57
""")
ts(22); spot()
A(f"s_waitcnt vmcnt(2)")
ts(1); spot()
A("s_mov_b64 exec, s[96:97]")
for i in range(4):
    A(f"""
    v_min_u32 v{44+i}, s58, v{44+i}
    v_mul_u32_u24 v{54+i}, s56, v{44+i}
    v_lshrrev_b32 v{54+i}, 18, v{54+i}
    v_lshl_add_u32 v{54+i}, v{54+i}, 2, s57
    ds_add_rtn_u32 v{58+i}, v{54+i}, v10
    """)
lsync(C_S2)
if ROT: A(f"v_readfirstlane_b32 s1, v16\n{RA(98)}\n{RA(99)}")
ts(2); spot()
A(f"ds_read_b128 v[64:67], v11\ns_waitcnt vmcnt(0)")
for i in range(4):
    A(f"""
    v_min_u32 v{48+i}, s58, v{48+i}
    v_and_b32 v{44+i}, 127, v{44+i}
    v_bfe_u32 v62, v{48+i}, 4, 2
    v_mad_u32_u24 v62, v62, 6, 8
    v_lshl_or_b32 v{44+i}, v{44+i}, 7, v62
    """)
A(f"""
s_waitcnt lgkmcnt(0)
v_add_u32 v69, v64, v65
v_add_u32 v70, v69, v66
v_add_u32 v72, v70, v67
v_mov_b32 v73, v72
v_lshl_or_b32 v48, v52, 16, v48
v_and_or_b32 v49, v52, s26, v49
""")
dpp_add(73, "row_shr:1")
A("v_lshl_or_b32 v50, v53, 16, v50\nv_and_or_b32 v51, v53, s26, v51")
dpp_add(73, "row_shr:2"); dpp_add(73, "row_shr:4"); dpp_add(73, "row_shr:8")
dpp_add(73, "row_bcast:15", "row_mask:0xa bank_mask:0xf"); dpp_add(73, "row_bcast:31", "row_mask:0xc bank_mask:0xf")
A(f"""
;@spot
v_sub_u32 v76, v73, v72
v_add_u32 v77, v76, v64
v_add_u32 v78, v76, v69
v_add_u32 v79, v76, v70
ds_write_b128 v11, v[76:79] offset:{START-CNT}
s_mov_b64 exec, s[96:97]
""")
for i in range(4): A(f"ds_read_b32 v{54+i}, v{54+i} offset:{START-CNT}")
A(f"s_mov_b32 s57, {STG}")
for i in range(4): A(f"v_lshl_add_u32 v{58+i}, v{58+i}, 3, s57")
for i in range(4):
    A(f"""
    s_waitcnt lgkmcnt(3)
    v_lshl_add_u32 v{54+i}, v{54+i}, 3, v{58+i}
    ds_write2_b32 v{54+i}, v{48+i}, v{44+i} offset0:0 offset1:1
    """)
A(f"""
s_mov_b64 exec, -1
v_lshl_add_u32 v12, v1, 4, s57
v_lshlrev_b32 v13, 4, v1
s_mul_i32 s56, s2, {REC_STRIDE}
s_add_u32 s56, s56, {WS_REC}
{RA(56)}
s_add_u32 s57, s56, 7168
v_cmp_gt_u32 vcc, 334, v1
""")
lsync(C_S3)
ts(3); spot()
A(f"""
ds_read_b128 v[84:87], v12
ds_read_b128 v[88:91], v12 offset:7168
v_lshl_or_b32 v80, v64, 16, v76
v_lshl_or_b32 v81, v65, 16, v77
v_lshl_or_b32 v82, v66, 16, v78
v_lshl_or_b32 v83, v67, 16, v79
s_waitcnt lgkmcnt(1)
buffer_store_dwordx4 v[84:87], v13, s[44:47], s56 offen {SC}
s_cbranch_vccz L_nost2
s_mov_b64 exec, vcc
s_waitcnt lgkmcnt(0)
buffer_store_dwordx4 v[88:91], v13, s[44:47], s57 offen {SC}
s_branch L_st3
L_nost2:
buffer_store_dwordx4 v[80:83], v14, s[44:47], s99 offen {SC}
L_st3:
s_mov_b64 exec, 1
s_waitcnt vmcnt(0) lgkmcnt(0)
ds_add_rtn_u32 v15, v42, v10 offset:{C_REC}
s_mov_b64 exec, -1
s_waitcnt lgkmcnt(0)
v_readfirstlane_b32 s58, v15
s_cmp_lg_u32 s58, 6
s_cbranch_scc1 L_B0
""")
signal(0, 13, 14, 56)
A("s_branch L_B0")
spot(True)
A(f"L_W15cont:\ns_mov_b64 exec, -1\nv_lshlrev_b32 v1, 4, v0\ns_mov_b32 s28, s10\ns_mov_b32 s29, s11\ns_mov_b32 s32, s8\ns_mov_b32 s33, s9")
common()
ts(0)
snap()
A(f"""
{RA(98)}
s_setprio {OPT['LPRIO']}
s_mov_b32 s56, {NLOG2E}
s_mov_b32 s57, {NLOG2E}
s_waitcnt vmcnt(0)
v_add_u32 v53, {33 if OPT.get('FORCE_LATE') else 32}, v53
v_lshlrev_b32 v4, 16, v36
v_and_b32 v5, s26, v36
v_lshlrev_b32 v6, 16, v37
v_and_b32 v7, s26, v37
v_lshlrev_b32 v32, 16, v38
v_and_b32 v33, s26, v38
v_lshlrev_b32 v34, 16, v39
v_and_b32 v35, s26, v39
v_pk_mul_f32 v[4:5], v[4:5], s[56:57]
v_pk_mul_f32 v[6:7], v[6:7], s[56:57]
v_pk_mul_f32 v[32:33], v[32:33], s[56:57]
v_pk_mul_f32 v[34:35], v[34:35], s[56:57]
ds_write_b128 v1, v[4:7] offset:{CW}
ds_write_b128 v1, v[32:35] offset:{CB}
""")
A("L_B0:\ns_mov_b64 exec, -1")
ts(4); spot()
if DG in (1, 2): A("s_branch L_fin")
srd(28, 12, 257*512)
A(f"""
v_lshrrev_b32 v16, 2, v0
v_lshlrev_b32 v16, 9, v16
v_lshrrev_b32 v17, 5, v0
v_lshlrev_b32 v17, 1, v17
v_and_b32 v18, 3, v0
v_xor_b32 v17, v17, v18
v_lshl_add_u32 v16, v17, 4, v16
s_lshl_b32 s56, s62, 6
v_add_u32 v16, s56, v16
s_mul_i32 s59, s62, {QBLK}
s_add_u32 s59, s59, {QB}
""")
if OPT.get('WBX', 8):
    lds_spin(C_X, 57, f"s_cmp_ge_u32 s57, {OPT.get('WBX', 8)}", "L_wb0", slp=2)
else:
    A("s_cmp_lg_u32 s3, 15\ns_cbranch_scc1 L_wb0")
    lds_spin(C_S3, 57, "s_cmp_ge_u32 s57, 7", "L_wb0", slp=2)
A("L_wb0:")
wdma(65536, 6, 8192, 16)
tailb(62, 64)
A(f"""
v_and_b32 v19, 1, v0
v_lshlrev_b32 v19, 1, v19
s_movk_i32 s57, {REC_STRIDE}
v_mul_u32_u24 v10, s57, v27
v_lshl_add_u32 v10, v19, 3, v10
""")
prep()
lds_spin(C_REC, 57, "s_cmp_ge_u32 s57, 7", "L_own", slp=1)
A("L_own:")
wdma(65536+6*8192, 2, 0, 16, 64)
A(f"v_mov_b32 v17, 1\ns_mov_b64 exec, 1\ns_waitcnt vmcnt(0)\nds_add_u32 v42, v17 offset:{C_WB}\ns_mov_b64 exec, -1")
ts(23)
A("s_cmp_eq_u32 s3, 15\ns_cbranch_scc1 L_w15b\n;@hopB\nL_Bback:\ns_mov_b64 exec, -1")
lds_spin(C_GO, 57, "s_cmp_lg_u32 s57, 0", "L_goseen", slp=2)
A(f"""
L_goseen:
s_cmp_eq_u32 s57, 1
s_cbranch_scc1 L_offok
L_B0_to:
s_mov_b64 exec, -1
""")
lds_or(C_ABORT, 2)
A("s_mov_b32 s63, 0\ns_branch L_B1done")
spot(True)
A("L_w15b:")
if OPT['PDELAY']: A(f"s_sleep {OPT['PDELAY']}")
ts(24); spot()
A(f"""
s_mov_b64 exec, 0xff
s_mov_b32 s58, 0
L_offp:
buffer_load_dword v18, v52, s[44:47], s23 offen sc1
s_add_u32 s58, s58, 1
s_waitcnt vmcnt(0)
v_cmp_ne_u32 vcc, v18, v53
""")
if OPT['FORCE_RECOV'] != 4: A("s_cbranch_vccz L_go\ns_mov_b64 exec, vcc")
def dbg(cnt, ty, v, ok):
    l = lab('dk')
    A(f"""
    s_cmp_lt_u32 s{cnt}, {(6, 16)[ty]}
    s_cbranch_scc1 {l}
    global_load_dword v{v}, v42, {DP} sc1
    s_waitcnt vmcnt(0)
    v_readfirstlane_b32 s57, v{v}
    s_cmp_eq_u32 s57, 256
    s_cbranch_scc1 {ok}
    {l}:
    """)
if OPT['FORCE_RECOV'] != 4: dbg(58, 0, 18, "L_go")
A(f"""
s_sleep {SLP}
s_cmp_lt_u32 s58, {2 if OPT['FORCE_RECOV'] == 4 else POLLMAX}
s_cbranch_scc1 L_offp
""")
lds_or(C_GO, 2)
A("s_branch L_B0_to\nL_go:")
lds_or(C_GO, 1)
if TS: A("v_writelane_b32 v41, s58, 40")
A("s_mov_b64 exec, -1")
A("L_offok:\nbuffer_load_dword v18, v25, s[44:47], s98 offen sc1")
ts(5); spot()
A("s_waitcnt vmcnt(0)")
ts(6); spot()
A(f"""
v_and_b32 v16, 0xffff, v18
v_lshrrev_b32 v11, 16, v18
v_lshl_add_u32 v10, v16, 3, v10
v_cmp_lt_u32 vcc, 24, v11
v_sub_u32 v11, v11, v19
{f's_add_u32 s56, s1, {WS_REC}' if ROT else f's_mov_b32 s56, {WS_REC}'}
s_mov_b32 s63, 0
""")
for i in range(6):
    m = 72+4*i
    A(f"""
    v_cmp_lt_i32 s[{m}:{m+1}], {4*i}, v11
    s_cmp_eq_u64 s[{m}:{m+1}], 0
    s_cbranch_scc1 L_ldone
    s_mov_b64 exec, s[{m}:{m+1}]
    buffer_load_dwordx4 v[{Nn(i)}:{Nn(i)+3}], v10, s[44:47], s56 offen offset:{32*i} sc1
    v_cmp_lt_i32 s[{m+2}:{m+3}], {4*i+1}, v11
    s_add_u32 s63, s63, 1
    """)
A(f"""
L_ldone:
s_mov_b64 exec, -1
s_cbranch_vccz L_noovf
""")
lds_or(C_ABORT, 1)
A(f"""
L_noovf:
s_lshl_b32 s57, s51, 7
v_mov_b32 v16, 0x41041
s_waitcnt vmcnt(0)
""")
ts(7)
spot()
for i in range(6):
    A(f"s_cmp_le_u32 s63, {i}\ns_cbranch_scc1 L_B1done")
    for j in range(2):
        d1 = Nn(i)+2*j+1; ad = Dd(i)+2*j; rk = ad+1; u = 20+j; m = 72+4*i+2*j
        A(f"""
        s_mov_b64 exec, s[{m}:{m+1}]
        v_subrev_u32 v{ad}, s57, v{d1}
        v_lshlrev_b32 v{u}, v{d1}, v16
        v_bfe_u32 v{ad}, v{ad}, 5, 9
        ds_add_rtn_u32 v{rk}, v{ad}, v{u} offset:{KEY}
        """)
A("L_B1done:\ns_mov_b64 exec, -1\ns_setprio 0\ns_waitcnt lgkmcnt(0)")
ts(8); spot()
if DG: A("s_branch L_fin")
bar()
ts(9); spot()
A(f"""
s_mov_b32 s57, {NL}
v_mov_b32 v20, 0
s_cmp_lg_u32 s3, 15
s_cbranch_scc1 L_nopre
s_mov_b64 exec, 0xff00
buffer_load_dword v54, v52, s[44:47], s23 offen sc1
L_nopre:
""")
for i in range(6):
    A(f"s_cmp_le_u32 s63, {i}\ns_cbranch_scc1 L_sc2")
    for j in range(2):
        ad = Dd(i)+2*j; rk = ad+1; m = 72+4*i+2*j; F = 4+2*i+j
        A(f"""
        s_mov_b64 exec, s[{m}:{m+1}]
        ds_read_b32 v{F}, v{ad} offset:{KEY}
        v_max_u32 v20, v20, v{rk}
        v_mad_u32_u24 v{ad}, v{ad}, {NCAP}, s57
        """)
A("L_sc2:\ns_mov_b64 exec, -1\n;@spot\ns_waitcnt lgkmcnt(0)")
for i in range(6):
    A(f"s_cmp_le_u32 s63, {i}\ns_cbranch_scc1 L_sc3")
    for j in range(2):
        w0 = Nn(i)+2*j; d1 = w0+1; ad = Dd(i)+2*j; rk = ad+1; m = 72+4*i+2*j; F = 4+2*i+j
        A(f"""
        s_mov_b64 exec, s[{m}:{m+1}]
        v_sub_u32 v{F}, v{F}, v{rk}
        v_lshl_add_u32 v{F}, v{F}, 6, v{rk}
        v_bfe_u32 v{F}, v{F}, v{d1}, 6
        v_lshl_add_u32 v{F}, v{F}, 2, v{ad}
        ds_write_b32 v{F}, v{w0}
        """)
A(f"""
L_sc3:
s_mov_b64 exec, -1
v_cmp_le_u32 vcc, {hex(NCAP << 26)}, v20
s_cbranch_vccz L_C2
""")
lds_or(C_ABORT, 1)
A("s_branch L_C2")
spot(True)

A(f"""
;@g0
L_Gcont:
;@spot
s_mov_b32 s23, 0
{f'ds_read_b32 v24, v42 offset:{C_SLOT}' if ROT else ''}
""")
common()
ts(21)
GSL = f's_waitcnt lgkmcnt(0)\nv_readfirstlane_b32 s1, v24\n{RA(60)}\n{RA(34)}' if ROT else ''
A(f"""
v_lshrrev_b32 v4, 4, v0
v_bfe_u32 v5, v0, 2, 2
v_lshl_add_u32 v5, v4, 3, v5
v_lshlrev_b32 v2, 6, v5
v_lshl_add_u32 v2, v3, 3, v2
v_and_b32 v5, 1, v4
v_lshl_add_u32 v2, v5, 5, v2
v_add_u32 v2, s59, v2
v_xor_b32 v3, 32, v2
v_and_b32 v5, 15, v0
v_xor_b32 v6, v4, v5
v_lshlrev_b32 v6, 4, v6
v_lshl_add_u32 v16, v5, 8, v6
v_add_u32 v16, {XB}, v16
v_xor_b32 v17, 64, v16
v_xor_b32 v18, 0x80, v16
v_xor_b32 v19, 0xc0, v16
;@spot
v_lshlrev_b32 v6, 9, v5
v_lshl_add_u32 v6, v4, 4, v6
s_lshl_b32 s56, s3, 6
v_add_u32 v6, s56, v6
v_mul_u32_u24 v7, {QROW}, v5
v_lshl_add_u32 v7, v4, 5, v7
s_and_b32 s56, s3, 1
s_lshl_b32 s56, s56, 4
s_and_b32 s57, s3, 2
s_lshl_b32 s57, s57, 6
s_add_u32 s56, s56, s57
s_add_u32 s56, s56, s59
v_add_u32 v7, s56, v7
;@spot
s_mov_b32 s32, s24
s_mov_b32 s33, s25
s_lshl_b32 s34, s50, 9
s_add_u32 s34, s34, {PB0}
s_mov_b32 s35, 0x00020000
s_mov_b32 s92, {NLOG2E}
s_lshl_b32 s60, s49, 9
s_add_u32 s60, s60, {PB0}
{GSL}
""")
tailb(3, 64)
A("s_sub_u32 s56, s64, s59\nv_add_u32 v20, s56, v2\nv_add_u32 v21, s56, v3")
ts(22); spot()
AF = 96; BFQ = ((44, 48, 52, 56), (68, 80, 88, 92)); ACC = (8, 24); PK = (32, 36, Nn(0), Dd(0), Nn(1), Dd(1), Nn(2))
def afrags(offs=(0, 2048, 4096, 6144)):
    for s in range(4):
        for a in range(2):
            for hf in range(2):
                r = AF + a*16 + s*4 + hf*2
                A(f"ds_read_b64_tr_b16 v[{r}:{r+1}], v{(2 if offs[s] >= 0 else 20)+a} offset:{max(offs[s], 0)+256*hf}")
def bfrQ(t):
    for s in range(4):
        r = BFQ[t & 1][s]
        A(f"ds_read_b128 v[{r}:{r+3}], v{16+s} offset:{4096*t}")
def grab(f, *a):
    n = len(L); f(*a); r = L[n:]; del L[n:]; return r
GP = OPT.get('GPRIO', '1100')
def gemm(post, nw, tail=None, pr='00'):
    for t in range(7):
        spot()
        if t == 0 or (t == OPT.get('GPT', 4) and pr[0] != pr[1]): A(f"s_setprio {pr[min(t, 1)]}")
        A(f"s_waitcnt lgkmcnt({nw if t > 1 else 0})")
        rd = grab(bfrQ, t+1) if t < 6 else []
        po = grab(post, t-1) if t > 0 else []
        gaps = [rd[0:2], rd[2:4]] + [[] for _ in range(6)]
        g = 2; c = 0
        for x in po:
            gaps[g].append(x)
            if not x.strip().startswith('s_'): c += 1
            if c == FPG and g < 7: g += 1; c = 0
        for s in range(4):
            for a in range(2):
                c = ACC[t & 1] + 4*a; ar = AF + a*16 + s*4; br = BFQ[t & 1][s]
                A(f"v_mfma_f32_16x16x32_bf16 v[{c}:{c+3}], v[{ar}:{ar+3}], v[{br}:{br+3}], " + ("0" if s == 0 else f"v[{c}:{c+3}]"))
                L.extend(gaps[2*s+a])
        if nw and t == OPT['PUBT'] + 1: pubA()
    if tail: tail()
    post(6)
FPG = OPT.get('FPG', 2); SPT = OPT.get('SPT', 2)
def pst(t):
    o = PK[t]
    if not OPT.get('NOST'): A(f"buffer_store_dwordx4 v[{o}:{o+3}], v6, s[32:35], s60 offen {SC}\ns_add_u32 s60, s60, 8192")
def postP(t):
    c = ACC[t & 1]; o = PK[t]
    for i in range(4):
        A(f"v_mul_f32 v{c+2*i}, s92, v{c+2*i}\nv_mul_f32 v{c+2*i+1}, s92, v{c+2*i+1}")
        if i: A(f"v_cvt_pk_bf16_f32 v{o+i-1}, v{c+2*i-2}, v{c+2*i-1}")
    A(f"v_cvt_pk_bf16_f32 v{o+3}, v{c+6}, v{c+7}")
    if t < EP: pst(t)
def postQ(t):
    c = ACC[t & 1]
    if t == 6: A("s_mov_b32 exec_lo, 0x00030003\ns_mov_b32 exec_hi, 0x00030003")
    A(f"ds_write_b128 v7, v[{c}:{c+3}] offset:{2304*t}\nds_write_b128 v7, v[{c+4}:{c+7}] offset:{2304*t+16}")
    if t == 6: A("s_mov_b64 exec, -1")
    for i in range(SPT):
        if EP + SPT*t + i < 7: pst(EP + SPT*t + i)
A(f"""
s_add_u32 s63, s54, 1
s_lshl_b32 s63, s63, 3
v_mov_b32 v4, 1
s_mov_b64 exec, 1
s_waitcnt vmcnt(0)
ds_add_u32 v42, v4 offset:{C_X}
s_mov_b64 exec, -1
""")
ts(2); spot()
lds_spin(C_X, 56, "s_cmp_ge_u32 s56, s63", "L_xok")
A("L_xok:")
ts(3); spot()
if DG: A("s_memtime s[100:101]\ns_waitcnt lgkmcnt(0)\nv_writelane_b32 v41, s100, 46"); ts(14)
afrags()
bfrQ(0)
A("s_cmp_eq_u32 s54, 0\ns_cbranch_scc1 L_nowb")
wdma(65536, 6, 8192)
wdma(65536+6*8192, 2, 0, 1, 64)
A("s_waitcnt vmcnt(0)\nL_nowb:")
def mid():
    lds_spin(C_WB, 56, "s_cmp_ge_u32 s56, 8", "L_wbok")
    A("L_wbok:")
    ts(5)
    afrags((8192, 10240, 12288, -1)); bfrQ(0)
gemm(postP, 0, mid, GP[0:2])
ts(4); spot()
def pubA():
    A(f"""
    s_cmp_lg_u32 s54, 0
    s_cbranch_scc1 L_nopub
    s_mov_b64 exec, 1
    v_mov_b32 v4, 1
    s_waitcnt vmcnt(0)
    ds_add_rtn_u32 v5, v42, v4 offset:{C_PA}
    s_waitcnt lgkmcnt(0)
    v_readfirstlane_b32 s57, v5
    s_cmp_lg_u32 s57, 7
    s_cbranch_scc1 L_nopub
    """)
    signal(1, 5, 4, 56)
    A("L_nopub:\ns_mov_b64 exec, -1")
    ts(25)
gemm(postQ, 2, None, GP[2:4])
A('s_setprio 0')
ts(7)
prep()
if OPT['PUBT'] == 6: pubA()
ts(6); spot()
if DG: A("s_memtime s[100:101]\ns_waitcnt lgkmcnt(0)\nv_writelane_b32 v41, s100, 47"); ts(15)
A(f"""
s_cmp_lg_u32 s54, 0
s_cbranch_scc1 L_recovG
v_and_b32 v9, 3, v0
v_mul_u32_u24 v9, 112, v9
v_mov_b32 v14, 0
v_mov_b32 v15, 0
s_waitcnt lgkmcnt(0)
""")
A(';@g1')
ts(8); spot()
if DG: A("s_branch L_fin")
bar()
ts(9); spot()
A(f"ds_read_b32 v10, v40 offset:{KEY}")
for q in range(7): A(f"ds_read_b128 v[{96+4*q}:{99+4*q}], v9 offset:{KEY+16*q}")
pairs = (96, 98, 56, 60)
for q in range(7):
    spot()
    A(f"s_waitcnt lgkmcnt({6-q})")
    for i in range(4): A(f"v_cmp_gt_u32 s[{pairs[i]}:{pairs[i]+1}], v{96+4*q+i}, v10")
    for i in range(4): A(f"v_addc_co_u32 v{14+(i&1)}, vcc, 0, v{14+(i&1)}, s[{pairs[i]}:{pairs[i]+1}]")
A("v_add_u32 v15, v14, v15")
dpp_add(15, "quad_perm:[1,0,3,2]", "row_mask:0xf bank_mask:0xf")
dpp_add(15, "quad_perm:[2,3,0,1]", "row_mask:0xf bank_mask:0xf")
A(f"""
v_lshlrev_b32 v15, 2, v15
ds_write_b32 v15, v10 offset:{SORT}
L_C2:
s_waitcnt lgkmcnt(0)
""")
ts(10); spot()
bar()
ts(11); spot()
MSK = (1 << 12) | (1 << 13) | (1 << 14) | (1 << 18)
LOV = sum(1 << s for s in range(3, 15)) | (1 << 18)
A(f"""
L_B4:
ds_read_b64 v[4:5], v32 offset:{SORT}
ds_read_b32 v43, v42 offset:{C_ABORT}
ds_read_b32 v36, v36 offset:{SORT}
ds_read_b32 v37, v37 offset:{SORT}
ds_read_b32 v38, v38 offset:{SORT}
s_mul_i32 s59, s3, {LW}
s_add_u32 s59, s59, {WL}
v_lshl_add_u32 v6, v0, 2, s59
v_mov_b32 v8, 0
v_mov_b32 v{VN}, 0
ds_write2st64_b32 v6, v8, v8 offset0:0 offset1:1
;@spot
s_mov_b32 s96, {hex(MSK)}
s_mov_b32 s97, 0
s_cmp_eq_u32 s3, 0
s_movk_i32 s98, 0x7fff
s_cselect_b32 s98, {hex(0x7fff | 1 << 15 | 1 << 18)}, s98
s_mov_b32 s99, 0
s_movk_i32 s60, {-NCAP}
s_movk_i32 s61, 8193
s_waitcnt lgkmcnt(4)
v_cndmask_b32 v7, v5, v4, s[96:97]
v_bfe_u32 v9, v4, v33, 6
v_bfe_u32 v11, v4, v34, 6
v_bfe_u32 v12, v5, v34, 6
v_bfe_u32 v10, v7, v33, 6
s_mov_b64 exec, {hex(LOV)}
v_min_u32 v8, v11, v12
s_mov_b64 exec, s[98:99]
v_min_u32 v9, v9, v10
v_sub_u32 v{VN}, v9, v8
s_mov_b64 exec, -1
v_mov_b32 v10, v{VN}
v_and_b32 v11, 127, v4
v_and_b32 v12, 127, v7
""")
dpp_add(10, "row_shr:1")
A("v_lshl_add_u32 v11, v12, 13, v11\nv_readfirstlane_b32 s55, v43")
dpp_add(10, "row_shr:2")
A(f"v_mad_i32_i24 v11, v11, s60, v35\nv_cmp_lt_u32 vcc, 0, v{VN}")
dpp_add(10, "row_shr:4")
A(f"v_lshl_add_u32 v13, v0, 3, s59\nv_lshrrev_b32 v1, 5, v0")
dpp_add(10, "row_shr:8")
A(f"v_mul_u32_u24 v1, {HL}, v1\nv_add_u32 v1, s59, v1")
dpp_add(10, "row_bcast:15", "row_mask:0xa bank_mask:0xf")
A(f"""
v_sub_u32 v12, v10, v{VN}
v_sub_u32 v9, v9, v10
v_readlane_b32 s58, v10, 20
v_lshl_add_u32 v12, v12, 2, s59
v_mad_i32_i24 v11, v9, s61, v11
s_sub_u32 s56, s58, 1
s_cmp_lt_u32 s56, {HL//8 - R}
s_cbranch_scc1 L_capok
s_or_b32 s55, s55, 4
L_capok:
;@spot
""")
if OPT['FORCE_SAFE']: A("s_or_b32 s55, s55, 1")
A(f"""
s_cmp_lg_u32 s55, 0
s_cbranch_scc1 L_nolist
s_mov_b64 exec, vcc
ds_write_b32 v12, v11
s_mov_b64 exec, -1
ds_read2st64_b32 v[10:11], v6 offset0:0 offset1:1
v_min_u32 v9, s56, v0
s_mov_b32 s57, {NL - 4*BIAS}
v_lshl_add_u32 v9, v9, 2, s57
s_movk_i32 s60, 512
s_waitcnt lgkmcnt(0)
""")
def fill(v, pm, ex=None, off=0):
    for c in ("row_shr:1", "row_shr:2", "row_shr:4", "row_shr:8"): dpp("v_max_u32", v, c)
    dpp("v_max_u32", v, "row_bcast:15", "row_mask:0xa bank_mask:0xf")
    dpp("v_max_u32", v, "row_bcast:31", "row_mask:0xc bank_mask:0xf")
    if ex: A(f"s_mov_b64 exec, {ex}")
    A(f"""
    v_and_b32 v14, 0x1fff, v{v}
    v_bfe_u32 v15, v{v}, 13, 13
    v_lshl_add_u32 v14, v14, 2, v{pm}
    v_lshl_add_u32 v15, v15, 2, v{pm}
    ds_read_b32 v14, v14
    ds_read_b32 v15, v15
    s_waitcnt lgkmcnt(1)
    v_mad_u32_u16 v16, v14, s60, s60
    v_and_b32 v14, s26, v14
    ds_write2_b32 v13, v16, v14 offset0:{off} offset1:{off+2*R+1}
    s_waitcnt lgkmcnt(1)
    v_mad_u32_u16 v17, v15, s60, 0
    v_and_b32 v15, s26, v15
    ds_write2_b32 v13, v17, v15 offset0:{off+HL//4} offset1:{off+HL//4+2*R+1}
    """)
fill(10, 9)
A(f"s_cmp_gt_u32 s58, {64-R}\ns_cbranch_scc1 L_fill2\nL_filled:\nL_nolist:")
A(f"""
ds_read_b128 v[8:11], v1
ds_read_b128 v[12:15], v1 offset:16
ds_read_b128 v[16:19], v1 offset:32
ds_read_b128 v[20:23], v1 offset:48
""")
ts(12); spot()
A(f"""
s_movk_i32 s60, {-QROW}
v_and_b32 v36, 127, v36
v_and_b32 v37, 127, v37
v_and_b32 v38, 127, v38
v_mad_i32_i24 v36, v36, s60, v39
v_mad_i32_i24 v37, v37, s60, v39
v_mad_i32_i24 v38, v38, s60, v39
s_bitcmp1_b32 s55, 1
s_cbranch_scc1 L_recover
s_cmp_lg_u32 s3, 15
s_cbranch_scc1 L_pfdone
s_cmp_lg_u32 s54, 0
s_cbranch_scc1 L_pfdone
s_mov_b32 s56, 0
s_mov_b64 exec, 0xff00
v_mov_b32 v55, 1
L_pfp:
s_waitcnt vmcnt(0)
v_cmp_ne_u32 vcc, v54, v53
""")
if OPT['FORCE_RECOV'] != 1: A("s_cbranch_vccz L_pfok\ns_mov_b64 exec, vcc"); dbg(56, 1, 54, "L_pfok")
A(f"""
buffer_load_dword v54, v52, s[44:47], s23 offen sc1
s_add_u32 s56, s56, 1
s_cmp_lt_u32 s56, {2 if OPT['FORCE_RECOV'] == 1 else POLLMAX}
s_cbranch_scc1 L_pfp
v_mov_b32 v55, 2
L_pfok:
ds_write_b32 v42, v55 offset:{C_PFA}
s_mov_b64 exec, -1
""")
if TS: A("v_writelane_b32 v41, s56, 41")
A(f"L_pfdone:\nds_read_b32 v43, v42 offset:{C_PFA}")
def gather(p, idx):
    A(f"buffer_load_dwordx4 v[{RING[p]}:{RING[p]+3}], v{idx}, s[40:43], {'s1' if ROT else '0'} offen {SC}")
for k in range(NS): A(f"ds_read_b128 v[{Q(k)}:{Q(k)+3}], v{36+(k>>1)} offset:{16*(k&1)}")
A(f"""
v_lshrrev_b32 v32, 26, v4
v_lshrrev_b32 v33, 26, v5
v_and_b32 v4, 127, v4
v_and_b32 v5, 127, v5
v_lshl_or_b32 v32, v32, 8, v4
v_lshl_or_b32 v33, v33, 8, v5
s_mul_i32 s80, s3, 6
s_min_u32 s56, s3, 1
s_lshl1_add_u32 s80, s56, s80
s_lshl_b32 s56, s80, 2
v_min_u32 v34, 3, v0
v_lshl_add_u32 v34, v34, 3, s56
s_and_b32 s98, s98, 0x8007
s_waitcnt lgkmcnt(6)
v_readfirstlane_b32 s82, v43
s_cmp_lg_u32 s55, 0
s_cselect_b32 s82, 0, s82
s_cmp_lg_u32 s82, 1
s_cbranch_scc1 L_noring
""")
for p, idx in enumerate((8, 10, 12, 14)): gather(p, idx)
ts(13)
A(f"""
L_noring:
;@spot
s_mov_b64 exec, s[98:99]
ds_write_b64 v34, v[32:33] offset:{ROWI}
s_mov_b64 exec, -1
v_and_b32 v34, 31, v0
v_lshlrev_b32 v34, 5, v34
s_cmp_lg_u32 s3, 0
s_cbranch_scc1 L_noq3
v_readlane_b32 s56, v4, 15
v_readlane_b32 s57, v5, 15
v_mov_b32 v35, s56
s_mov_b32 exec_lo, 0
v_mov_b32 v35, s57
s_mov_b32 exec_lo, -1
v_mad_i32_i24 v35, v35, s60, v39
ds_read_b128 v[{Nn(4)}:{Nn(4)+3}], v35
ds_read_b128 v[{Dd(4)}:{Dd(4)+3}], v35 offset:16
L_noq3:
;@spot
ds_read_b128 v[{Nn(5)}:{Nn(5)+3}], v34 offset:{CB}
ds_read_b128 v[{Dd(5)}:{Dd(5)+3}], v34 offset:{CB+16}
ds_read_b128 v[{WA}:{WA+3}], v34 offset:{CW}
ds_read_b128 v[{WB}:{WB+3}], v34 offset:{CW+16}
v_and_b32 v35, 3, v0
v_lshlrev_b32 v35, 4, v35
v_mov_b32 v36, 0x3f80
v_mov_b32 v37, 0
v_lshlrev_b64 v[2:3], v35, v[36:37]
v_mov_b32 v43, 1
s_mov_b32 s60, 1.0
s_mov_b32 s61, 1.0
s_mov_b32 s56, {NLOG2E}
s_mov_b32 s57, {NLOG2E}
s_mov_b32 s71, 0
s_mov_b32 s83, 0
""")
srd(28, 16, 65536)
LATE = [Nn(4), Dd(4), Nn(5), Dd(5)]
initnd([r for r in ALLND if r not in LATE])
A(f"s_waitcnt lgkmcnt(2)\ns_mov_b64 exec, 1\nds_add_u32 v42, v43 offset:{C_Q}\ns_mov_b64 exec, -1")
ts(28); spot()
def qscale(r, a):
    b = (Nn(5), Dd(5))[a]
    A(f"v_pk_fma_f32 v[{r}:{r+1}], v[{r}:{r+1}], s[56:57], v[{b}:{b+1}]\nv_pk_fma_f32 v[{r+2}:{r+3}], v[{r+2}:{r+3}], s[56:57], v[{b+2}:{b+3}]")
for k in range(NS): qscale(Q(k), k & 1)
A(f"""
s_cmp_lg_u32 s3, 0
s_cbranch_scc1 L_noq3b
s_mov_b32 s58, {Q3P}
v_lshl_add_u32 v35, v0, 4, s58
""")
qscale(Nn(4), 0); qscale(Dd(4), 1)
A(f"""
ds_write_b128 v35, v[{Nn(4)}:{Nn(4)+3}]
ds_write_b128 v35, v[{Dd(4)}:{Dd(4)+3}] offset:1024
s_waitcnt lgkmcnt(0)
L_noq3b:
;@spot
""")
initnd(LATE)
A("s_cmp_eq_u32 s82, 1\ns_cbranch_scc1 L_ringd")
lds_spin(C_PFA, 57, "s_cmp_lg_u32 s57, 0", "L_pfseen", tmp=56)
A("L_pfseen:\ns_cmp_lg_u32 s57, 1\ns_cbranch_scc1 L_recover\ns_cmp_lg_u32 s55, 0\ns_cbranch_scc1 L_safe0")
for p, idx in enumerate((8, 10, 12, 14)): gather(p, idx)
ts(13)
A(f"""
L_ringd:
s_waitcnt lgkmcnt(0)
s_setprio {OPT['PRIO'][0]}
""")
ts(14); spot()
if TS: A("s_memtime s[100:101]\ns_waitcnt lgkmcnt(0)\nv_writelane_b32 v41, s100, 46")
SEL = "op_sel:[1,0,0] op_sel_hi:[1,1,1]"
TT = (8, 32)
def H1a(k, p):
    q = Q(k); a = k & 1; pr = 16 + 2*p; t = TT[a]; w = (WA, WB)[a]
    if a == 0 and p % 2 == 0: A("s_waitcnt lgkmcnt(1)")
    A(f"""
    v_pk_fma_f32 v[{t}:{t+1}], v[{pr}:{pr+1}], v[{w}:{w+1}], v[{q}:{q+1}] {SEL}
    v_pk_fma_f32 v[{t+2}:{t+3}], v[{pr}:{pr+1}], v[{w+2}:{w+3}], v[{q+2}:{q+3}] {SEL}
    """)
def H1b(k, p):
    a = k & 1; qd = 16 + 4*(p >> 1); pr = 16 + 2*p; rg = RING[p] + 2*a; t = TT[a]
    if a == 0: A(f"s_waitcnt vmcnt({R-1})\ns_sub_u32 s56, s56, 1")
    A(f"v_mfma_f32_4x4x4_16b_bf16 v[{t}:{t+3}], v[2:3], v[{rg}:{rg+1}], v[{t}:{t+3}]")
    if a == 1:
        gather(p, pr)
        if p % 2 == 1: A(f"ds_read_b128 v[{qd}:{qd+3}], v1 offset:{64+16*(p>>1)}")
        if p == 3: A("v_add_u32 v1, 32, v1")
def H2a(k):
    t = TT[k & 1]
    if OPT.get('NOV'): return
    A(f"v_exp_f32 v12, v{t}\nv_exp_f32 v13, v{t+1}")
def H2b(k):
    n, d = Nn(k), Dd(k); t = TT[k & 1]
    if OPT.get('NOV'): return
    A(f"""
    v_exp_f32 v14, v{t+2}
    v_exp_f32 v15, v{t+3}
    v_pk_fma_f32 v[{t}:{t+1}], v[{t}:{t+1}], v[{d}:{d+1}], v[{n}:{n+1}]
    v_pk_fma_f32 v[{t+2}:{t+3}], v[{t+2}:{t+3}], v[{d+2}:{d+3}], v[{n+2}:{n+3}]
    v_pk_fma_f32 v[{d}:{d+1}], v[{d}:{d+1}], v[12:13], v[{d}:{d+1}]
    v_pk_fma_f32 v[{n}:{n+1}], v[{n}:{n+1}], v[12:13], v[{t}:{t+1}]
    v_pk_fma_f32 v[{d+2}:{d+3}], v[{d+2}:{d+3}], v[14:15], v[{d+2}:{d+3}]
    v_pk_fma_f32 v[{n+2}:{n+3}], v[{n+2}:{n+3}], v[14:15], v[{t+2}:{t+3}]
    """)
def H2(k): H2a(k); H2b(k)
HK = OPT['HOOK']; PR = OPT['PRIO']
def wrap(p):
    A(f"""
    L_E3_{p}:
    s_mov_b32 s57, {p}
    """)
    if TS: A("s_memrealtime s[100:101]\ns_add_u32 s58, s71, 45\ns_min_u32 s58, s58, 63\ns_mov_b32 m0, s58\ns_waitcnt lgkmcnt(0)\nv_writelane_b32 v41, s100, m0")
    A(f"""
    s_cmp_eq_u32 s71, 3
    s_cbranch_scc1 L_wrap1
    s_setprio {PR[2]}
    s_cmp_eq_u32 s71, 6
    s_cbranch_scc1 L_E0_{p}
    s_setprio {PR[3]}
    s_cmp_eq_u32 s71, 9
    s_cbranch_scc1 L_E0_{p}
    s_mov_b32 exec_hi, 0
    s_cmp_eq_u32 s71, 12
    s_cbranch_scc1 L_E0_{p}
    s_cmp_eq_u32 s71, 18
    s_cbranch_scc1 L_E0_{p}
    s_mov_b32 exec_hi, -1
    s_cmp_lg_u32 s3, s83
    s_cbranch_scc1 L_flush
    s_branch L_rs{p}
    """)
    spot(True)
for p in range(4):
    for q in range(3):
        if q > 0:
            A(f"L_T{q-1}_{p}:"); H2(2*q-1)
        A(f"L_E{q}_{p}:")
        if q == HK: A(f"s_mov_b32 s57, {p}\ns_cmp_eq_u32 s71, {3+HK}\ns_cbranch_scc1 L_hk1\nL_H_{p}:")
        if len(PR) > 4 and q == OPT.get('LQ', 2): A(f"s_cmp_lt_u32 s71, 9\ns_cbranch_scc1 L_np{p}\ns_setprio {PR[4]}\nL_np{p}:")
        A(f"v_readlane_b32 s56, v{VN}, s71\ns_add_u32 s71, s71, 1\ns_sub_u32 s56, s56, 1\ns_cbranch_scc1 L_E{q+1}_{p}")
        H1a(2*q, p); H1a(2*q+1, p); H1b(2*q, p); H1b(2*q+1, p); H2(2*q)
        A(f"s_cbranch_scc0 L_B{q}_{(p+1)&3}\ns_branch L_T{q}_{(p+1)&3}")
        spot(True)
    A(f"L_T2_{p}:"); H2(5)
    wrap(p)
for q in range(3):
    for p in range(4):
        A(f"L_B{q}_{p}:")
        H1a(2*q, p); H1b(2*q, p); H2(2*q+1); H1a(2*q+1, p); H2a(2*q); H1b(2*q+1, p); H2b(2*q)
        A(f"s_cbranch_scc1 L_T{q}_{(p+1)&3}")
    A(f"s_branch L_B{q}_0")
    spot(True)
A(f"""
L_hk1:
s_mov_b64 exec, 1
v_mov_b32 v43, 1
s_waitcnt vmcnt(0)
ds_add_u32 v42, v43 offset:{C_W2}
s_mov_b64 exec, -1
""")
ts(27)
for p in range(4): A(f"s_cmp_eq_u32 s57, {p}\ns_cbranch_scc1 L_H_{p}")
A(f"""
s_branch L_safe
L_wrap1:
s_setprio {PR[1]}
L_wrap1b:
""")
ts(26); spot()
A(f"""
v_lshrrev_b32 v37, 4, v0
v_lshlrev_b32 v38, 2, v37
v_and_b32 v39, 15, v0
v_xor_b32 v38, v38, v39
v_lshlrev_b32 v38, 4, v38
v_lshl_add_u32 v38, v37, 8, v38
""")
lds_spin(C_Q, 60, "s_cmp_ge_u32 s60, 16", "L_qrd")
A(f"L_qrd:\ns_lshl_b32 s58, s3, 12\ns_add_u32 m0, s58, {QB}")
for i in range(4): A(f"buffer_load_dwordx4 v38, s[28:31], s58 offen offset:{1024*i} lds")
for p in range(4): A(f"s_cmp_eq_u32 s57, {p}\ns_cbranch_scc1 L_E0_{p}")
A("s_branch L_hk1")
spot(True)
for p in range(4):
    A(f"""
    L_rs{p}:
    v_readfirstlane_b32 s58, v1
    s_add_u32 s58, s58, {HL}
    s_mov_b32 exec_lo, 0
    v_mov_b32 v1, s58
    s_mov_b32 exec_lo, -1
    ds_read_b128 v[16:19], v1 offset:{32 if p < 2 else 64}
    ds_read_b128 v[20:23], v1 offset:48
    s_mov_b32 s81, {p}
    ds_read2_b32 v[36:37], v1 offset0:{2*p} offset1:{2*p+2}
    ds_read2_b32 v[38:39], v1 offset0:{2*p+4} offset1:{2*p+6}
    s_waitcnt lgkmcnt(0)
    """)
    for i in range(4): gather((p+i) & 3, 36+i)
    if p < 3: A("s_branch L_flush")
A("L_flush:\ns_waitcnt lgkmcnt(0)")
ts(15); spot()
if TS: A("s_memtime s[100:101]\ns_waitcnt lgkmcnt(0)\nv_writelane_b32 v41, s100, 47")
A(f"""
v_lshrrev_b32 v36, 5, v0
v_add_u32 v36, s80, v36
v_mul_u32_u24 v36, {HROW}, v36
v_bfe_u32 v37, v0, 2, 3
v_lshl_add_u32 v36, v37, 6, v36
v_and_b32 v37, 3, v0
v_lshl_add_u32 v36, v37, 3, v36
v_add_u32 v36, {HSB}, v36
s_cmp_lg_u32 s83, 0
s_cbranch_scc1 L_flush2
""")
def guard(ks, ok):
    for k in ks:
        if k == ks[0]: A(f"v_pk_mul_f32 v[32:33], v[{Nn(k)}:{Nn(k)+1}], v[{Dd(k)}:{Dd(k)+1}]\nv_pk_mul_f32 v[34:35], v[{Nn(k)+2}:{Nn(k)+3}], v[{Dd(k)+2}:{Dd(k)+3}]")
        else: A(f"v_pk_fma_f32 v[32:33], v[{Nn(k)}:{Nn(k)+1}], v[{Dd(k)}:{Dd(k)+1}], v[32:33]\nv_pk_fma_f32 v[34:35], v[{Nn(k)+2}:{Nn(k)+3}], v[{Dd(k)+2}:{Dd(k)+3}], v[34:35]")
    A(f"""
    v_pk_add_f32 v[32:33], v[32:33], v[34:35]
    v_add_f32 v32, v32, v33
    v_mov_b32 v33, 0x207
    v_cmp_class_f32 vcc, v32, v33
    s_cmp_lg_u32 s55, 0
    s_cbranch_scc1 {ok}
    """)
    if OPT['FORCE_GUARD'] == 1 and len(ks) > 2: A("s_bitcmp0_b32 s3, 0\ns_cbranch_scc1 L_safe")
    if OPT['FORCE_GUARD'] == 2 and len(ks) == 2: A("s_branch L_safe")
    A(f"s_cbranch_vccnz L_safe\n{ok}:")
def hout(k, off):
    spot()
    n, d = Nn(k), Dd(k); o = 8 + 2*(k & 1)
    for i in range(4): A(f"v_rcp_f32 v{d+i}, v{d+i}")
    A(f"""
    v_pk_mul_f32 v[{n}:{n+1}], v[{n}:{n+1}], v[{d}:{d+1}]
    v_pk_mul_f32 v[{n+2}:{n+3}], v[{n+2}:{n+3}], v[{d+2}:{d+3}]
    v_cvt_pk_bf16_f32 v{o}, v{n}, v{n+1}
    v_cvt_pk_bf16_f32 v{o+1}, v{n+2}, v{n+3}
    ds_write_b64 v36, v[{o}:{o+1}] offset:{off}
    """)
guard(list(range(NS)), "L_fl2")
spot()
for k in range(NS): hout(k, 2*HROW*(k >> 1) + 32*(k & 1))
A(f"""
s_cmp_lg_u32 s3, 0
s_cbranch_scc1 L_fl3
s_mov_b32 s58, {Q3P}
v_lshl_add_u32 v37, v0, 4, s58
ds_read_b128 v[{Q(0)}:{Q(0)+3}], v37
ds_read_b128 v[{Q(1)}:{Q(1)+3}], v37 offset:1024
s_mov_b32 s60, 1.0
s_mov_b32 s61, 1.0
s_mov_b32 s83, 1
""")
initnd([Nn(0), Dd(0), Nn(1), Dd(1)])
A("s_waitcnt lgkmcnt(0)\ns_cmp_lg_u32 s55, 0\ns_cbranch_scc1 L_safe")
for p in range(3): A(f"s_cmp_eq_u32 s81, {p}\ns_cbranch_scc1 L_E0_{p}")
A("s_branch L_E0_3")
spot(True)
A("L_flush2:")
guard([0, 1], "L_fl2b")
for k in range(2): hout(k, 2*HROW*3 + 32*k)
A("L_fl3:")
ts(16); spot()
A(f"""
s_and_b32 s60, s3, 3
s_lshr_b32 s61, s3, 2
s_lshl_b32 s59, s61, 2
v_mov_b32 v2, s59
v_mov_b32 v3, 1
s_waitcnt lgkmcnt(0)
s_mov_b64 exec, 1
ds_add_u32 v2, v3 offset:{C_G}
s_mov_b64 exec, -1
v_lshrrev_b32 v4, 4, v0
v_and_b32 v5, 15, v0
s_lshl_b32 s56, s60, 6
v_lshl_add_u32 v6, v4, 4, s56
global_load_dwordx4 v[124:127], v6, s[18:19]
v_bfe_u32 v7, v0, 2, 2
v_lshl_add_u32 v1, v4, 3, v7
v_lshlrev_b32 v1, 8, v1
v_xor_b32 v7, s60, v7
v_lshl_add_u32 v1, v7, 6, v1
v_and_b32 v7, 3, v0
v_lshl_add_u32 v1, v7, 4, v1
""")
lds_spin(C_W2, 57, "s_cmp_ge_u32 s57, 16", "L_w2ok")
A("L_w2ok:\ns_waitcnt vmcnt(1)")
spot()
for s in range(8):
    for a in range(2):
        for hf in range(2):
            r = 44 + a*32 + s*4 + hf*2
            A(f"ds_read_b64_tr_b16 v[{r}:{r+1}], v1 offset:{QB+8192*s+1024*hf+8*a}")
A(f"""
s_mul_i32 s56, s61, 24
s_min_u32 s57, s61, 1
s_lshl1_add_u32 s56, s57, s56
v_add_u32 v5, s56, v5
v_lshlrev_b32 v3, 2, v5
v_mul_u32_u24 v1, {HROW}, v5
v_lshl_add_u32 v1, v4, 4, v1
v_add_u32 v1, {HSB}, v1
s_mov_b32 s32, s20
s_mov_b32 s33, s21
s_add_u32 s34, s51, s52
s_lshl_b32 s34, s34, 8
s_mov_b32 s35, 0x00020000
s_add_u32 s59, s51, 127
s_lshl_b32 s59, s59, 8
v_add_u32 v6, s59, v6
s_cmp_eq_u32 s61, 0
s_mov_b32 s96, 0x00ff00ff
s_cselect_b32 s96, 0x03ff03ff, s96
s_mov_b32 s97, s96
s_movk_i32 s59, -256
s_mov_b32 s56, {NLN2}
""")
ts(17); spot()
lds_spin(C_G, 57, "s_cmp_ge_u32 s57, 4", "L_gok", av=2)
A("L_gok:")
ts(18)
spot()
A(f"ds_read_b32 v42, v3 offset:{ROWI}\nds_read_b32 v43, v3 offset:{ROWI+64}")
BB = (108, 8)
def rd(qg):
    for t in range(2):
        for h in range(2):
            r = BB[qg & 1] + 8*t + 4*h
            A(f"ds_read_b128 v[{r}:{r+3}], v1 offset:{16*HROW*t + 64*(2*qg+h)}")
rd(0)
for qg in range(4):
    spot()
    if qg < 3: rd(qg+1); A(f"s_waitcnt lgkmcnt(4)")
    else: A("s_waitcnt lgkmcnt(0)")
    for h in range(2):
        s = 2*qg + h
        for t in range(2):
            for a in range(2):
                c = 24 + 8*t + 4*a; ar = 44 + a*32 + s*4; br = BB[qg & 1] + 8*t + 4*h
                A(f"v_mfma_f32_16x16x32_bf16 v[{c}:{c+3}], v[{ar}:{ar+3}], v[{br}:{br+3}], " + ("0" if s == 0 else f"v[{c}:{c+3}]"))
    if qg == 0:
        for t in range(2):
            A(f"v_and_b32 v{4+t}, 127, v{42+t}\nv_lshrrev_b32 v{42+t}, 8, v{42+t}\nv_mad_i32_i24 v{4+t}, v{4+t}, s59, v6\nv_cvt_f32_u32 v{42+t}, v{42+t}")
spot()
A("s_waitcnt vmcnt(0)")
for i in range(4):
    A(f"v_lshlrev_b32 v{44+2*i}, 16, v{124+i}\nv_and_b32 v{45+2*i}, s26, v{124+i}")
for t in range(2):
    for i in range(8): A(f"v_mul_f32 v{52+8*t+i}, v{42+t}, v{44+i}")
for t in range(2):
    c = 24 + 8*t
    for i in range(8): A(f"v_fma_f32 v{c+i}, v{c+i}, s56, v{52+8*t+i}")
    for i in range(4): A(f"v_cvt_pk_bf16_f32 v{68+4*t+i}, v{c+2*i}, v{c+2*i+1}")
    if t == 1: A("s_mov_b64 exec, s[96:97]")
    A(f"buffer_store_dwordx4 v[{68+4*t}:{71+4*t}], v{4+t}, s[32:35], 0 offen {OPT.get('OSC', '').replace('+', ' ')}")
A("L_fin:")
if TS:
    A("s_mov_b64 exec, -1\ns_waitcnt vmcnt(0)")
    ts(19)
    A(f"""
    s_lshl_b32 s56, s2, 4
    s_add_u32 s56, s56, s3
    s_lshl_b32 s56, s56, 8
    s_add_u32 s56, s56, {WS_TS}
    v_lshlrev_b32 v1, 2, v0
    buffer_store_dword v41, v1, s[44:47], s56 offen
    """)
    if 'DIAG' in OPT:
        A(f"s_cmp_lg_u32 s3, {OPT.get('DW', 0)}\ns_cbranch_scc1 L_end\nv_readlane_b32 s56, v41, 0")
        if OPT['DIAG'] >= 100: A(f"s_mov_b32 s57, {OPT['DIAG']*100}")
        else: A(f"v_readlane_b32 s57, v41, {OPT['DIAG']}\ns_sub_u32 s57, s57, s56\ns_mul_i32 s57, s57, {OPT.get('DMUL', 10)}\ns_min_u32 s57, s57, 200000")
        A("""
        L_diag:
        s_sleep 4
        s_memrealtime s[100:101]
        s_waitcnt lgkmcnt(0)
        s_sub_u32 s58, s100, s56
        s_cmp_lt_u32 s58, s57
        s_cbranch_scc1 L_diag
        """)
A("L_end:\ns_endpgm")
A(";@cold")
A(f"""
L_fill2:
v_readlane_b32 s61, v10, 63
v_add_u32 v9, 64, v0
v_min_u32 v9, s56, v9
v_lshl_add_u32 v9, v9, 2, s57
v_add_u32 v13, 512, v13
v_max_u32 v11, s61, v11
""")
fill(11, 9, "0xffffffff")
A(f"""
s_mov_b64 exec, -1
s_branch L_filled
L_recover:
s_setprio 0
s_waitcnt vmcnt(0) lgkmcnt(0)
s_barrier
s_mov_b32 s54, 0
L_recov_step:
s_add_u32 s54, s54, 1
s_add_u32 s48, s2, s54
s_and_b32 s48, s48, 255
""")
bucket_range(48, 56, 49, 50)
A(f"""
s_cmp_lt_u32 s3, 8
s_cbranch_scc1 L_Gfirst
L_recovL:
s_barrier
L_recovG:
s_waitcnt vmcnt(0) lgkmcnt(0)
s_barrier
s_cmp_lt_u32 s54, 256
s_cbranch_scc1 L_recov_step
v_mov_b32 v43, 1
ds_write_b32 v42, v43 offset:{C_ABORT}
ds_write_b32 v42, v43 offset:{C_PFA}
v_mov_b32 v43, 0
ds_write_b32 v42, v43 offset:{C_W2}
ds_write_b32 v42, v43 offset:{C_Q}
""")
prep()
A(f"""
s_waitcnt lgkmcnt(0)
s_barrier
s_branch L_B4
L_safe0:
s_mov_b32 s57, 4
s_branch L_wrap1b
L_safe:
s_mov_b32 s55, 1
s_setprio 0
s_mov_b32 s60, 1.0
s_mov_b32 s61, 1.0
s_mul_i32 s73, s83, 6
s_add_u32 s73, s73, s80
s_lshl_b32 s73, s73, 2
v_lshl_add_u32 v23, v0, 2, s73
s_waitcnt vmcnt(0) lgkmcnt(0)
ds_read_b32 v22, v23 offset:{ROWI}
""")
initnd(ALLND)
srd(28, 10, E*4); srd(32, 8, E*4); srd(36, 6, E*2)
A(f"""
v_lshlrev_b32 v16, 2, v0
v_lshlrev_b32 v17, 1, v0
v_and_b32 v24, 31, v0
v_lshlrev_b32 v24, 4, v24
s_mov_b32 s72, 0
s_movk_i32 s74, {N-1}
s_waitcnt lgkmcnt(0)
v_and_b32 v22, 127, v22
v_sub_u32 v25, 127, v22
""")
for i in range(6): A(f"v_readlane_b32 s{64+i}, v25, {i}")
A("s_cmp_eq_u32 s83, 0\ns_cbranch_scc1 L_sloop")
for i in range(2, 6): A(f"s_mov_b32 s{64+i}, -1")
A(f"""
L_sloop:
s_lshl_b32 s56, s72, 1
buffer_load_dword v18, v16, s[28:31], s56 offen
buffer_load_dword v19, v16, s[32:35], s56 offen
buffer_load_ushort v20, v17, s[36:39], s72 offen
s_waitcnt vmcnt(0)
v_min_u32 v18, s74, v18
v_subrev_u32 v21, s51, v18
v_cmp_gt_u32 s[96:97], s52, v21
s_cmp_eq_u64 s[96:97], 0
s_cbranch_scc1 L_snext
v_mov_b32 v25, 6
""")
for i in range(6): A(f"v_cmp_eq_u32 vcc, s{64+i}, v21\nv_cndmask_b32 v25, v25, {i}, vcc")
A(f"""
v_cmp_gt_u32 vcc, 6, v25
s_and_b64 s[96:97], s[96:97], vcc
L_sbit:
s_mov_b64 exec, -1
s_cmp_eq_u64 s[96:97], 0
s_cbranch_scc1 L_snext
s_ff1_i32_b64 s56, s[96:97]
s_bitset0_b64 s[96:97], s56
v_readlane_b32 s57, v19, s56
v_readlane_b32 s58, v20, s56
v_readlane_b32 s60, v25, s56
s_min_u32 s57, s57, s74
s_lshl_b32 s57, s57, 9
{RA(57)}
s_lshl_b32 s58, s58, 16
s_mov_b32 s59, s58
buffer_load_dwordx4 v[28:31], v24, s[44:47], s57 offen offset:{PB0} sc1
s_lshl_b64 exec, 1, s60
v_add_u32 v22, 0x100, v22
s_bitcmp1_b32 s60, 0
s_cselect_b32 exec_lo, 0, -1
s_cselect_b32 exec_hi, -1, 0
s_lshr_b32 s60, s60, 1
s_waitcnt vmcnt(0)
""")
for qq in range(3):
    if qq < 2: A(f"s_cmp_lg_u32 s60, {qq}\ns_cbranch_scc1 L_sk{qq+1}")
    for a in range(2):
        k = 2*qq + a; q, n = Q(k), Nn(k); w = (WA, WB)[a]
        A(f"""
        v_pk_fma_f32 v[8:9], s[58:59], v[{w}:{w+1}], v[{q}:{q+1}]
        v_pk_fma_f32 v[10:11], s[58:59], v[{w+2}:{w+3}], v[{q+2}:{q+3}]
        v_mfma_f32_4x4x4_16b_bf16 v[8:11], v[2:3], v[{28+2*a}:{29+2*a}], v[8:11]
        v_exp_f32 v12, v8
        v_exp_f32 v13, v9
        v_exp_f32 v14, v10
        v_exp_f32 v15, v11
        v_pk_add_f32 v[12:13], v[12:13], 1.0 op_sel_hi:[1,0]
        v_pk_add_f32 v[14:15], v[14:15], 1.0 op_sel_hi:[1,0]
        v_rcp_f32 v12, v12
        v_rcp_f32 v13, v13
        v_rcp_f32 v14, v14
        v_rcp_f32 v15, v15
        v_pk_fma_f32 v[{n}:{n+1}], v[8:9], v[12:13], v[{n}:{n+1}]
        v_pk_fma_f32 v[{n+2}:{n+3}], v[10:11], v[14:15], v[{n+2}:{n+3}]
        """)
    A("s_branch L_sbit")
    if qq < 2: A(f"L_sk{qq+1}:")
A(f"""
L_snext:
s_add_u32 s72, s72, 128
s_cmp_lt_u32 s72, {2*E}
s_cbranch_scc1 L_sloop
s_cmp_eq_u32 s83, 0
s_cselect_b32 exec_lo, 63, 3
s_mov_b32 exec_hi, 0
ds_write_b32 v23, v22 offset:{ROWI}
s_mov_b64 exec, -1
L_last:
s_branch L_flush
""")

KAL = OPT.get('KAL', 12)
body, npad = pad(L, verbose=bool(OPT.get('V')))
hdr = open('standalone__edge_featured_mpnn_mpnn__graph.s.ref').read().split('; Override')[0]
def emit(body):
    out = hdr + f"; @launch grid=(256,1,1) block=(1024,1,1) lds={LDS}\n"
    out += f'.amdgcn_target "amdgcn-amd-amdhsa--gfx950"\n.text\n.globl {KN}\n.p2align {KAL}\n.type {KN},@function\n'
    out += "\n".join(body) + "\n"
    out += f""".section .rodata,"a"
.p2align 6
.amdhsa_kernel {KN}
  .amdhsa_next_free_vgpr 128
  .amdhsa_next_free_sgpr 102
  .amdhsa_accum_offset 128
  .amdhsa_group_segment_fixed_size 0
  .amdhsa_kernarg_size 88
  .amdhsa_user_sgpr_count 2
  .amdhsa_user_sgpr_kernarg_segment_ptr 1
  .amdhsa_system_sgpr_workgroup_id_x 1
.end_amdhsa_kernel
"""
    return out
import subprocess, re
def offsets(body):
    t = []; k = 0
    for b in body:
        if b.startswith(';@'): t.append(f"M_{k}:"); k += 1
        else: t.append(b)
    open('_m.s', 'w').write(emit(t))
    subprocess.run(["clang", "-x", "assembler", "-target", "amdgcn-amd-amdhsa", "-mcpu=gfx950", "-c", "_m.s", "-o", "_m.o"], check=True)
    o = subprocess.run(["llvm-objdump", "-t", "_m.o"], capture_output=True, text=True).stdout
    d = {int(m.group(2)): int(m.group(1), 16) for m in re.finditer(r"^([0-9a-f]+) .* M_(\d+)$", o, re.M)}
    return [d[i] for i in range(k)]
nb = []
for i, b in enumerate(body):
    nb.append(b)
    if b.strip().startswith('s_branch') and i+1 < len(body) and body[i+1].endswith(':'): nb.append(';@dead')
body = nb
def place(body, chosen, chains):
    out = []; k = 0
    for b in body:
        if not b.startswith(';@'): out.append(b); continue
        out.append(b)
        if k in chosen:
            n = chosen[k]
            out.append(f"L_stub{n}:"); out.append(f"    {'s_branch' if b == ';@dead' else 's_cbranch_execz'} {chains[n]}")
        if b in (';@hopB', ';@hopW') and chosen:
            ws = {';@hopB': range(8, 15), ';@hopW': (15,)}[b]
            if any(w in first for w in ws): out.append("    s_mov_b64 exec, 0")
            for w in ws:
                if w in first:
                    if b == ';@hopW': out.append(f"    s_branch L_stub{first[w]}")
                    else: out.append(f"    s_cmp_eq_u32 s3, {w}"); out.append(f"    s_cbranch_scc1 L_stub{first[w]}")
        k += 1
    return out
if OPT.get('WARM', 1):
    marks = [b for b in body if b.startswith(';@')]
    chosen = {}; chains = {}; first = {}
    COV = OPT.get('COV', 1024)
    for it in range(6):
        off = offsets(place(body, chosen, chains))
        g0 = off[marks.index(';@g0')]; g1 = off[marks.index(';@g1')]; b0 = off[marks.index(';@hopB')]
        sel = []; gap = 0
        for lo, hi, forced in ((b0, g0 - 64, 0), (g0 - 64, off[marks.index(';@cold')], 1)):
            cand = [k for k, m in enumerate(marks) if m in (';@spot', ';@dead') and lo <= off[k] < hi and m != ';@hopB']
            end = min((lo & ~127) + COV, (lo | 4095) + 1)
            if forced: sel.append(cand[0]); end = min((off[cand[0]] & ~127) + COV + 128, (off[cand[0]] | 4095) + 1)
            while end < hi:
                c = [k for k in cand if (off[k] & ~127) <= end and (not sel or off[k] > off[sel[-1]]) and (off[k] >> 12) == (end >> 12) and off[k] > end - 640]
                d = [k for k in c if marks[k] == ';@dead' and off[k] > end - 256]
                if d: k = d[-1]
                elif c: k = c[-1]
                else:
                    c = [k for k in cand if off[k] > end]
                    if not c: break
                    k = c[0]; gap += (off[k] & ~127) - end
                sel.append(k)
                end = min((off[k] & ~127) + COV + 128, (off[k] | 4095) + 1)
        new = {k: n for n, k in enumerate(sel)}
        per = {w: [] for w in range(8, 16)}; j = 0
        for n, k in enumerate(sel):
            if g0 - 64 <= off[k] < g1: per[15].append(n)
            else: per[8 + j % 7].append(n); j += 1
        first = {w: v[0] for w, v in per.items() if v}
        chains = {}
        for w, v in per.items():
            back = 'L_W15cont' if w == 15 else 'L_Bback'
            for i, n in enumerate(v): chains[n] = f"L_stub{v[i+1]}" if i+1 < len(v) else back
        if new == chosen: break
        chosen = new
    print("stubs", len(sel), "gap", gap, [hex(off[k]) + marks[k][2] for k in sel], hex(b0), hex(g0), hex(g1), hex(hi), file=sys.stderr)
    body = place(body, chosen, chains)
body = [b for b in body if not b.startswith(';@')]
open(OPT.get('OUT', 'k.s'), 'w').write(emit(body))
print("pads", npad, "lines", len(body), file=sys.stderr)
```

```python
import sys, os, struct
sys.path.insert(0, os.path.dirname(os.path.abspath(__file__)))
from asmlib import *

OPT = dict(TS=0, FORCE_SAFE=0, FORCE_RECOV=0, FORCE_GUARD=0, POLLMAX=6000, SLP=8, NT=1, PDELAY=8, LPRIO=2, PUBT=6, HOOK=1, EP=0, WBM=6,
           PRIO='3210')
for a in sys.argv[1:]:
    k, v = a.split('=')
    OPT[k] = int(v) if v.lstrip('-').isdigit() and k not in ('PRIO', 'GPRIO') else v
TS = OPT['TS']; POLLMAX = OPT['POLLMAX']; SLP = OPT['SLP']
SC = 'sc1'
KN = "standalone__edge_featured_mpnn_mpnn__graph_kernel"

def f32(x): return "0x%08x" % struct.unpack('<I', struct.pack('<f', x))[0]
NLOG2E = f32(-1.4426950408889634); NLN2 = f32(-0.6931471805599453)

N = 25000; E = 400000; CH = 1564
PB0 = 512
WS_REC = 0xD00000; REC_STRIDE = 12544; WS_OFF = 0x1040000; WS_PF = 0x1080000; WS_TS = 0x1500000; WS_SIZE = 0x2000000
QBLK = 14336; QROW = 144
CTR = 0; KEY = 256; SORT = 768; ROWI = 1280; CW = 2048; CB = 3072; QB = 4096
STG = QB + 8*QBLK; CNT = STG + 12544; START = CNT + 1024; XB = START + 1024; LDS = 163840
NL = STG; NCAP = 46; WL = NL + 98*NCAP*4; HL = 768; LW = 2*HL; Q3P = LDS - 2048
assert XB % 256 == 0 and XB + 28672 <= LDS and WL + 16*LW + 64 <= Q3P and WL % 16 == 0
C_REC, C_PA, C_GO, C_ABORT, C_W2, C_Q, C_PFA, C_X, C_S2, C_S3, C_WB = 0, 4, 8, 12, 16, 20, 28, 32, 40, 44, 48
TAIL7 = XB + 25600
TGT = 64
C_G = 192
C_SLOT = 60
ROT = OPT.get('ROT', 0); DBK = OPT.get('DBK', 4); DP = 's[0:1]'
EP = OPT['EP']; WBM = OPT['WBM']; assert OPT['PUBT'] >= 6 - EP and STG + 7*2048 <= XB
RA = lambda r: f's_add_u32 s{r}, s{r}, s70' if ROT else ''
HSB = QB + 65536; HROW = 528
assert HSB + 106*HROW <= WL
R = 4; NS = 6
SB0 = 56
def Q(k): return SB0 + 12*k
def Nn(k): return SB0 + 12*k + 4
def Dd(k): return SB0 + 12*k + 8
RING = (24, 28, 44, 48); WA = 4; WB = 52; VN = 40
SPIN = 0x100000
BIAS = 128
ASG = [[28, 34, 46, 48], [1, 29, 45], [10, 19, 37], [3, 24, 42], [0, 39, 47], [9, 25, 32], [2, 23, 44], [4, 20, 43], [8, 26, 30], [6, 21, 40], [5, 31, 33], [11, 18, 38], [12, 15, 36], [7, 16, 41], [13, 17, 35], [14, 22, 27]]
assert sorted(sum(ASG, [])) == list(range(49))

L = []
def A(s):
    for line in s.strip('\n').split('\n'):
        line = line.strip()
        if not line: continue
        L.append(line if line.endswith(':') or line.startswith(('.', ';')) else "    " + line)
def srd(r, lo, size, w3="0x00020000"):
    A(f"s_mov_b32 s{r}, s{lo}\ns_mov_b32 s{r+1}, s{lo+1}\ns_mov_b32 s{r+2}, {size}\ns_mov_b32 s{r+3}, {w3}")
def ts(i):
    if TS: A(f"s_memrealtime s[100:101]\ns_waitcnt lgkmcnt(0)\nv_writelane_b32 v41, s100, {i}")
def bar(): A("s_barrier")
def spot(dead=False): A(";@dead" if dead else ";@spot")
uid = [0]
def lab(p):
    uid[0] += 1; return f"L_{p}_{uid[0]}"
def dpp(op, v, ctl, m="row_mask:0xf bank_mask:0xf bound_ctrl:0"):
    A(f"{op}_dpp v{v}, v{v}, v{v} {ctl} {m}")
def dpp_add(v, ctl, m="row_mask:0xf bank_mask:0xf bound_ctrl:0"): dpp("v_add_u32", v, ctl, m)
def bucket_range(cur, b, n0, n1):
    A(f"""
    s_and_b32 s{b}, s{cur}, 7
    s_lshl_b32 s{b}, s{b}, 5
    s_lshr_b32 s27, s{cur}, 3
    s_or_b32 s{b}, s{b}, s27
    s_mul_i32 s{n0}, s{b}, 6400845
    s_add_u32 s{n0}, s{n0}, 65535
    s_add_u32 s{n1}, s{n0}, 6400845
    s_lshr_b32 s{n0}, s{n0}, 16
    s_lshr_b32 s{n1}, s{n1}, 16
    s_min_u32 s{n1}, s{n1}, {N}
    """)
def lds_or(off, val):
    A(f"v_mov_b32 v43, {val}\nds_or_b32 v42, v43 offset:{off}")
def lds_spin(off, dst, cmp_ok, ok, tmp=58, slp=1, av=42):
    l = lab('spin')
    A(f"""
    s_mov_b32 s{tmp}, 0
    {l}:
    ds_read_b32 v43, v{av} offset:{off}
    s_add_u32 s{tmp}, s{tmp}, 1
    s_waitcnt lgkmcnt(0)
    v_readfirstlane_b32 s{dst}, v43
    {cmp_ok}
    s_cbranch_scc1 {ok}
    s_sleep {slp}
    s_cmp_lt_u32 s{tmp}, {SPIN}
    s_cbranch_scc1 {l}
    """)
def lsync(off, tmp=60):
    l = lab('ls'); ok = lab('lsok')
    A(f"""
    s_mov_b64 exec, 1
    ds_add_u32 v42, v10 offset:{off}
    s_mov_b64 exec, -1
    s_mov_b32 s{tmp}, 0
    {l}:
    ds_read_b32 v43, v42 offset:{off}
    s_add_u32 s{tmp}, s{tmp}, 1
    s_waitcnt lgkmcnt(0)
    v_readfirstlane_b32 s{tmp+1}, v43
    s_cmp_ge_u32 s{tmp+1}, 7
    s_cbranch_scc1 {ok}
    s_cmp_lt_u32 s{tmp}, {SPIN}
    s_cbranch_scc1 {l}
    {ok}:
    """)
NT = 'nt' if OPT['NT'] else ''
def caddr(v, t, s, rot=True):
    A(f"""
    v_lshrrev_b32 v{v}, 3, v0
    v_lshlrev_b32 v{v}, 13, v{v}
    v_and_b32 v{t}, 7, v0
    v_lshl_add_u32 v{v}, v{t}, 7, v{v}
    v_lshlrev_b32 v{t}, 2, v0
    s_and_b32 s{s}, s2, 7
    s_lshl_b32 s{s}, s{s}, 10
    s_add_u32 s{s}, s{s}, {WS_PF}
    {RA(s) if rot else ''}
    """)
def signal(ty, v, one, s):
    A(f"""
    s_mov_b64 exec, 0xff
    v_lshlrev_b32 v{v}, 10, v0
    v_mov_b32 v{one}, 1
    s_lshl_b32 s{s}, s2, 4
    s_and_b32 s{s}, s{s}, 0x380
    s_add_u32 s{s}, s{s}, {WS_PF + 8192*ty}
    {RA(s)}
    buffer_atomic_add v{one}, v{v}, s[44:47], s{s} offen sc1
    """)
    if ty == 1: A(f"s_mov_b64 exec, 1\nglobal_atomic_add v42, v{one}, {DP} sc1")
def snap():
    A(f"""
    v_lshrrev_b32 v27, 1, v0
    s_lshl_b32 s56, s62, 5
    v_add_u32 v27, s56, v27
    v_lshlrev_b32 v25, 10, v27
    s_lshl_b32 s98, s53, 2
    s_add_u32 s98, s98, {WS_OFF}
    """)
def initnd(regs):
    for k in range(NS):
        for r, val in ((Nn(k), "0"), (Dd(k), "s[60:61]")):
            if r in regs: A(f"v_mov_b64 v[{r}:{r+1}], {val}\nv_mov_b64 v[{r+2}:{r+3}], {val}")
ALLND = [r for k in range(NS) for r in (Nn(k), Dd(k))]
def prep():
    spot()
    A("s_mov_b32 s22, 0")
    for w in range(16):
        a = ASG[w] + [0]
        A(f"s_cmp_eq_u32 s3, {w}\ns_cselect_b32 s22, {hex(a[0] | a[1] << 8 | a[2] << 16 | a[3] << 24)}, s22")
    A(f"""
    ;@spot
    v_mul_u32_u24 v33, 43, v0
    v_lshrrev_b32 v33, 7, v33
    v_mul_u32_u24 v34, 24, v33
    v_lshlrev_b32 v32, 3, v0
    v_sub_u32 v32, v32, v34
    v_cmp_lt_u32 vcc, 14, v0
    v_cndmask_b32 v32, v32, 24, vcc
    v_bfe_u32 v32, s22, v32, 8
    v_lshlrev_b32 v32, 3, v32
    v_mad_u32_u24 v33, v33, 6, 8
    v_subrev_u32 v34, 6, v33
    v_min_u32 v33, 26, v33
    v_min_u32 v34, 26, v34
    s_mov_b32 s56, {(127*NCAP + BIAS)*8193}
    v_lshl_add_u32 v35, v0, 26, s56
    v_lshrrev_b32 v43, 5, v0
    s_bfe_u32 s56, s22, 0x80000
    s_bfe_u32 s57, s22, 0x80008
    s_bfe_u32 s58, s22, 0x80010
    s_lshl_b32 s56, s56, 3
    s_lshl_b32 s57, s57, 3
    s_lshl_b32 s58, s58, 3
    v_lshl_add_u32 v36, v43, 2, s56
    v_lshl_add_u32 v37, v43, 2, s57
    v_lshl_add_u32 v38, v43, 2, s58
    ;@spot
    v_bfe_u32 v43, v0, 2, 3
    v_mul_u32_u24 v39, {QBLK}, v43
    v_and_b32 v43, 3, v0
    v_lshl_add_u32 v39, v43, 5, v39
    v_and_b32 v43, 4, v0
    v_lshl_add_u32 v39, v43, 2, v39
    v_and_b32 v43, 8, v0
    v_lshl_add_u32 v39, v43, 4, v39
    v_add_u32 v39, {QB + 127*QROW}, v39
    s_lshl_b32 s56, s3, 6
    v_and_b32 v40, 60, v0
    v_add_u32 v40, s56, v40
    """)

def gaddr():
    A(f"""
    v_lshrrev_b32 v7, 4, v0
    v_and_b32 v6, 15, v0
    v_xor_b32 v6, v6, v7
    s_and_b32 s61, s3, 3
    s_lshl_b32 s61, s61, 2
    v_xor_b32 v6, s61, v6
    v_lshlrev_b32 v6, 4, v6
    v_lshl_add_u32 v6, v7, 8, v6
    s_lshl_b32 s61, s3, 10
    s_add_u32 s64, s61, {XB}
    s_lshl_b32 s65, s49, 8
    s_add_u32 s65, s65, s61
    v_lshrrev_b32 v5, 2, v0
    v_lshlrev_b32 v5, 9, v5
    v_lshrrev_b32 v8, 5, v0
    v_lshlrev_b32 v8, 1, v8
    v_and_b32 v3, 3, v0
    v_xor_b32 v8, v8, v3
    v_lshl_add_u32 v5, v8, 4, v5
    s_lshl_b32 s56, s3, 6
    v_add_u32 v1, s56, v5
    s_mul_i32 s59, s3, {QBLK}
    s_add_u32 s59, s59, {QB}
    """)
def tailb(b, d):
    A(f"s_lshl_b32 s{d}, s{b}, 11\ns_add_u32 s{d}, s{d}, {STG}\ns_cmp_eq_u32 s{b}, 7\ns_cselect_b32 s{d}, {TAIL7}, s{d}")
def wdma(base, n=8, ldsoff=0, av=1, sb=59):
    A(f"s_add_u32 m0, s{sb}, {ldsoff}\ns_mov_b32 s56, {base}")
    for i in range(n):
        A(f"buffer_load_dwordx4 v{av}, s[28:31], s56 offen lds")
        if i < n-1: A("s_add_u32 m0, m0, 1024\ns_add_u32 s56, s56, 8192")
A(f"""
{KN}:
s_cmp_ge_u32 s2, 256
s_cbranch_scc1 L_end
s_load_dwordx16 s[4:19], s[0:1], 0
s_load_dwordx2 s[20:21], s[0:1], 64
s_load_dwordx2 s[24:25], s[0:1], 80
s_load_dwordx2 s[0:1], s[0:1], 72
v_lshrrev_b32 v1, 6, v0
v_and_b32 v0, 63, v0
v_readfirstlane_b32 s3, v1
v_mov_b32 v42, 0
v_mov_b32 v41, 0
s_cmp_lg_u32 s3, 15
s_cbranch_scc1 L_noinit
v_mov_b64 v[16:17], 0
v_mov_b64 v[18:19], 0
s_mov_b32 s56, {CNT}
v_lshl_add_u32 v2, v0, 4, s56
v_lshlrev_b32 v23, 2, v0
v_sub_u32 v20, 127, v0
v_sub_u32 v21, 63, v0
ds_write_b128 v2, v[16:19]
ds_write_b32 v23, v16
ds_write2st64_b32 v23, v20, v21 offset0:{KEY//256} offset1:{KEY//256+1}
L_noinit:
s_mov_b32 s26, 0xffff0000
s_mov_b32 s54, 0
s_mov_b32 s55, 0
s_mov_b32 s48, s2
""")
bucket_range(2, 53, 51, 52)
A("s_mov_b32 s49, s51\ns_mov_b32 s50, s52\ns_sub_u32 s52, s52, s51\ns_sub_u32 s62, s3, 8")
A(f"""
s_mov_b32 s31, 0x00020000
s_mov_b32 s35, 0x00020000
s_mov_b32 s38, {E*2}
s_mov_b32 s39, 0x00020000
s_mov_b32 s46, {0x10000000 if ROT else WS_SIZE}
s_mov_b32 s47, 0x00020000
s_cmp_lt_u32 s3, 8
s_cbranch_scc1 L_Gfirst
s_lshl_b32 s56, s62, 6
v_add_u32 v1, s56, v0
s_mul_i32 s57, s2, {CH}
v_lshl_add_u32 v2, v1, 2, s57
v_lshlrev_b32 v3, 2, v2
v_lshlrev_b32 v4, 1, v2
s_mov_b32 s30, {E*4}
s_mov_b32 s34, {E*4}
s_cmp_eq_u32 s3, 15
s_cbranch_scc1 L_W15
s_waitcnt lgkmcnt(0)
s_mov_b32 s28, s10
s_mov_b32 s29, s11
s_mov_b32 s32, s8
s_mov_b32 s33, s9
s_mov_b32 s36, s6
s_mov_b32 s37, s7
buffer_load_dwordx4 v[44:47], v3, s[28:31], 0 offen {NT}
buffer_load_dwordx4 v[48:51], v3, s[32:35], 0 offen {NT}
buffer_load_dwordx2 v[52:53], v4, s[36:39], 0 offen {NT}
s_barrier
s_branch L_Lcont
L_W15:
""")
CPF = '''v_cmp_gt_u32 vcc, s58, v34
s_and_b64 exec, exec, vcc
s_cbranch_execz L_nocpf
global_load_dword v35, v34, s[56:57]
L_nocpf:
s_mov_b64 exec, 0xffff
''' if OPT.get('CPF', 1) else ''
SLOTC = (f's_bfe_u32 s70, s60, {hex(ROT | 3 << 16)}\ns_mul_i32 s70, s70, 0x1800000\n' if ROT < 32 else f's_mov_b32 s70, {ROT << 20}\n') + f'''v_mov_b32 v16, s70
ds_write_b32 v42, v16 offset:{C_SLOT}
s_add_u32 s23, s23, s70''' if ROT else ''
caddr(52, 23, 23, False)
if 0 < ROT < 32: A('s_memrealtime s[60:61]')
A(f"""
s_lshr_b32 s56, s2, 3
s_lshl_b32 s56, s56, 11
v_lshl_add_u32 v28, v0, 7, s56
v_add_u32 v29, 0x10000, v28
v_lshrrev_b32 v32, 3, v0
v_lshlrev_b32 v32, 6, v32
v_and_b32 v33, 1, v0
v_lshl_add_u32 v32, v33, 5, v32
v_bfe_u32 v33, v0, 1, 2
v_lshl_add_u32 v32, v33, 3, v32
v_add_u32 v33, 0x20000, v32
v_lshrrev_b32 v34, 1, v28
v_and_b32 v34, 0xffffff80, v34
s_getpc_b64 s[56:57]
L_pc:
s_mov_b32 s58, L_last-L_pc
s_waitcnt lgkmcnt(0)
{SLOTC}
s_mov_b32 s44, s24
s_mov_b32 s45, s25
s_mov_b64 exec, 0xffff
buffer_load_dword v53, v52, s[44:47], s23 offen sc1
{CPF}global_load_dword v30, v28, s[12:13]
global_load_dword v30, v29, s[12:13]
global_load_dword v31, v28, s[16:17]
s_mov_b64 exec, -1
global_load_dwordx2 v[36:37], v33, s[12:13]
global_load_dwordx2 v[38:39], v32, s[14:15]
{'s_waitcnt lgkmcnt(0)' if ROT else ''}
s_barrier
;@hopW
s_branch L_W15cont
L_Gfirst:
""")
gaddr()
A(f"""
s_mov_b32 s30, {257*512}
s_mov_b32 s34, {N*256}
s_waitcnt lgkmcnt(0)
s_mov_b32 s28, s12
s_mov_b32 s29, s13
s_mov_b32 s32, s4
s_mov_b32 s33, s5
""")
if OPT.get('GDP'): A(f"s_setprio {OPT['GDP']}")
ts(0)
bar()
ts(20)
A("s_mov_b32 m0, s64")
for i in range(3): A(f"buffer_load_dwordx4 v6, s[32:35], s65 offen {NT} lds\ns_add_u32 m0, m0, 8192\ns_add_u32 s65, s65, 8192")
A(f"s_cmp_lg_u32 s3, 0\ns_cbranch_scc1 L_Gw\nbuffer_load_dwordx4 v6, s[32:35], s65 offen {NT} lds\nL_Gw:")
wdma(0, 8)
A("s_branch L_Gcont")
def common():
    A(f"""
    s_mov_b32 s44, s24
    s_mov_b32 s45, s25
    s_mov_b32 s36, s6
    s_mov_b32 s37, s7
    s_mov_b32 s40, s24
    s_and_b32 s41, s25, 0xffff
    s_or_b32 s41, s41, 0x00100000
    s_mov_b32 s42, 64
    s_mov_b32 s43, 0x00800000
    """)
A(";@warm")
A(f"L_Lcont:\ns_mov_b64 exec, -1\ns_setprio {OPT['LPRIO']}\ns_mov_b32 s23, 0")
common()
ts(0)
ts(20)
DG = OPT.get('DG', 0)
if DG == 1: A("s_branch L_fin")
A(f"""
s_lshl_b32 s99, s2, 10
s_add_u32 s99, s99, {WS_OFF}
v_lshlrev_b32 v14, 4, v0
{f'ds_read_b32 v16, v42 offset:{C_SLOT}' if ROT else ''}
""")
snap()
A(f"""
v_cmp_gt_u32 vcc, {CH//4}, v1
v_mov_b32 v3, {E}
v_cmp_gt_u32 s[96:97], v3, v2
s_and_b64 s[96:97], s[96:97], vcc
v_mov_b32 v10, 1
s_movk_i32 s56, 2684
s_mov_b32 s57, {CNT}
s_movk_i32 s58, {N-1}
v_lshl_add_u32 v11, v0, 4, s57
""")
ts(22); spot()
A(f"s_waitcnt vmcnt(2)")
ts(1); spot()
A("s_mov_b64 exec, s[96:97]")
for i in range(4):
    A(f"""
    v_min_u32 v{44+i}, s58, v{44+i}
    v_mul_u32_u24 v{54+i}, s56, v{44+i}
    v_lshrrev_b32 v{54+i}, 18, v{54+i}
    v_lshl_add_u32 v{54+i}, v{54+i}, 2, s57
    ds_add_rtn_u32 v{58+i}, v{54+i}, v10
    """)
lsync(C_S2)
if ROT: A(f"v_readfirstlane_b32 s70, v16\n{RA(98)}\n{RA(99)}")
ts(2); spot()
A(f"ds_read_b128 v[64:67], v11\ns_waitcnt vmcnt(0)")
for i in range(4):
    A(f"""
    v_min_u32 v{48+i}, s58, v{48+i}
    v_and_b32 v{44+i}, 127, v{44+i}
    v_bfe_u32 v62, v{48+i}, 4, 2
    v_mad_u32_u24 v62, v62, 6, 8
    v_lshl_or_b32 v{44+i}, v{44+i}, 7, v62
    """)
A(f"""
s_waitcnt lgkmcnt(0)
v_add_u32 v69, v64, v65
v_add_u32 v70, v69, v66
v_add_u32 v72, v70, v67
v_mov_b32 v73, v72
v_lshl_or_b32 v48, v52, 16, v48
v_and_or_b32 v49, v52, s26, v49
""")
dpp_add(73, "row_shr:1")
A("v_lshl_or_b32 v50, v53, 16, v50\nv_and_or_b32 v51, v53, s26, v51")
dpp_add(73, "row_shr:2"); dpp_add(73, "row_shr:4"); dpp_add(73, "row_shr:8")
dpp_add(73, "row_bcast:15", "row_mask:0xa bank_mask:0xf"); dpp_add(73, "row_bcast:31", "row_mask:0xc bank_mask:0xf")
A(f"""
;@spot
v_sub_u32 v76, v73, v72
v_add_u32 v77, v76, v64
v_add_u32 v78, v76, v69
v_add_u32 v79, v76, v70
ds_write_b128 v11, v[76:79] offset:{START-CNT}
s_mov_b64 exec, s[96:97]
""")
for i in range(4): A(f"ds_read_b32 v{54+i}, v{54+i} offset:{START-CNT}")
A(f"s_mov_b32 s57, {STG}")
for i in range(4): A(f"v_lshl_add_u32 v{58+i}, v{58+i}, 3, s57")
for i in range(4):
    A(f"""
    s_waitcnt lgkmcnt(3)
    v_lshl_add_u32 v{54+i}, v{54+i}, 3, v{58+i}
    ds_write2_b32 v{54+i}, v{48+i}, v{44+i} offset0:0 offset1:1
    """)
A(f"""
s_mov_b64 exec, -1
v_lshl_add_u32 v12, v1, 4, s57
v_lshlrev_b32 v13, 4, v1
s_mul_i32 s56, s2, {REC_STRIDE}
s_add_u32 s56, s56, {WS_REC}
{RA(56)}
s_add_u32 s57, s56, 7168
v_cmp_gt_u32 vcc, 334, v1
""")
lsync(C_S3)
ts(3); spot()
A(f"""
ds_read_b128 v[84:87], v12
ds_read_b128 v[88:91], v12 offset:7168
v_lshl_or_b32 v80, v64, 16, v76
v_lshl_or_b32 v81, v65, 16, v77
v_lshl_or_b32 v82, v66, 16, v78
v_lshl_or_b32 v83, v67, 16, v79
s_waitcnt lgkmcnt(1)
buffer_store_dwordx4 v[84:87], v13, s[44:47], s56 offen {SC}
s_cbranch_vccz L_nost2
s_mov_b64 exec, vcc
s_waitcnt lgkmcnt(0)
buffer_store_dwordx4 v[88:91], v13, s[44:47], s57 offen {SC}
s_branch L_st3
L_nost2:
buffer_store_dwordx4 v[80:83], v14, s[44:47], s99 offen {SC}
L_st3:
s_mov_b64 exec, 1
s_waitcnt vmcnt(0) lgkmcnt(0)
ds_add_rtn_u32 v15, v42, v10 offset:{C_REC}
s_mov_b64 exec, -1
s_waitcnt lgkmcnt(0)
v_readfirstlane_b32 s58, v15
s_cmp_lg_u32 s58, 6
s_cbranch_scc1 L_B0
""")
signal(0, 13, 14, 56)
A("s_branch L_B0")
spot(True)
A(f"L_W15cont:\ns_mov_b64 exec, -1\nv_lshlrev_b32 v1, 4, v0\ns_mov_b32 s28, s10\ns_mov_b32 s29, s11\ns_mov_b32 s32, s8\ns_mov_b32 s33, s9")
common()
ts(0)
snap()
A(f"""
{RA(98)}
s_setprio {OPT['LPRIO']}
s_mov_b32 s56, {NLOG2E}
s_mov_b32 s57, {NLOG2E}
s_waitcnt vmcnt(0)
v_add_u32 v53, {33 if OPT.get('FORCE_LATE') else 32}, v53
v_lshlrev_b32 v4, 16, v36
v_and_b32 v5, s26, v36
v_lshlrev_b32 v6, 16, v37
v_and_b32 v7, s26, v37
v_lshlrev_b32 v32, 16, v38
v_and_b32 v33, s26, v38
v_lshlrev_b32 v34, 16, v39
v_and_b32 v35, s26, v39
v_pk_mul_f32 v[4:5], v[4:5], s[56:57]
v_pk_mul_f32 v[6:7], v[6:7], s[56:57]
v_pk_mul_f32 v[32:33], v[32:33], s[56:57]
v_pk_mul_f32 v[34:35], v[34:35], s[56:57]
ds_write_b128 v1, v[4:7] offset:{CW}
ds_write_b128 v1, v[32:35] offset:{CB}
""")
A("L_B0:\ns_mov_b64 exec, -1")
ts(4); spot()
if DG in (1, 2): A("s_branch L_fin")
srd(28, 12, 257*512)
A(f"""
v_lshrrev_b32 v16, 2, v0
v_lshlrev_b32 v16, 9, v16
v_lshrrev_b32 v17, 5, v0
v_lshlrev_b32 v17, 1, v17
v_and_b32 v18, 3, v0
v_xor_b32 v17, v17, v18
v_lshl_add_u32 v16, v17, 4, v16
s_lshl_b32 s56, s62, 6
v_add_u32 v16, s56, v16
s_mul_i32 s59, s62, {QBLK}
s_add_u32 s59, s59, {QB}
""")
if OPT.get('WBX', 8):
    lds_spin(C_X, 57, f"s_cmp_ge_u32 s57, {OPT.get('WBX', 8)}", "L_wb0", slp=2)
else:
    A("s_cmp_lg_u32 s3, 15\ns_cbranch_scc1 L_wb0")
    lds_spin(C_S3, 57, "s_cmp_ge_u32 s57, 7", "L_wb0", slp=2)
A("L_wb0:")
wdma(65536, 6, 8192, 16)
tailb(62, 64)
A(f"""
v_and_b32 v19, 1, v0
v_lshlrev_b32 v19, 1, v19
s_movk_i32 s57, {REC_STRIDE}
v_mul_u32_u24 v10, s57, v27
v_lshl_add_u32 v10, v19, 3, v10
""")
prep()
lds_spin(C_REC, 57, "s_cmp_ge_u32 s57, 7", "L_own", slp=1)
A("L_own:")
wdma(65536+6*8192, 2, 0, 16, 64)
A(f"v_mov_b32 v17, 1\ns_mov_b64 exec, 1\ns_waitcnt vmcnt(0)\nds_add_u32 v42, v17 offset:{C_WB}\ns_mov_b64 exec, -1")
ts(23)
A("s_cmp_eq_u32 s3, 15\ns_cbranch_scc1 L_w15b\n;@hopB\nL_Bback:\ns_mov_b64 exec, -1")
lds_spin(C_GO, 57, "s_cmp_lg_u32 s57, 0", "L_goseen", slp=2)
A(f"""
L_goseen:
s_cmp_eq_u32 s57, 1
s_cbranch_scc1 L_offok
L_B0_to:
s_mov_b64 exec, -1
""")
lds_or(C_ABORT, 2)
A("s_mov_b32 s63, 0\ns_branch L_B1done")
spot(True)
A("L_w15b:")
if OPT['PDELAY']: A(f"s_sleep {OPT['PDELAY']}")
ts(24); spot()
A(f"""
s_mov_b64 exec, 0xff
s_mov_b32 s58, 0
L_offp:
buffer_load_dword v18, v52, s[44:47], s23 offen sc1
s_add_u32 s58, s58, 1
s_waitcnt vmcnt(0)
v_cmp_ne_u32 vcc, v18, v53
""")
if OPT['FORCE_RECOV'] != 4: A("s_cbranch_vccz L_go\ns_mov_b64 exec, vcc")
def dbg(cnt, ty, v, ok):
    l = lab('dk')
    A(f"""
    s_cmp_lt_u32 s{cnt}, {(6, 16)[ty]}
    s_cbranch_scc1 {l}
    global_load_dword v{v}, v42, {DP} sc1
    s_waitcnt vmcnt(0)
    v_readfirstlane_b32 s57, v{v}
    s_cmp_eq_u32 s57, 256
    s_cbranch_scc1 {ok}
    {l}:
    """)
if OPT['FORCE_RECOV'] != 4: dbg(58, 0, 18, "L_go")
A(f"""
s_sleep {SLP}
s_cmp_lt_u32 s58, {2 if OPT['FORCE_RECOV'] == 4 else POLLMAX}
s_cbranch_scc1 L_offp
""")
lds_or(C_GO, 2)
A("s_branch L_B0_to\nL_go:")
lds_or(C_GO, 1)
if TS: A("v_writelane_b32 v41, s58, 40")
A("s_mov_b64 exec, -1")
A("L_offok:\nbuffer_load_dword v18, v25, s[44:47], s98 offen sc1")
ts(5); spot()
A("s_waitcnt vmcnt(0)")
ts(6); spot()
A(f"""
v_and_b32 v16, 0xffff, v18
v_lshrrev_b32 v11, 16, v18
v_lshl_add_u32 v10, v16, 3, v10
v_cmp_lt_u32 vcc, 24, v11
v_sub_u32 v11, v11, v19
{f's_add_u32 s56, s70, {WS_REC}' if ROT else f's_mov_b32 s56, {WS_REC}'}
s_mov_b32 s63, 0
""")
for i in range(6):
    m = 72+4*i
    A(f"""
    v_cmp_lt_i32 s[{m}:{m+1}], {4*i}, v11
    s_cmp_eq_u64 s[{m}:{m+1}], 0
    s_cbranch_scc1 L_ldone
    s_mov_b64 exec, s[{m}:{m+1}]
    buffer_load_dwordx4 v[{Nn(i)}:{Nn(i)+3}], v10, s[44:47], s56 offen offset:{32*i} sc1
    v_cmp_lt_i32 s[{m+2}:{m+3}], {4*i+1}, v11
    s_add_u32 s63, s63, 1
    """)
A(f"""
L_ldone:
s_mov_b64 exec, -1
s_cbranch_vccz L_noovf
""")
lds_or(C_ABORT, 1)
A(f"""
L_noovf:
s_lshl_b32 s57, s51, 7
v_mov_b32 v16, 0x41041
s_waitcnt vmcnt(0)
""")
ts(7)
spot()
for i in range(6):
    A(f"s_cmp_le_u32 s63, {i}\ns_cbranch_scc1 L_B1done")
    for j in range(2):
        d1 = Nn(i)+2*j+1; ad = Dd(i)+2*j; rk = ad+1; u = 20+j; m = 72+4*i+2*j
        A(f"""
        s_mov_b64 exec, s[{m}:{m+1}]
        v_subrev_u32 v{ad}, s57, v{d1}
        v_lshlrev_b32 v{u}, v{d1}, v16
        v_bfe_u32 v{ad}, v{ad}, 5, 9
        ds_add_rtn_u32 v{rk}, v{ad}, v{u} offset:{KEY}
        """)
A("L_B1done:\ns_mov_b64 exec, -1\ns_setprio 0\ns_waitcnt lgkmcnt(0)")
ts(8); spot()
if DG: A("s_branch L_fin")
bar()
ts(9); spot()
A(f"""
s_mov_b32 s57, {NL}
v_mov_b32 v20, 0
s_cmp_lg_u32 s3, 15
s_cbranch_scc1 L_nopre
s_mov_b64 exec, 0xff00
buffer_load_dword v54, v52, s[44:47], s23 offen sc1
L_nopre:
""")
for i in range(6):
    A(f"s_cmp_le_u32 s63, {i}\ns_cbranch_scc1 L_sc2")
    for j in range(2):
        ad = Dd(i)+2*j; rk = ad+1; m = 72+4*i+2*j; F = 4+2*i+j
        A(f"""
        s_mov_b64 exec, s[{m}:{m+1}]
        ds_read_b32 v{F}, v{ad} offset:{KEY}
        v_max_u32 v20, v20, v{rk}
        v_mad_u32_u24 v{ad}, v{ad}, {NCAP}, s57
        """)
A("L_sc2:\ns_mov_b64 exec, -1\n;@spot\ns_waitcnt lgkmcnt(0)")
for i in range(6):
    A(f"s_cmp_le_u32 s63, {i}\ns_cbranch_scc1 L_sc3")
    for j in range(2):
        w0 = Nn(i)+2*j; d1 = w0+1; ad = Dd(i)+2*j; rk = ad+1; m = 72+4*i+2*j; F = 4+2*i+j
        A(f"""
        s_mov_b64 exec, s[{m}:{m+1}]
        v_sub_u32 v{F}, v{F}, v{rk}
        v_lshl_add_u32 v{F}, v{F}, 6, v{rk}
        v_bfe_u32 v{F}, v{F}, v{d1}, 6
        v_lshl_add_u32 v{F}, v{F}, 2, v{ad}
        ds_write_b32 v{F}, v{w0}
        """)
A(f"""
L_sc3:
s_mov_b64 exec, -1
v_cmp_le_u32 vcc, {hex(NCAP << 26)}, v20
s_cbranch_vccz L_C2
""")
lds_or(C_ABORT, 1)
A("s_branch L_C2")
spot(True)

A(f"""
;@g0
L_Gcont:
;@spot
s_mov_b32 s23, 0
{f'ds_read_b32 v24, v42 offset:{C_SLOT}' if ROT else ''}
""")
common()
ts(21)
GSL = f's_waitcnt lgkmcnt(0)\nv_readfirstlane_b32 s70, v24\n{RA(60)}\n{RA(34)}' if ROT else ''
A(f"""
v_lshrrev_b32 v4, 4, v0
v_bfe_u32 v5, v0, 2, 2
v_lshl_add_u32 v5, v4, 3, v5
v_lshlrev_b32 v2, 6, v5
v_lshl_add_u32 v2, v3, 3, v2
v_and_b32 v5, 1, v4
v_lshl_add_u32 v2, v5, 5, v2
v_add_u32 v2, s59, v2
v_xor_b32 v3, 32, v2
v_and_b32 v5, 15, v0
v_xor_b32 v6, v4, v5
v_lshlrev_b32 v6, 4, v6
v_lshl_add_u32 v16, v5, 8, v6
v_add_u32 v16, {XB}, v16
v_xor_b32 v17, 64, v16
v_xor_b32 v18, 0x80, v16
v_xor_b32 v19, 0xc0, v16
;@spot
v_lshlrev_b32 v6, 9, v5
v_lshl_add_u32 v6, v4, 4, v6
s_lshl_b32 s56, s3, 6
v_add_u32 v6, s56, v6
v_mul_u32_u24 v7, {QROW}, v5
v_lshl_add_u32 v7, v4, 5, v7
s_and_b32 s56, s3, 1
s_lshl_b32 s56, s56, 4
s_and_b32 s57, s3, 2
s_lshl_b32 s57, s57, 6
s_add_u32 s56, s56, s57
s_add_u32 s56, s56, s59
v_add_u32 v7, s56, v7
;@spot
s_mov_b32 s32, s24
s_mov_b32 s33, s25
s_lshl_b32 s34, s50, 9
s_add_u32 s34, s34, {PB0}
s_mov_b32 s35, 0x00020000
s_mov_b32 s92, {NLOG2E}
s_lshl_b32 s60, s49, 9
s_add_u32 s60, s60, {PB0}
{GSL}
""")
tailb(3, 64)
A("s_sub_u32 s56, s64, s59\nv_add_u32 v20, s56, v2\nv_add_u32 v21, s56, v3")
ts(22); spot()
AF = 96; BFQ = ((44, 48, 52, 56), (68, 80, 88, 92)); ACC = (8, 24); PK = (32, 36, Nn(0), Dd(0), Nn(1), Dd(1), Nn(2))
def afrags(offs=(0, 2048, 4096, 6144)):
    for s in range(4):
        for a in range(2):
            for hf in range(2):
                r = AF + a*16 + s*4 + hf*2
                A(f"ds_read_b64_tr_b16 v[{r}:{r+1}], v{(2 if offs[s] >= 0 else 20)+a} offset:{max(offs[s], 0)+256*hf}")
def bfrQ(t):
    for s in range(4):
        r = BFQ[t & 1][s]
        A(f"ds_read_b128 v[{r}:{r+3}], v{16+s} offset:{4096*t}")
def grab(f, *a):
    n = len(L); f(*a); r = L[n:]; del L[n:]; return r
GP = OPT.get('GPRIO', '1100')
def gemm(post, nw, tail=None, pr='00'):
    for t in range(7):
        spot()
        if t == 0 or (t == OPT.get('GPT', 4) and pr[0] != pr[1]): A(f"s_setprio {pr[min(t, 1)]}")
        A(f"s_waitcnt lgkmcnt({nw if t > 1 else 0})")
        rd = grab(bfrQ, t+1) if t < 6 else []
        po = grab(post, t-1) if t > 0 else []
        gaps = [rd[0:2], rd[2:4]] + [[] for _ in range(6)]
        g = 2; c = 0
        for x in po:
            gaps[g].append(x)
            if not x.strip().startswith('s_'): c += 1
            if c == FPG and g < 7: g += 1; c = 0
        for s in range(4):
            for a in range(2):
                c = ACC[t & 1] + 4*a; ar = AF + a*16 + s*4; br = BFQ[t & 1][s]
                A(f"v_mfma_f32_16x16x32_bf16 v[{c}:{c+3}], v[{ar}:{ar+3}], v[{br}:{br+3}], " + ("0" if s == 0 else f"v[{c}:{c+3}]"))
                L.extend(gaps[2*s+a])
        if nw and t == OPT['PUBT'] + 1: pubA()
    if tail: tail()
    post(6)
FPG = OPT.get('FPG', 2); SPT = OPT.get('SPT', 2)
def pst(t):
    o = PK[t]
    if not OPT.get('NOST'): A(f"buffer_store_dwordx4 v[{o}:{o+3}], v6, s[32:35], s60 offen {SC}\ns_add_u32 s60, s60, 8192")
def postP(t):
    c = ACC[t & 1]; o = PK[t]
    for i in range(4):
        A(f"v_mul_f32 v{c+2*i}, s92, v{c+2*i}\nv_mul_f32 v{c+2*i+1}, s92, v{c+2*i+1}")
        if i: A(f"v_cvt_pk_bf16_f32 v{o+i-1}, v{c+2*i-2}, v{c+2*i-1}")
    A(f"v_cvt_pk_bf16_f32 v{o+3}, v{c+6}, v{c+7}")
    if t < EP: pst(t)
def postQ(t):
    c = ACC[t & 1]
    if t == 6: A("s_mov_b32 exec_lo, 0x00030003\ns_mov_b32 exec_hi, 0x00030003")
    A(f"ds_write_b128 v7, v[{c}:{c+3}] offset:{2304*t}\nds_write_b128 v7, v[{c+4}:{c+7}] offset:{2304*t+16}")
    if t == 6: A("s_mov_b64 exec, -1")
    for i in range(SPT):
        if EP + SPT*t + i < 7: pst(EP + SPT*t + i)
A(f"""
s_add_u32 s63, s54, 1
s_lshl_b32 s63, s63, 3
v_mov_b32 v4, 1
s_mov_b64 exec, 1
s_waitcnt vmcnt(0)
ds_add_u32 v42, v4 offset:{C_X}
s_mov_b64 exec, -1
""")
ts(2); spot()
lds_spin(C_X, 56, "s_cmp_ge_u32 s56, s63", "L_xok")
A("L_xok:")
ts(3); spot()
if DG: A("s_memtime s[100:101]\ns_waitcnt lgkmcnt(0)\nv_writelane_b32 v41, s100, 46"); ts(14)
afrags()
bfrQ(0)
A("s_cmp_eq_u32 s54, 0\ns_cbranch_scc1 L_nowb")
wdma(65536, 6, 8192)
wdma(65536+6*8192, 2, 0, 1, 64)
A("s_waitcnt vmcnt(0)\nL_nowb:")
def mid():
    lds_spin(C_WB, 56, "s_cmp_ge_u32 s56, 8", "L_wbok")
    A("L_wbok:")
    ts(5)
    afrags((8192, 10240, 12288, -1)); bfrQ(0)
gemm(postP, 0, mid, GP[0:2])
ts(4); spot()
def pubA():
    A(f"""
    s_cmp_lg_u32 s54, 0
    s_cbranch_scc1 L_nopub
    s_mov_b64 exec, 1
    v_mov_b32 v4, 1
    s_waitcnt vmcnt(0)
    ds_add_rtn_u32 v5, v42, v4 offset:{C_PA}
    s_waitcnt lgkmcnt(0)
    v_readfirstlane_b32 s57, v5
    s_cmp_lg_u32 s57, 7
    s_cbranch_scc1 L_nopub
    """)
    signal(1, 5, 4, 56)
    A("L_nopub:\ns_mov_b64 exec, -1")
    ts(25)
gemm(postQ, 2, None, GP[2:4])
A('s_setprio 0')
ts(7)
prep()
if OPT['PUBT'] == 6: pubA()
ts(6); spot()
if DG: A("s_memtime s[100:101]\ns_waitcnt lgkmcnt(0)\nv_writelane_b32 v41, s100, 47"); ts(15)
A(f"""
s_cmp_lg_u32 s54, 0
s_cbranch_scc1 L_recovG
v_and_b32 v9, 3, v0
v_mul_u32_u24 v9, 112, v9
v_mov_b32 v14, 0
v_mov_b32 v15, 0
s_waitcnt lgkmcnt(0)
""")
A(';@g1')
ts(8); spot()
if DG: A("s_branch L_fin")
bar()
ts(9); spot()
A(f"ds_read_b32 v10, v40 offset:{KEY}")
for q in range(7): A(f"ds_read_b128 v[{96+4*q}:{99+4*q}], v9 offset:{KEY+16*q}")
pairs = (96, 98, 56, 60)
for q in range(7):
    spot()
    A(f"s_waitcnt lgkmcnt({6-q})")
    for i in range(4): A(f"v_cmp_gt_u32 s[{pairs[i]}:{pairs[i]+1}], v{96+4*q+i}, v10")
    for i in range(4): A(f"v_addc_co_u32 v{14+(i&1)}, vcc, 0, v{14+(i&1)}, s[{pairs[i]}:{pairs[i]+1}]")
A("v_add_u32 v15, v14, v15")
dpp_add(15, "quad_perm:[1,0,3,2]", "row_mask:0xf bank_mask:0xf")
dpp_add(15, "quad_perm:[2,3,0,1]", "row_mask:0xf bank_mask:0xf")
A(f"""
v_lshlrev_b32 v15, 2, v15
ds_write_b32 v15, v10 offset:{SORT}
L_C2:
s_waitcnt lgkmcnt(0)
""")
ts(10); spot()
bar()
ts(11); spot()
MSK = (1 << 12) | (1 << 13) | (1 << 14) | (1 << 18)
LOV = sum(1 << s for s in range(3, 15)) | (1 << 18)
A(f"""
L_B4:
ds_read_b64 v[4:5], v32 offset:{SORT}
ds_read_b32 v43, v42 offset:{C_ABORT}
ds_read_b32 v36, v36 offset:{SORT}
ds_read_b32 v37, v37 offset:{SORT}
ds_read_b32 v38, v38 offset:{SORT}
s_mul_i32 s59, s3, {LW}
s_add_u32 s59, s59, {WL}
v_lshl_add_u32 v6, v0, 2, s59
v_mov_b32 v8, 0
v_mov_b32 v{VN}, 0
ds_write2st64_b32 v6, v8, v8 offset0:0 offset1:1
;@spot
s_mov_b32 s96, {hex(MSK)}
s_mov_b32 s97, 0
s_cmp_eq_u32 s3, 0
s_movk_i32 s98, 0x7fff
s_cselect_b32 s98, {hex(0x7fff | 1 << 15 | 1 << 18)}, s98
s_mov_b32 s99, 0
s_movk_i32 s60, {-NCAP}
s_movk_i32 s61, 8193
s_waitcnt lgkmcnt(4)
v_cndmask_b32 v7, v5, v4, s[96:97]
v_bfe_u32 v9, v4, v33, 6
v_bfe_u32 v11, v4, v34, 6
v_bfe_u32 v12, v5, v34, 6
v_bfe_u32 v10, v7, v33, 6
s_mov_b64 exec, {hex(LOV)}
v_min_u32 v8, v11, v12
s_mov_b64 exec, s[98:99]
v_min_u32 v9, v9, v10
v_sub_u32 v{VN}, v9, v8
s_mov_b64 exec, -1
v_mov_b32 v10, v{VN}
v_and_b32 v11, 127, v4
v_and_b32 v12, 127, v7
""")
dpp_add(10, "row_shr:1")
A("v_lshl_add_u32 v11, v12, 13, v11\nv_readfirstlane_b32 s55, v43")
dpp_add(10, "row_shr:2")
A(f"v_mad_i32_i24 v11, v11, s60, v35\nv_cmp_lt_u32 vcc, 0, v{VN}")
dpp_add(10, "row_shr:4")
A(f"v_lshl_add_u32 v13, v0, 3, s59\nv_lshrrev_b32 v1, 5, v0")
dpp_add(10, "row_shr:8")
A(f"v_mul_u32_u24 v1, {HL}, v1\nv_add_u32 v1, s59, v1")
dpp_add(10, "row_bcast:15", "row_mask:0xa bank_mask:0xf")
A(f"""
v_sub_u32 v12, v10, v{VN}
v_sub_u32 v9, v9, v10
v_readlane_b32 s58, v10, 20
v_lshl_add_u32 v12, v12, 2, s59
v_mad_i32_i24 v11, v9, s61, v11
s_sub_u32 s56, s58, 1
s_cmp_lt_u32 s56, {HL//8 - R}
s_cbranch_scc1 L_capok
s_or_b32 s55, s55, 4
L_capok:
;@spot
""")
if OPT['FORCE_SAFE']: A("s_or_b32 s55, s55, 1")
A(f"""
s_cmp_lg_u32 s55, 0
s_cbranch_scc1 L_nolist
s_mov_b64 exec, vcc
ds_write_b32 v12, v11
s_mov_b64 exec, -1
ds_read2st64_b32 v[10:11], v6 offset0:0 offset1:1
v_min_u32 v9, s56, v0
s_mov_b32 s57, {NL - 4*BIAS}
v_lshl_add_u32 v9, v9, 2, s57
s_movk_i32 s60, 512
s_waitcnt lgkmcnt(0)
""")
def fill(v, pm, ex=None, off=0):
    for c in ("row_shr:1", "row_shr:2", "row_shr:4", "row_shr:8"): dpp("v_max_u32", v, c)
    dpp("v_max_u32", v, "row_bcast:15", "row_mask:0xa bank_mask:0xf")
    dpp("v_max_u32", v, "row_bcast:31", "row_mask:0xc bank_mask:0xf")
    if ex: A(f"s_mov_b64 exec, {ex}")
    A(f"""
    v_and_b32 v14, 0x1fff, v{v}
    v_bfe_u32 v15, v{v}, 13, 13
    v_lshl_add_u32 v14, v14, 2, v{pm}
    v_lshl_add_u32 v15, v15, 2, v{pm}
    ds_read_b32 v14, v14
    ds_read_b32 v15, v15
    s_waitcnt lgkmcnt(1)
    v_mad_u32_u16 v16, v14, s60, s60
    v_and_b32 v14, s26, v14
    ds_write2_b32 v13, v16, v14 offset0:{off} offset1:{off+2*R+1}
    s_waitcnt lgkmcnt(1)
    v_mad_u32_u16 v17, v15, s60, 0
    v_and_b32 v15, s26, v15
    ds_write2_b32 v13, v17, v15 offset0:{off+HL//4} offset1:{off+HL//4+2*R+1}
    """)
fill(10, 9)
A(f"s_cmp_gt_u32 s58, {64-R}\ns_cbranch_scc1 L_fill2\nL_filled:\nL_nolist:")
A(f"""
ds_read_b128 v[8:11], v1
ds_read_b128 v[12:15], v1 offset:16
ds_read_b128 v[16:19], v1 offset:32
ds_read_b128 v[20:23], v1 offset:48
""")
ts(12); spot()
A(f"""
s_movk_i32 s60, {-QROW}
v_and_b32 v36, 127, v36
v_and_b32 v37, 127, v37
v_and_b32 v38, 127, v38
v_mad_i32_i24 v36, v36, s60, v39
v_mad_i32_i24 v37, v37, s60, v39
v_mad_i32_i24 v38, v38, s60, v39
s_bitcmp1_b32 s55, 1
s_cbranch_scc1 L_recover
s_cmp_lg_u32 s3, 15
s_cbranch_scc1 L_pfdone
s_cmp_lg_u32 s54, 0
s_cbranch_scc1 L_pfdone
s_mov_b32 s56, 0
s_mov_b64 exec, 0xff00
v_mov_b32 v55, 1
L_pfp:
s_waitcnt vmcnt(0)
v_cmp_ne_u32 vcc, v54, v53
""")
if OPT['FORCE_RECOV'] != 1: A("s_cbranch_vccz L_pfok\ns_mov_b64 exec, vcc"); dbg(56, 1, 54, "L_pfok")
A(f"""
buffer_load_dword v54, v52, s[44:47], s23 offen sc1
s_add_u32 s56, s56, 1
s_cmp_lt_u32 s56, {2 if OPT['FORCE_RECOV'] == 1 else POLLMAX}
s_cbranch_scc1 L_pfp
v_mov_b32 v55, 2
L_pfok:
ds_write_b32 v42, v55 offset:{C_PFA}
s_mov_b64 exec, -1
""")
if TS: A("v_writelane_b32 v41, s56, 41")
A(f"L_pfdone:\nds_read_b32 v43, v42 offset:{C_PFA}")
def gather(p, idx):
    A(f"buffer_load_dwordx4 v[{RING[p]}:{RING[p]+3}], v{idx}, s[40:43], {'s70' if ROT else '0'} offen {SC}")
for k in range(NS): A(f"ds_read_b128 v[{Q(k)}:{Q(k)+3}], v{36+(k>>1)} offset:{16*(k&1)}")
A(f"""
v_lshrrev_b32 v32, 26, v4
v_lshrrev_b32 v33, 26, v5
v_and_b32 v4, 127, v4
v_and_b32 v5, 127, v5
v_lshl_or_b32 v32, v32, 8, v4
v_lshl_or_b32 v33, v33, 8, v5
s_mul_i32 s80, s3, 6
s_min_u32 s56, s3, 1
s_lshl1_add_u32 s80, s56, s80
s_lshl_b32 s56, s80, 2
v_min_u32 v34, 3, v0
v_lshl_add_u32 v34, v34, 3, s56
s_and_b32 s98, s98, 0x8007
s_waitcnt lgkmcnt(6)
v_readfirstlane_b32 s82, v43
s_cmp_lg_u32 s55, 0
s_cselect_b32 s82, 0, s82
s_cmp_lg_u32 s82, 1
s_cbranch_scc1 L_noring
""")
for p, idx in enumerate((8, 10, 12, 14)): gather(p, idx)
ts(13)
A(f"""
L_noring:
;@spot
s_mov_b64 exec, s[98:99]
ds_write_b64 v34, v[32:33] offset:{ROWI}
s_mov_b64 exec, -1
v_and_b32 v34, 31, v0
v_lshlrev_b32 v34, 5, v34
s_cmp_lg_u32 s3, 0
s_cbranch_scc1 L_noq3
v_readlane_b32 s56, v4, 15
v_readlane_b32 s57, v5, 15
v_mov_b32 v35, s56
s_mov_b32 exec_lo, 0
v_mov_b32 v35, s57
s_mov_b32 exec_lo, -1
v_mad_i32_i24 v35, v35, s60, v39
ds_read_b128 v[{Nn(4)}:{Nn(4)+3}], v35
ds_read_b128 v[{Dd(4)}:{Dd(4)+3}], v35 offset:16
L_noq3:
;@spot
ds_read_b128 v[{Nn(5)}:{Nn(5)+3}], v34 offset:{CB}
ds_read_b128 v[{Dd(5)}:{Dd(5)+3}], v34 offset:{CB+16}
ds_read_b128 v[{WA}:{WA+3}], v34 offset:{CW}
ds_read_b128 v[{WB}:{WB+3}], v34 offset:{CW+16}
v_and_b32 v35, 3, v0
v_lshlrev_b32 v35, 4, v35
v_mov_b32 v36, 0x3f80
v_mov_b32 v37, 0
v_lshlrev_b64 v[2:3], v35, v[36:37]
v_mov_b32 v43, 1
s_mov_b32 s60, 1.0
s_mov_b32 s61, 1.0
s_mov_b32 s56, {NLOG2E}
s_mov_b32 s57, {NLOG2E}
s_mov_b32 s71, 0
s_mov_b32 s83, 0
""")
srd(28, 16, 65536)
LATE = [Nn(4), Dd(4), Nn(5), Dd(5)]
initnd([r for r in ALLND if r not in LATE])
A(f"s_waitcnt lgkmcnt(2)\ns_mov_b64 exec, 1\nds_add_u32 v42, v43 offset:{C_Q}\ns_mov_b64 exec, -1")
ts(28); spot()
def qscale(r, a):
    b = (Nn(5), Dd(5))[a]
    A(f"v_pk_fma_f32 v[{r}:{r+1}], v[{r}:{r+1}], s[56:57], v[{b}:{b+1}]\nv_pk_fma_f32 v[{r+2}:{r+3}], v[{r+2}:{r+3}], s[56:57], v[{b+2}:{b+3}]")
for k in range(NS): qscale(Q(k), k & 1)
A(f"""
s_cmp_lg_u32 s3, 0
s_cbranch_scc1 L_noq3b
s_mov_b32 s58, {Q3P}
v_lshl_add_u32 v35, v0, 4, s58
""")
qscale(Nn(4), 0); qscale(Dd(4), 1)
A(f"""
ds_write_b128 v35, v[{Nn(4)}:{Nn(4)+3}]
ds_write_b128 v35, v[{Dd(4)}:{Dd(4)+3}] offset:1024
s_waitcnt lgkmcnt(0)
L_noq3b:
;@spot
""")
initnd(LATE)
A("s_cmp_eq_u32 s82, 1\ns_cbranch_scc1 L_ringd")
lds_spin(C_PFA, 57, "s_cmp_lg_u32 s57, 0", "L_pfseen", tmp=56)
A("L_pfseen:\ns_cmp_lg_u32 s57, 1\ns_cbranch_scc1 L_recover\ns_cmp_lg_u32 s55, 0\ns_cbranch_scc1 L_safe0")
for p, idx in enumerate((8, 10, 12, 14)): gather(p, idx)
ts(13)
A(f"""
L_ringd:
s_waitcnt lgkmcnt(0)
s_setprio {OPT['PRIO'][0]}
""")
ts(14); spot()
if TS: A("s_memtime s[100:101]\ns_waitcnt lgkmcnt(0)\nv_writelane_b32 v41, s100, 46")
SEL = "op_sel:[1,0,0] op_sel_hi:[1,1,1]"
TT = (8, 32)
def H1a(k, p):
    q = Q(k); a = k & 1; pr = 16 + 2*p; t = TT[a]; w = (WA, WB)[a]
    if a == 0 and p % 2 == 0: A("s_waitcnt lgkmcnt(1)")
    A(f"""
    v_pk_fma_f32 v[{t}:{t+1}], v[{pr}:{pr+1}], v[{w}:{w+1}], v[{q}:{q+1}] {SEL}
    v_pk_fma_f32 v[{t+2}:{t+3}], v[{pr}:{pr+1}], v[{w+2}:{w+3}], v[{q+2}:{q+3}] {SEL}
    """)
def H1b(k, p):
    a = k & 1; qd = 16 + 4*(p >> 1); pr = 16 + 2*p; rg = RING[p] + 2*a; t = TT[a]
    if a == 0: A(f"s_waitcnt vmcnt({R-1})\ns_sub_u32 s56, s56, 1")
    A(f"v_mfma_f32_4x4x4_16b_bf16 v[{t}:{t+3}], v[2:3], v[{rg}:{rg+1}], v[{t}:{t+3}]")
    if a == 1:
        gather(p, pr)
        if p % 2 == 1: A(f"ds_read_b128 v[{qd}:{qd+3}], v1 offset:{64+16*(p>>1)}")
        if p == 3: A("v_add_u32 v1, 32, v1")
def H2a(k):
    t = TT[k & 1]
    if OPT.get('NOV'): return
    A(f"v_exp_f32 v12, v{t}\nv_exp_f32 v13, v{t+1}")
def H2b(k):
    n, d = Nn(k), Dd(k); t = TT[k & 1]
    if OPT.get('NOV'): return
    A(f"""
    v_exp_f32 v14, v{t+2}
    v_exp_f32 v15, v{t+3}
    v_pk_fma_f32 v[{t}:{t+1}], v[{t}:{t+1}], v[{d}:{d+1}], v[{n}:{n+1}]
    v_pk_fma_f32 v[{t+2}:{t+3}], v[{t+2}:{t+3}], v[{d+2}:{d+3}], v[{n+2}:{n+3}]
    v_pk_fma_f32 v[{d}:{d+1}], v[{d}:{d+1}], v[12:13], v[{d}:{d+1}]
    v_pk_fma_f32 v[{n}:{n+1}], v[{n}:{n+1}], v[12:13], v[{t}:{t+1}]
    v_pk_fma_f32 v[{d+2}:{d+3}], v[{d+2}:{d+3}], v[14:15], v[{d+2}:{d+3}]
    v_pk_fma_f32 v[{n+2}:{n+3}], v[{n+2}:{n+3}], v[14:15], v[{t+2}:{t+3}]
    """)
def H2(k): H2a(k); H2b(k)
HK = OPT['HOOK']; PR = OPT['PRIO']
def wrap(p):
    A(f"""
    L_E3_{p}:
    s_mov_b32 s57, {p}
    """)
    if TS: A("s_memrealtime s[100:101]\ns_add_u32 s58, s71, 45\ns_min_u32 s58, s58, 63\ns_mov_b32 m0, s58\ns_waitcnt lgkmcnt(0)\nv_writelane_b32 v41, s100, m0")
    A(f"""
    s_cmp_eq_u32 s71, 3
    s_cbranch_scc1 L_wrap1
    s_setprio {PR[2]}
    s_cmp_eq_u32 s71, 6
    s_cbranch_scc1 L_E0_{p}
    s_setprio {PR[3]}
    s_cmp_eq_u32 s71, 9
    s_cbranch_scc1 L_E0_{p}
    s_mov_b32 exec_hi, 0
    s_cmp_eq_u32 s71, 12
    s_cbranch_scc1 L_E0_{p}
    s_cmp_eq_u32 s71, 18
    s_cbranch_scc1 L_E0_{p}
    s_mov_b32 exec_hi, -1
    s_cmp_lg_u32 s3, s83
    s_cbranch_scc1 L_flush
    s_branch L_rs{p}
    """)
    spot(True)
for p in range(4):
    for q in range(3):
        if q > 0:
            A(f"L_T{q-1}_{p}:"); H2(2*q-1)
        A(f"L_E{q}_{p}:")
        if q == HK: A(f"s_mov_b32 s57, {p}\ns_cmp_eq_u32 s71, {3+HK}\ns_cbranch_scc1 L_hk1\nL_H_{p}:")
        if len(PR) > 4 and q == OPT.get('LQ', 2): A(f"s_cmp_lt_u32 s71, 9\ns_cbranch_scc1 L_np{p}\ns_setprio {PR[4]}\nL_np{p}:")
        A(f"v_readlane_b32 s56, v{VN}, s71\ns_add_u32 s71, s71, 1\ns_sub_u32 s56, s56, 1\ns_cbranch_scc1 L_E{q+1}_{p}")
        H1a(2*q, p); H1a(2*q+1, p); H1b(2*q, p); H1b(2*q+1, p); H2(2*q)
        A(f"s_cbranch_scc0 L_B{q}_{(p+1)&3}\ns_branch L_T{q}_{(p+1)&3}")
        spot(True)
    A(f"L_T2_{p}:"); H2(5)
    wrap(p)
for q in range(3):
    for p in range(4):
        A(f"L_B{q}_{p}:")
        H1a(2*q, p); H1b(2*q, p); H2(2*q+1); H1a(2*q+1, p); H2a(2*q); H1b(2*q+1, p); H2b(2*q)
        A(f"s_cbranch_scc1 L_T{q}_{(p+1)&3}")
    A(f"s_branch L_B{q}_0")
    spot(True)
A(f"""
L_hk1:
s_mov_b64 exec, 1
v_mov_b32 v43, 1
s_waitcnt vmcnt(0)
ds_add_u32 v42, v43 offset:{C_W2}
s_mov_b64 exec, -1
""")
ts(27)
for p in range(4): A(f"s_cmp_eq_u32 s57, {p}\ns_cbranch_scc1 L_H_{p}")
A(f"""
s_branch L_safe
L_wrap1:
s_setprio {PR[1]}
L_wrap1b:
""")
ts(26); spot()
A(f"""
v_lshrrev_b32 v37, 4, v0
v_lshlrev_b32 v38, 2, v37
v_and_b32 v39, 15, v0
v_xor_b32 v38, v38, v39
v_lshlrev_b32 v38, 4, v38
v_lshl_add_u32 v38, v37, 8, v38
""")
lds_spin(C_Q, 60, "s_cmp_ge_u32 s60, 16", "L_qrd")
A(f"L_qrd:\ns_lshl_b32 s58, s3, 12\ns_add_u32 m0, s58, {QB}")
for i in range(4): A(f"buffer_load_dwordx4 v38, s[28:31], s58 offen offset:{1024*i} lds")
for p in range(4): A(f"s_cmp_eq_u32 s57, {p}\ns_cbranch_scc1 L_E0_{p}")
A("s_branch L_hk1")
spot(True)
for p in range(4):
    A(f"""
    L_rs{p}:
    v_readfirstlane_b32 s58, v1
    s_add_u32 s58, s58, {HL}
    s_mov_b32 exec_lo, 0
    v_mov_b32 v1, s58
    s_mov_b32 exec_lo, -1
    ds_read_b128 v[16:19], v1 offset:{32 if p < 2 else 64}
    ds_read_b128 v[20:23], v1 offset:48
    s_mov_b32 s81, {p}
    ds_read2_b32 v[36:37], v1 offset0:{2*p} offset1:{2*p+2}
    ds_read2_b32 v[38:39], v1 offset0:{2*p+4} offset1:{2*p+6}
    s_waitcnt lgkmcnt(0)
    """)
    for i in range(4): gather((p+i) & 3, 36+i)
    if p < 3: A("s_branch L_flush")
A("L_flush:\ns_waitcnt lgkmcnt(0)")
ts(15); spot()
if TS: A("s_memtime s[100:101]\ns_waitcnt lgkmcnt(0)\nv_writelane_b32 v41, s100, 47")
A(f"""
v_lshrrev_b32 v36, 5, v0
v_add_u32 v36, s80, v36
v_mul_u32_u24 v36, {HROW}, v36
v_bfe_u32 v37, v0, 2, 3
v_lshl_add_u32 v36, v37, 6, v36
v_and_b32 v37, 3, v0
v_lshl_add_u32 v36, v37, 3, v36
v_add_u32 v36, {HSB}, v36
s_cmp_lg_u32 s83, 0
s_cbranch_scc1 L_flush2
""")
def guard(ks, ok):
    for k in ks:
        if k == ks[0]: A(f"v_pk_mul_f32 v[32:33], v[{Nn(k)}:{Nn(k)+1}], v[{Dd(k)}:{Dd(k)+1}]\nv_pk_mul_f32 v[34:35], v[{Nn(k)+2}:{Nn(k)+3}], v[{Dd(k)+2}:{Dd(k)+3}]")
        else: A(f"v_pk_fma_f32 v[32:33], v[{Nn(k)}:{Nn(k)+1}], v[{Dd(k)}:{Dd(k)+1}], v[32:33]\nv_pk_fma_f32 v[34:35], v[{Nn(k)+2}:{Nn(k)+3}], v[{Dd(k)+2}:{Dd(k)+3}], v[34:35]")
    A(f"""
    v_pk_add_f32 v[32:33], v[32:33], v[34:35]
    v_add_f32 v32, v32, v33
    v_mov_b32 v33, 0x207
    v_cmp_class_f32 vcc, v32, v33
    s_cmp_lg_u32 s55, 0
    s_cbranch_scc1 {ok}
    """)
    if OPT['FORCE_GUARD'] == 1 and len(ks) > 2: A("s_bitcmp0_b32 s3, 0\ns_cbranch_scc1 L_safe")
    if OPT['FORCE_GUARD'] == 2 and len(ks) == 2: A("s_branch L_safe")
    A(f"s_cbranch_vccnz L_safe\n{ok}:")
def hout(k, off):
    spot()
    n, d = Nn(k), Dd(k); o = 8 + 2*(k & 1)
    for i in range(4): A(f"v_rcp_f32 v{d+i}, v{d+i}")
    A(f"""
    v_pk_mul_f32 v[{n}:{n+1}], v[{n}:{n+1}], v[{d}:{d+1}]
    v_pk_mul_f32 v[{n+2}:{n+3}], v[{n+2}:{n+3}], v[{d+2}:{d+3}]
    v_cvt_pk_bf16_f32 v{o}, v{n}, v{n+1}
    v_cvt_pk_bf16_f32 v{o+1}, v{n+2}, v{n+3}
    ds_write_b64 v36, v[{o}:{o+1}] offset:{off}
    """)
guard(list(range(NS)), "L_fl2")
spot()
for k in range(NS): hout(k, 2*HROW*(k >> 1) + 32*(k & 1))
A(f"""
s_cmp_lg_u32 s3, 0
s_cbranch_scc1 L_fl3
s_mov_b32 s58, {Q3P}
v_lshl_add_u32 v37, v0, 4, s58
ds_read_b128 v[{Q(0)}:{Q(0)+3}], v37
ds_read_b128 v[{Q(1)}:{Q(1)+3}], v37 offset:1024
s_mov_b32 s60, 1.0
s_mov_b32 s61, 1.0
s_mov_b32 s83, 1
""")
initnd([Nn(0), Dd(0), Nn(1), Dd(1)])
A("s_waitcnt lgkmcnt(0)\ns_cmp_lg_u32 s55, 0\ns_cbranch_scc1 L_safe")
for p in range(3): A(f"s_cmp_eq_u32 s81, {p}\ns_cbranch_scc1 L_E0_{p}")
A("s_branch L_E0_3")
spot(True)
A("L_flush2:")
guard([0, 1], "L_fl2b")
for k in range(2): hout(k, 2*HROW*3 + 32*k)
A("L_fl3:")
ts(16); spot()
A(f"""
s_and_b32 s60, s3, 3
s_lshr_b32 s61, s3, 2
s_lshl_b32 s59, s61, 2
v_mov_b32 v2, s59
v_mov_b32 v3, 1
s_waitcnt lgkmcnt(0)
s_mov_b64 exec, 1
ds_add_u32 v2, v3 offset:{C_G}
s_mov_b64 exec, -1
v_lshrrev_b32 v4, 4, v0
v_and_b32 v5, 15, v0
s_lshl_b32 s56, s60, 6
v_lshl_add_u32 v6, v4, 4, s56
global_load_dwordx4 v[124:127], v6, s[18:19]
v_bfe_u32 v7, v0, 2, 2
v_lshl_add_u32 v1, v4, 3, v7
v_lshlrev_b32 v1, 8, v1
v_xor_b32 v7, s60, v7
v_lshl_add_u32 v1, v7, 6, v1
v_and_b32 v7, 3, v0
v_lshl_add_u32 v1, v7, 4, v1
""")
lds_spin(C_W2, 57, "s_cmp_ge_u32 s57, 16", "L_w2ok")
A("L_w2ok:\ns_waitcnt vmcnt(1)")
spot()
for s in range(8):
    for a in range(2):
        for hf in range(2):
            r = 44 + a*32 + s*4 + hf*2
            A(f"ds_read_b64_tr_b16 v[{r}:{r+1}], v1 offset:{QB+8192*s+1024*hf+8*a}")
A(f"""
s_mul_i32 s56, s61, 24
s_min_u32 s57, s61, 1
s_lshl1_add_u32 s56, s57, s56
v_add_u32 v5, s56, v5
v_lshlrev_b32 v3, 2, v5
v_mul_u32_u24 v1, {HROW}, v5
v_lshl_add_u32 v1, v4, 4, v1
v_add_u32 v1, {HSB}, v1
s_mov_b32 s32, s20
s_mov_b32 s33, s21
s_add_u32 s34, s51, s52
s_lshl_b32 s34, s34, 8
s_mov_b32 s35, 0x00020000
s_add_u32 s59, s51, 127
s_lshl_b32 s59, s59, 8
v_add_u32 v6, s59, v6
s_cmp_eq_u32 s61, 0
s_mov_b32 s96, 0x00ff00ff
s_cselect_b32 s96, 0x03ff03ff, s96
s_mov_b32 s97, s96
s_movk_i32 s59, -256
s_mov_b32 s56, {NLN2}
""")
ts(17); spot()
lds_spin(C_G, 57, "s_cmp_ge_u32 s57, 4", "L_gok", av=2)
A("L_gok:")
ts(18)
spot()
A(f"ds_read_b32 v42, v3 offset:{ROWI}\nds_read_b32 v43, v3 offset:{ROWI+64}")
BB = (108, 8)
def rd(qg):
    for t in range(2):
        for h in range(2):
            r = BB[qg & 1] + 8*t + 4*h
            A(f"ds_read_b128 v[{r}:{r+3}], v1 offset:{16*HROW*t + 64*(2*qg+h)}")
rd(0)
for qg in range(4):
    spot()
    if qg < 3: rd(qg+1); A(f"s_waitcnt lgkmcnt(4)")
    else: A("s_waitcnt lgkmcnt(0)")
    for h in range(2):
        s = 2*qg + h
        for t in range(2):
            for a in range(2):
                c = 24 + 8*t + 4*a; ar = 44 + a*32 + s*4; br = BB[qg & 1] + 8*t + 4*h
                A(f"v_mfma_f32_16x16x32_bf16 v[{c}:{c+3}], v[{ar}:{ar+3}], v[{br}:{br+3}], " + ("0" if s == 0 else f"v[{c}:{c+3}]"))
    if qg == 0:
        for t in range(2):
            A(f"v_and_b32 v{4+t}, 127, v{42+t}\nv_lshrrev_b32 v{42+t}, 8, v{42+t}\nv_mad_i32_i24 v{4+t}, v{4+t}, s59, v6\nv_cvt_f32_u32 v{42+t}, v{42+t}")
spot()
A("s_waitcnt vmcnt(0)")
for i in range(4):
    A(f"v_lshlrev_b32 v{44+2*i}, 16, v{124+i}\nv_and_b32 v{45+2*i}, s26, v{124+i}")
for t in range(2):
    for i in range(8): A(f"v_mul_f32 v{52+8*t+i}, v{42+t}, v{44+i}")
for t in range(2):
    c = 24 + 8*t
    for i in range(8): A(f"v_fma_f32 v{c+i}, v{c+i}, s56, v{52+8*t+i}")
    for i in range(4): A(f"v_cvt_pk_bf16_f32 v{68+4*t+i}, v{c+2*i}, v{c+2*i+1}")
    if t == 1: A("s_mov_b64 exec, s[96:97]")
    A(f"buffer_store_dwordx4 v[{68+4*t}:{71+4*t}], v{4+t}, s[32:35], 0 offen {OPT.get('OSC', '').replace('+', ' ')}")
A("L_fin:")
if TS:
    A("s_mov_b64 exec, -1\ns_waitcnt vmcnt(0)")
    ts(19)
    A(f"""
    s_lshl_b32 s56, s2, 4
    s_add_u32 s56, s56, s3
    s_lshl_b32 s56, s56, 8
    s_add_u32 s56, s56, {WS_TS}
    v_lshlrev_b32 v1, 2, v0
    buffer_store_dword v41, v1, s[44:47], s56 offen
    """)
    if 'DIAG' in OPT:
        A(f"s_cmp_lg_u32 s3, {OPT.get('DW', 0)}\ns_cbranch_scc1 L_end\nv_readlane_b32 s56, v41, 0")
        if OPT['DIAG'] >= 100: A(f"s_mov_b32 s57, {OPT['DIAG']*100}")
        else: A(f"v_readlane_b32 s57, v41, {OPT['DIAG']}\ns_sub_u32 s57, s57, s56\ns_mul_i32 s57, s57, {OPT.get('DMUL', 10)}\ns_min_u32 s57, s57, 200000")
        A("""
        L_diag:
        s_sleep 4
        s_memrealtime s[100:101]
        s_waitcnt lgkmcnt(0)
        s_sub_u32 s58, s100, s56
        s_cmp_lt_u32 s58, s57
        s_cbranch_scc1 L_diag
        """)
A("L_end:\ns_endpgm")
A(";@cold")
A(f"""
L_fill2:
v_readlane_b32 s61, v10, 63
v_add_u32 v9, 64, v0
v_min_u32 v9, s56, v9
v_lshl_add_u32 v9, v9, 2, s57
v_add_u32 v13, 512, v13
v_max_u32 v11, s61, v11
""")
fill(11, 9, "0xffffffff")
A(f"""
s_mov_b64 exec, -1
s_branch L_filled
L_recover:
s_setprio 0
s_waitcnt vmcnt(0) lgkmcnt(0)
s_barrier
s_mov_b32 s54, 0
L_recov_step:
s_add_u32 s54, s54, 1
s_add_u32 s48, s2, s54
s_and_b32 s48, s48, 255
""")
bucket_range(48, 56, 49, 50)
A(f"""
s_cmp_lt_u32 s3, 8
s_cbranch_scc1 L_Gfirst
L_recovL:
s_barrier
L_recovG:
s_waitcnt vmcnt(0) lgkmcnt(0)
s_barrier
s_cmp_lt_u32 s54, 256
s_cbranch_scc1 L_recov_step
v_mov_b32 v43, 1
ds_write_b32 v42, v43 offset:{C_ABORT}
ds_write_b32 v42, v43 offset:{C_PFA}
v_mov_b32 v43, 0
ds_write_b32 v42, v43 offset:{C_W2}
ds_write_b32 v42, v43 offset:{C_Q}
""")
prep()
A(f"""
s_waitcnt lgkmcnt(0)
s_barrier
s_branch L_B4
L_safe0:
s_mov_b32 s57, 4
s_branch L_wrap1b
L_safe:
s_mov_b32 s55, 1
s_setprio 0
s_mov_b32 s60, 1.0
s_mov_b32 s61, 1.0
s_mul_i32 s73, s83, 6
s_add_u32 s73, s73, s80
s_lshl_b32 s73, s73, 2
v_lshl_add_u32 v23, v0, 2, s73
s_waitcnt vmcnt(0) lgkmcnt(0)
ds_read_b32 v22, v23 offset:{ROWI}
""")
initnd(ALLND)
srd(28, 10, E*4); srd(32, 8, E*4); srd(36, 6, E*2)
A(f"""
v_lshlrev_b32 v16, 2, v0
v_lshlrev_b32 v17, 1, v0
v_and_b32 v24, 31, v0
v_lshlrev_b32 v24, 4, v24
s_mov_b32 s72, 0
s_movk_i32 s74, {N-1}
s_waitcnt lgkmcnt(0)
v_and_b32 v22, 127, v22
v_sub_u32 v25, 127, v22
""")
for i in range(6): A(f"v_readlane_b32 s{64+i}, v25, {i}")
A("s_cmp_eq_u32 s83, 0\ns_cbranch_scc1 L_sloop")
for i in range(2, 6): A(f"s_mov_b32 s{64+i}, -1")
A(f"""
L_sloop:
s_lshl_b32 s56, s72, 1
buffer_load_dword v18, v16, s[28:31], s56 offen
buffer_load_dword v19, v16, s[32:35], s56 offen
buffer_load_ushort v20, v17, s[36:39], s72 offen
s_waitcnt vmcnt(0)
v_min_u32 v18, s74, v18
v_subrev_u32 v21, s51, v18
v_cmp_gt_u32 s[96:97], s52, v21
s_cmp_eq_u64 s[96:97], 0
s_cbranch_scc1 L_snext
v_mov_b32 v25, 6
""")
for i in range(6): A(f"v_cmp_eq_u32 vcc, s{64+i}, v21\nv_cndmask_b32 v25, v25, {i}, vcc")
A(f"""
v_cmp_gt_u32 vcc, 6, v25
s_and_b64 s[96:97], s[96:97], vcc
L_sbit:
s_mov_b64 exec, -1
s_cmp_eq_u64 s[96:97], 0
s_cbranch_scc1 L_snext
s_ff1_i32_b64 s56, s[96:97]
s_bitset0_b64 s[96:97], s56
v_readlane_b32 s57, v19, s56
v_readlane_b32 s58, v20, s56
v_readlane_b32 s60, v25, s56
s_min_u32 s57, s57, s74
s_lshl_b32 s57, s57, 9
{RA(57)}
s_lshl_b32 s58, s58, 16
s_mov_b32 s59, s58
buffer_load_dwordx4 v[28:31], v24, s[44:47], s57 offen offset:{PB0} sc1
s_lshl_b64 exec, 1, s60
v_add_u32 v22, 0x100, v22
s_bitcmp1_b32 s60, 0
s_cselect_b32 exec_lo, 0, -1
s_cselect_b32 exec_hi, -1, 0
s_lshr_b32 s60, s60, 1
s_waitcnt vmcnt(0)
""")
for qq in range(3):
    if qq < 2: A(f"s_cmp_lg_u32 s60, {qq}\ns_cbranch_scc1 L_sk{qq+1}")
    for a in range(2):
        k = 2*qq + a; q, n = Q(k), Nn(k); w = (WA, WB)[a]
        A(f"""
        v_pk_fma_f32 v[8:9], s[58:59], v[{w}:{w+1}], v[{q}:{q+1}]
        v_pk_fma_f32 v[10:11], s[58:59], v[{w+2}:{w+3}], v[{q+2}:{q+3}]
        v_mfma_f32_4x4x4_16b_bf16 v[8:11], v[2:3], v[{28+2*a}:{29+2*a}], v[8:11]
        v_exp_f32 v12, v8
        v_exp_f32 v13, v9
        v_exp_f32 v14, v10
        v_exp_f32 v15, v11
        v_pk_add_f32 v[12:13], v[12:13], 1.0 op_sel_hi:[1,0]
        v_pk_add_f32 v[14:15], v[14:15], 1.0 op_sel_hi:[1,0]
        v_rcp_f32 v12, v12
        v_rcp_f32 v13, v13
        v_rcp_f32 v14, v14
        v_rcp_f32 v15, v15
        v_pk_fma_f32 v[{n}:{n+1}], v[8:9], v[12:13], v[{n}:{n+1}]
        v_pk_fma_f32 v[{n+2}:{n+3}], v[10:11], v[14:15], v[{n+2}:{n+3}]
        """)
    A("s_branch L_sbit")
    if qq < 2: A(f"L_sk{qq+1}:")
A(f"""
L_snext:
s_add_u32 s72, s72, 128
s_cmp_lt_u32 s72, {2*E}
s_cbranch_scc1 L_sloop
s_cmp_eq_u32 s83, 0
s_cselect_b32 exec_lo, 63, 3
s_mov_b32 exec_hi, 0
ds_write_b32 v23, v22 offset:{ROWI}
s_mov_b64 exec, -1
L_last:
s_branch L_flush
""")

KAL = OPT.get('KAL', 12)
body, npad = pad(L, verbose=bool(OPT.get('V')))
hdr = open('standalone__edge_featured_mpnn_mpnn__graph.s.ref').read().split('; Override')[0]
def emit(body):
    out = hdr + f"; @launch grid=(256,1,1) block=(1024,1,1) lds={LDS}\n"
    out += f'.amdgcn_target "amdgcn-amd-amdhsa--gfx950"\n.text\n.globl {KN}\n.p2align {KAL}\n.type {KN},@function\n'
    out += "\n".join(body) + "\n"
    out += f""".section .rodata,"a"
.p2align 6
.amdhsa_kernel {KN}
  .amdhsa_next_free_vgpr 128
  .amdhsa_next_free_sgpr 102
  .amdhsa_accum_offset 128
  .amdhsa_group_segment_fixed_size 0
  .amdhsa_kernarg_size 88
  .amdhsa_user_sgpr_count 2
  .amdhsa_user_sgpr_kernarg_segment_ptr 1
  .amdhsa_system_sgpr_workgroup_id_x 1
.end_amdhsa_kernel
"""
    return out
import subprocess, re
def offsets(body):
    t = []; k = 0
    for b in body:
        if b.startswith(';@'): t.append(f"M_{k}:"); k += 1
        else: t.append(b)
    open('_m.s', 'w').write(emit(t))
    subprocess.run(["clang", "-x", "assembler", "-target", "amdgcn-amd-amdhsa", "-mcpu=gfx950", "-c", "_m.s", "-o", "_m.o"], check=True)
    o = subprocess.run(["llvm-objdump", "-t", "_m.o"], capture_output=True, text=True).stdout
    d = {int(m.group(2)): int(m.group(1), 16) for m in re.finditer(r"^([0-9a-f]+) .* M_(\d+)$", o, re.M)}
    return [d[i] for i in range(k)]
nb = []
for i, b in enumerate(body):
    nb.append(b)
    if b.strip().startswith('s_branch') and i+1 < len(body) and body[i+1].endswith(':'): nb.append(';@dead')
body = nb
def place(body, chosen, chains):
    out = []; k = 0
    for b in body:
        if not b.startswith(';@'): out.append(b); continue
        out.append(b)
        if k in chosen:
            n = chosen[k]
            out.append(f"L_stub{n}:"); out.append(f"    {'s_branch' if b == ';@dead' else 's_cbranch_execz'} {chains[n]}")
        if b in (';@hopB', ';@hopW') and chosen:
            ws = {';@hopB': range(8, 15), ';@hopW': (15,)}[b]
            if any(w in first for w in ws): out.append("    s_mov_b64 exec, 0")
            for w in ws:
                if w in first:
                    if b == ';@hopW': out.append(f"    s_branch L_stub{first[w]}")
                    else: out.append(f"    s_cmp_eq_u32 s3, {w}"); out.append(f"    s_cbranch_scc1 L_stub{first[w]}")
        k += 1
    return out
if OPT.get('WARM', 1):
    marks = [b for b in body if b.startswith(';@')]
    chosen = {}; chains = {}; first = {}
    COV = OPT.get('COV', 1024)
    for it in range(6):
        off = offsets(place(body, chosen, chains))
        g0 = off[marks.index(';@g0')]; g1 = off[marks.index(';@g1')]; b0 = off[marks.index(';@hopB')]
        sel = []; gap = 0
        for lo, hi, forced in ((b0, g0 - 64, 0), (g0 - 64, off[marks.index(';@cold')], 1)):
            cand = [k for k, m in enumerate(marks) if m in (';@spot', ';@dead') and lo <= off[k] < hi and m != ';@hopB']
            end = min((lo & ~127) + COV, (lo | 4095) + 1)
            if forced: sel.append(cand[0]); end = min((off[cand[0]] & ~127) + COV + 128, (off[cand[0]] | 4095) + 1)
            while end < hi:
                c = [k for k in cand if (off[k] & ~127) <= end and (not sel or off[k] > off[sel[-1]]) and (off[k] >> 12) == (end >> 12) and off[k] > end - 640]
                d = [k for k in c if marks[k] == ';@dead' and off[k] > end - 256]
                if d: k = d[-1]
                elif c: k = c[-1]
                else:
                    c = [k for k in cand if off[k] > end]
                    if not c: break
                    k = c[0]; gap += (off[k] & ~127) - end
                sel.append(k)
                end = min((off[k] & ~127) + COV + 128, (off[k] | 4095) + 1)
        new = {k: n for n, k in enumerate(sel)}
        per = {w: [] for w in range(8, 16)}; j = 0
        for n, k in enumerate(sel):
            if g0 - 64 <= off[k] < g1: per[15].append(n)
            else: per[8 + j % 7].append(n); j += 1
        first = {w: v[0] for w, v in per.items() if v}
        chains = {}
        for w, v in per.items():
            back = 'L_W15cont' if w == 15 else 'L_Bback'
            for i, n in enumerate(v): chains[n] = f"L_stub{v[i+1]}" if i+1 < len(v) else back
        if new == chosen: break
        chosen = new
    print("stubs", len(sel), "gap", gap, [hex(off[k]) + marks[k][2] for k in sel], hex(b0), hex(g0), hex(g1), hex(hi), file=sys.stderr)
    body = place(body, chosen, chains)
body = [b for b in body if not b.startswith(';@')]
open(OPT.get('OUT', 'k.s'), 'w').write(emit(body))
print("pads", npad, "lines", len(body), file=sys.stderr)
```

```python
import sys, os, struct
sys.path.insert(0, os.path.dirname(os.path.abspath(__file__)))
from asmlib import *

OPT = dict(TS=0, FORCE_SAFE=0, FORCE_RECOV=0, FORCE_GUARD=0, POLLMAX=6000, SLP=8, NT=1, PDELAY=8, LPRIO=2, PUBT=3, HOOK=1, EP=7, WBM=6,
           PRIO='3210')
for a in sys.argv[1:]:
    k, v = a.split('=')
    OPT[k] = int(v) if v.lstrip('-').isdigit() and k not in ('PRIO', 'GPRIO') else v
TS = OPT['TS']; POLLMAX = OPT['POLLMAX']; SLP = OPT['SLP']
SC = 'sc1'
KN = "standalone__edge_featured_mpnn_mpnn__graph_kernel"

def f32(x): return "0x%08x" % struct.unpack('<I', struct.pack('<f', x))[0]
NLOG2E = f32(-1.4426950408889634); NLN2 = f32(-0.6931471805599453)

N = 25000; E = 400000; CH = 1564
PB0 = 512
WS_REC = 0xD00000; REC_STRIDE = 12544; WS_OFF = 0x1040000; WS_PF = 0x1080000; WS_TS = 0x1500000; WS_SIZE = 0x2000000
QBLK = 14336; QROW = 144
CTR = 0; KEY = 256; SORT = 768; ROWI = 1280; CW = 2048; CB = 3072; QB = 4096
STG = QB + 8*QBLK; CNT = STG + 12544; START = CNT + 1024; XB = START + 1024; LDS = 163840
NL = STG; NCAP = 46; WL = NL + 98*NCAP*4; HL = 768; LW = 2*HL; Q3P = LDS - 2048
assert XB % 256 == 0 and XB + 28672 <= LDS and WL + 16*LW + 64 <= Q3P and WL % 16 == 0
C_REC, C_PA, C_GO, C_ABORT, C_W2, C_Q, C_PFA, C_X, C_S2, C_S3, C_WB = 0, 4, 8, 12, 16, 20, 28, 32, 40, 44, 48
TAIL7 = XB + 25600
TGT = 64
C_G = 192
C_SLOT = 60
ROT = 0; WB0 = OPT.get('BASE', 238) << 20; PB0 += WB0; WS_REC += WB0; WS_OFF += WB0; WS_PF += WB0; assert WS_PF + 16384 <= 1 << 28 and WB0 + 32768*512 + 2048 <= 1 << 28; DBK = OPT.get('DBK', 4); DP = 's[0:1]'
EP = OPT['EP']; WBM = OPT['WBM']; assert OPT['PUBT'] >= 6 - EP and STG + 7*2048 <= XB
RA = lambda r: f's_add_u32 s{r}, s{r}, s70' if ROT else ''
HSB = QB + 65536; HROW = 528
assert HSB + 106*HROW <= WL
R = 4; NS = 6
SB0 = 56
def Q(k): return SB0 + 12*k
def Nn(k): return SB0 + 12*k + 4
def Dd(k): return SB0 + 12*k + 8
RING = (24, 28, 44, 48); WA = 4; WB = 52; VN = 40
SPIN = 0x100000
BIAS = 128
ASG = [[28, 34, 46, 48], [1, 29, 45], [10, 19, 37], [3, 24, 42], [0, 39, 47], [9, 25, 32], [2, 23, 44], [4, 20, 43], [8, 26, 30], [6, 21, 40], [5, 31, 33], [11, 18, 38], [12, 15, 36], [7, 16, 41], [13, 17, 35], [14, 22, 27]]
assert sorted(sum(ASG, [])) == list(range(49))

L = []
def A(s):
    for line in s.strip('\n').split('\n'):
        line = line.strip()
        if not line: continue
        L.append(line if line.endswith(':') or line.startswith(('.', ';')) else "    " + line)
def srd(r, lo, size, w3="0x00020000"):
    A(f"s_mov_b32 s{r}, s{lo}\ns_mov_b32 s{r+1}, s{lo+1}\ns_mov_b32 s{r+2}, {size}\ns_mov_b32 s{r+3}, {w3}")
def ts(i):
    if TS: A(f"s_memrealtime s[100:101]\ns_waitcnt lgkmcnt(0)\nv_writelane_b32 v41, s100, {i}")
def bar(): A("s_barrier")
def spot(dead=False): A(";@dead" if dead else ";@spot")
uid = [0]
def lab(p):
    uid[0] += 1; return f"L_{p}_{uid[0]}"
def dpp(op, v, ctl, m="row_mask:0xf bank_mask:0xf bound_ctrl:0"):
    A(f"{op}_dpp v{v}, v{v}, v{v} {ctl} {m}")
def dpp_add(v, ctl, m="row_mask:0xf bank_mask:0xf bound_ctrl:0"): dpp("v_add_u32", v, ctl, m)
def bucket_range(cur, b, n0, n1):
    A(f"""
    s_and_b32 s{b}, s{cur}, 7
    s_lshl_b32 s{b}, s{b}, 5
    s_lshr_b32 s27, s{cur}, 3
    s_or_b32 s{b}, s{b}, s27
    s_mul_i32 s{n0}, s{b}, 6400845
    s_add_u32 s{n0}, s{n0}, 65535
    s_add_u32 s{n1}, s{n0}, 6400845
    s_lshr_b32 s{n0}, s{n0}, 16
    s_lshr_b32 s{n1}, s{n1}, 16
    s_min_u32 s{n1}, s{n1}, {N}
    """)
def lds_or(off, val):
    A(f"v_mov_b32 v43, {val}\nds_or_b32 v42, v43 offset:{off}")
def lds_spin(off, dst, cmp_ok, ok, tmp=58, slp=1, av=42):
    l = lab('spin')
    A(f"""
    s_mov_b32 s{tmp}, 0
    {l}:
    ds_read_b32 v43, v{av} offset:{off}
    s_add_u32 s{tmp}, s{tmp}, 1
    s_waitcnt lgkmcnt(0)
    v_readfirstlane_b32 s{dst}, v43
    {cmp_ok}
    s_cbranch_scc1 {ok}
    s_sleep {slp}
    s_cmp_lt_u32 s{tmp}, {SPIN}
    s_cbranch_scc1 {l}
    """)
def lsync(off, tmp=60):
    l = lab('ls'); ok = lab('lsok')
    A(f"""
    s_mov_b64 exec, 1
    ds_add_u32 v42, v10 offset:{off}
    s_mov_b64 exec, -1
    s_mov_b32 s{tmp}, 0
    {l}:
    ds_read_b32 v43, v42 offset:{off}
    s_add_u32 s{tmp}, s{tmp}, 1
    s_waitcnt lgkmcnt(0)
    v_readfirstlane_b32 s{tmp+1}, v43
    s_cmp_ge_u32 s{tmp+1}, 7
    s_cbranch_scc1 {ok}
    s_cmp_lt_u32 s{tmp}, {SPIN}
    s_cbranch_scc1 {l}
    {ok}:
    """)
NT = 'nt' if OPT['NT'] else ''
def caddr(v, t, s, rot=True):
    A(f"""
    v_lshrrev_b32 v{v}, 3, v0
    v_lshlrev_b32 v{v}, 13, v{v}
    v_and_b32 v{t}, 7, v0
    v_lshl_add_u32 v{v}, v{t}, 7, v{v}
    v_lshlrev_b32 v{t}, 2, v0
    s_and_b32 s{s}, s2, 7
    s_lshl_b32 s{s}, s{s}, 10
    s_add_u32 s{s}, s{s}, {WS_PF}
    {RA(s) if rot else ''}
    """)
def signal(ty, v, one, s):
    A(f"""
    s_mov_b64 exec, 0xff
    v_lshlrev_b32 v{v}, 10, v0
    v_mov_b32 v{one}, 1
    s_lshl_b32 s{s}, s2, 4
    s_and_b32 s{s}, s{s}, 0x380
    s_add_u32 s{s}, s{s}, {WS_PF + 8192*ty}
    {RA(s)}
    buffer_atomic_add v{one}, v{v}, s[44:47], s{s} offen sc1
    """)
    if ty == 1: A(f"s_mov_b64 exec, 1\nglobal_atomic_add v42, v{one}, {DP} sc1")
def snap():
    A(f"""
    v_lshrrev_b32 v27, 1, v0
    s_lshl_b32 s56, s62, 5
    v_add_u32 v27, s56, v27
    v_lshlrev_b32 v25, 10, v27
    s_lshl_b32 s98, s53, 2
    s_add_u32 s98, s98, {WS_OFF}
    """)
def initnd(regs):
    for k in range(NS):
        for r, val in ((Nn(k), "0"), (Dd(k), "s[60:61]")):
            if r in regs: A(f"v_mov_b64 v[{r}:{r+1}], {val}\nv_mov_b64 v[{r+2}:{r+3}], {val}")
ALLND = [r for k in range(NS) for r in (Nn(k), Dd(k))]
def prep():
    spot()
    A("s_mov_b32 s22, 0")
    for w in range(16):
        a = ASG[w] + [0]
        A(f"s_cmp_eq_u32 s3, {w}\ns_cselect_b32 s22, {hex(a[0] | a[1] << 8 | a[2] << 16 | a[3] << 24)}, s22")
    A(f"""
    ;@spot
    v_mul_u32_u24 v33, 43, v0
    v_lshrrev_b32 v33, 7, v33
    v_mul_u32_u24 v34, 24, v33
    v_lshlrev_b32 v32, 3, v0
    v_sub_u32 v32, v32, v34
    v_cmp_lt_u32 vcc, 14, v0
    v_cndmask_b32 v32, v32, 24, vcc
    v_bfe_u32 v32, s22, v32, 8
    v_lshlrev_b32 v32, 3, v32
    v_mad_u32_u24 v33, v33, 6, 8
    v_subrev_u32 v34, 6, v33
    v_min_u32 v33, 26, v33
    v_min_u32 v34, 26, v34
    s_mov_b32 s56, {(127*NCAP + BIAS)*8193}
    v_lshl_add_u32 v35, v0, 26, s56
    v_lshrrev_b32 v43, 5, v0
    s_bfe_u32 s56, s22, 0x80000
    s_bfe_u32 s57, s22, 0x80008
    s_bfe_u32 s58, s22, 0x80010
    s_lshl_b32 s56, s56, 3
    s_lshl_b32 s57, s57, 3
    s_lshl_b32 s58, s58, 3
    v_lshl_add_u32 v36, v43, 2, s56
    v_lshl_add_u32 v37, v43, 2, s57
    v_lshl_add_u32 v38, v43, 2, s58
    ;@spot
    v_bfe_u32 v43, v0, 2, 3
    v_mul_u32_u24 v39, {QBLK}, v43
    v_and_b32 v43, 3, v0
    v_lshl_add_u32 v39, v43, 5, v39
    v_and_b32 v43, 4, v0
    v_lshl_add_u32 v39, v43, 2, v39
    v_and_b32 v43, 8, v0
    v_lshl_add_u32 v39, v43, 4, v39
    v_add_u32 v39, {QB + 127*QROW}, v39
    s_lshl_b32 s56, s3, 6
    v_and_b32 v40, 60, v0
    v_add_u32 v40, s56, v40
    """)

def gaddr():
    A(f"""
    v_lshrrev_b32 v7, 4, v0
    v_and_b32 v6, 15, v0
    v_xor_b32 v6, v6, v7
    s_and_b32 s61, s3, 3
    s_lshl_b32 s61, s61, 2
    v_xor_b32 v6, s61, v6
    v_lshlrev_b32 v6, 4, v6
    v_lshl_add_u32 v6, v7, 8, v6
    s_lshl_b32 s61, s3, 10
    s_add_u32 s64, s61, {XB}
    s_lshl_b32 s65, s49, 8
    s_add_u32 s65, s65, s61
    v_lshrrev_b32 v5, 2, v0
    v_lshlrev_b32 v5, 9, v5
    v_lshrrev_b32 v8, 5, v0
    v_lshlrev_b32 v8, 1, v8
    v_and_b32 v3, 3, v0
    v_xor_b32 v8, v8, v3
    v_lshl_add_u32 v5, v8, 4, v5
    s_lshl_b32 s56, s3, 6
    v_add_u32 v1, s56, v5
    s_mul_i32 s59, s3, {QBLK}
    s_add_u32 s59, s59, {QB}
    """)
def tailb(b, d):
    A(f"s_lshl_b32 s{d}, s{b}, 11\ns_add_u32 s{d}, s{d}, {STG}\ns_cmp_eq_u32 s{b}, 7\ns_cselect_b32 s{d}, {TAIL7}, s{d}")
def wdma(base, n=8, ldsoff=0, av=1, sb=59):
    A(f"s_add_u32 m0, s{sb}, {ldsoff}\ns_mov_b32 s56, {base}")
    for i in range(n):
        A(f"buffer_load_dwordx4 v{av}, s[28:31], s56 offen lds")
        if i < n-1: A("s_add_u32 m0, m0, 1024\ns_add_u32 s56, s56, 8192")
A(f"""
{KN}:
s_cmp_ge_u32 s2, 256
s_cbranch_scc1 L_end
s_load_dwordx16 s[4:19], s[0:1], 0
s_load_dwordx2 s[20:21], s[0:1], 64
s_load_dwordx2 s[24:25], s[0:1], 80
s_load_dwordx2 s[0:1], s[0:1], 72
v_lshrrev_b32 v1, 6, v0
v_and_b32 v0, 63, v0
v_readfirstlane_b32 s3, v1
v_mov_b32 v42, 0
v_mov_b32 v41, 0
s_cmp_lg_u32 s3, 15
s_cbranch_scc1 L_noinit
v_mov_b64 v[16:17], 0
v_mov_b64 v[18:19], 0
s_mov_b32 s56, {CNT}
v_lshl_add_u32 v2, v0, 4, s56
v_lshlrev_b32 v23, 2, v0
v_sub_u32 v20, 127, v0
v_sub_u32 v21, 63, v0
ds_write_b128 v2, v[16:19]
ds_write_b32 v23, v16
ds_write2st64_b32 v23, v20, v21 offset0:{KEY//256} offset1:{KEY//256+1}
L_noinit:
s_mov_b32 s26, 0xffff0000
s_mov_b32 s54, 0
s_mov_b32 s55, 0
s_mov_b32 s48, s2
""")
bucket_range(2, 53, 51, 52)
A("s_mov_b32 s49, s51\ns_mov_b32 s50, s52\ns_sub_u32 s52, s52, s51\ns_sub_u32 s62, s3, 8")
A(f"""
s_mov_b32 s31, 0x00020000
s_mov_b32 s35, 0x00020000
s_mov_b32 s38, {E*2}
s_mov_b32 s39, 0x00020000
s_mov_b32 s46, 0x10000000
s_mov_b32 s70, {WB0}
s_mov_b32 s47, 0x00020000
s_cmp_lt_u32 s3, 8
s_cbranch_scc1 L_Gfirst
s_lshl_b32 s56, s62, 6
v_add_u32 v1, s56, v0
s_mul_i32 s57, s2, {CH}
v_lshl_add_u32 v2, v1, 2, s57
v_lshlrev_b32 v3, 2, v2
v_lshlrev_b32 v4, 1, v2
s_mov_b32 s30, {E*4}
s_mov_b32 s34, {E*4}
s_cmp_eq_u32 s3, 15
s_cbranch_scc1 L_W15
s_waitcnt lgkmcnt(0)
s_mov_b32 s28, s10
s_mov_b32 s29, s11
s_mov_b32 s32, s8
s_mov_b32 s33, s9
s_mov_b32 s36, s6
s_mov_b32 s37, s7
buffer_load_dwordx4 v[44:47], v3, s[28:31], 0 offen {NT}
buffer_load_dwordx4 v[48:51], v3, s[32:35], 0 offen {NT}
buffer_load_dwordx2 v[52:53], v4, s[36:39], 0 offen {NT}
s_barrier
s_branch L_Lcont
L_W15:
""")
CPF = '''v_cmp_gt_u32 vcc, s58, v34
s_and_b64 exec, exec, vcc
s_cbranch_execz L_nocpf
global_load_dword v35, v34, s[56:57]
L_nocpf:
s_mov_b64 exec, 0xffff
''' if OPT.get('CPF', 1) else ''
SLOTC = (f's_bfe_u32 s70, s60, {hex(ROT | 3 << 16)}\ns_mul_i32 s70, s70, 0x1800000\n' if ROT < 32 else f's_mov_b32 s70, {ROT << 20}\n') + f'''v_mov_b32 v16, s70
ds_write_b32 v42, v16 offset:{C_SLOT}
s_add_u32 s23, s23, s70''' if ROT else ''
caddr(52, 23, 23, False)
if 0 < ROT < 32: A('s_memrealtime s[60:61]')
A(f"""
s_lshr_b32 s56, s2, 3
s_lshl_b32 s56, s56, 11
v_lshl_add_u32 v28, v0, 7, s56
v_add_u32 v29, 0x10000, v28
v_lshrrev_b32 v32, 3, v0
v_lshlrev_b32 v32, 6, v32
v_and_b32 v33, 1, v0
v_lshl_add_u32 v32, v33, 5, v32
v_bfe_u32 v33, v0, 1, 2
v_lshl_add_u32 v32, v33, 3, v32
v_add_u32 v33, 0x20000, v32
v_lshrrev_b32 v34, 1, v28
v_and_b32 v34, 0xffffff80, v34
s_getpc_b64 s[56:57]
L_pc:
s_mov_b32 s58, L_last-L_pc
s_waitcnt lgkmcnt(0)
{SLOTC}
s_mov_b32 s44, s24
s_mov_b32 s45, s25
s_mov_b64 exec, 0xffff
buffer_load_dword v53, v52, s[44:47], s23 offen sc1
{CPF}global_load_dword v30, v28, s[12:13]
global_load_dword v30, v29, s[12:13]
global_load_dword v31, v28, s[16:17]
s_mov_b64 exec, -1
global_load_dwordx2 v[36:37], v33, s[12:13]
global_load_dwordx2 v[38:39], v32, s[14:15]
{'s_waitcnt lgkmcnt(0)' if ROT else ''}
s_barrier
;@hopW
s_branch L_W15cont
L_Gfirst:
""")
gaddr()
A(f"""
s_mov_b32 s30, {257*512}
s_mov_b32 s34, {N*256}
s_waitcnt lgkmcnt(0)
s_mov_b32 s28, s12
s_mov_b32 s29, s13
s_mov_b32 s32, s4
s_mov_b32 s33, s5
""")
if OPT.get('GDP'): A(f"s_setprio {OPT['GDP']}")
ts(0)
bar()
ts(20)
WF = OPT.get('WF', 0)
if WF: wdma(0, WF)
if OPT.get('XD'): A(f"s_sleep {OPT['XD']}")
A("s_mov_b32 m0, s64")
for i in range(3): A(f"buffer_load_dwordx4 v6, s[32:35], s65 offen {NT} lds\ns_add_u32 m0, m0, 8192\ns_add_u32 s65, s65, 8192")
A(f"s_cmp_lg_u32 s3, 0\ns_cbranch_scc1 L_Gw\nbuffer_load_dwordx4 v6, s[32:35], s65 offen {NT} lds\nL_Gw:")
if WF < 8: wdma(8192*WF, 8-WF, 1024*WF)
A("s_branch L_Gcont")
def common():
    A(f"""
    s_mov_b32 s44, s24
    s_mov_b32 s45, s25
    s_mov_b32 s36, s6
    s_mov_b32 s37, s7
    s_mov_b32 s40, s24
    s_and_b32 s41, s25, 0xffff
    s_or_b32 s41, s41, 0x00100000
    s_mov_b32 s42, 64
    s_mov_b32 s43, 0x00800000
    """)
A(";@warm")
A(f"L_Lcont:\ns_mov_b64 exec, -1\ns_setprio {OPT['LPRIO']}\ns_mov_b32 s23, 0")
common()
ts(0)
ts(20)
DG = OPT.get('DG', 0)
if DG == 1: A("s_branch L_fin")
A(f"""
s_lshl_b32 s99, s2, 10
s_add_u32 s99, s99, {WS_OFF}
v_lshlrev_b32 v14, 4, v0
{f'ds_read_b32 v16, v42 offset:{C_SLOT}' if ROT else ''}
""")
snap()
A(f"""
v_cmp_gt_u32 vcc, {CH//4}, v1
v_mov_b32 v3, {E}
v_cmp_gt_u32 s[96:97], v3, v2
s_and_b64 s[96:97], s[96:97], vcc
v_mov_b32 v10, 1
s_movk_i32 s56, 2684
s_mov_b32 s57, {CNT}
s_movk_i32 s58, {N-1}
v_lshl_add_u32 v11, v0, 4, s57
""")
ts(22); spot()
A(f"s_waitcnt vmcnt(2)")
ts(1); spot()
A("s_mov_b64 exec, s[96:97]")
for i in range(4):
    A(f"""
    v_min_u32 v{44+i}, s58, v{44+i}
    v_mul_u32_u24 v{54+i}, s56, v{44+i}
    v_lshrrev_b32 v{54+i}, 18, v{54+i}
    v_lshl_add_u32 v{54+i}, v{54+i}, 2, s57
    ds_add_rtn_u32 v{58+i}, v{54+i}, v10
    """)
lsync(C_S2)
if ROT: A(f"v_readfirstlane_b32 s70, v16\n{RA(98)}\n{RA(99)}")
ts(2); spot()
A(f"ds_read_b128 v[64:67], v11\ns_waitcnt vmcnt(0)")
for i in range(4):
    A(f"""
    v_min_u32 v{48+i}, s58, v{48+i}
    v_and_b32 v{44+i}, 127, v{44+i}
    v_bfe_u32 v62, v{48+i}, 4, 2
    v_mad_u32_u24 v62, v62, 6, 8
    v_lshl_or_b32 v{44+i}, v{44+i}, 7, v62
    """)
A(f"""
s_waitcnt lgkmcnt(0)
v_add_u32 v69, v64, v65
v_add_u32 v70, v69, v66
v_add_u32 v72, v70, v67
v_mov_b32 v73, v72
v_lshl_or_b32 v48, v52, 16, v48
v_and_or_b32 v49, v52, s26, v49
""")
dpp_add(73, "row_shr:1")
A("v_lshl_or_b32 v50, v53, 16, v50\nv_and_or_b32 v51, v53, s26, v51")
dpp_add(73, "row_shr:2"); dpp_add(73, "row_shr:4"); dpp_add(73, "row_shr:8")
dpp_add(73, "row_bcast:15", "row_mask:0xa bank_mask:0xf"); dpp_add(73, "row_bcast:31", "row_mask:0xc bank_mask:0xf")
A(f"""
;@spot
v_sub_u32 v76, v73, v72
v_add_u32 v77, v76, v64
v_add_u32 v78, v76, v69
v_add_u32 v79, v76, v70
ds_write_b128 v11, v[76:79] offset:{START-CNT}
s_mov_b64 exec, s[96:97]
""")
for i in range(4): A(f"ds_read_b32 v{54+i}, v{54+i} offset:{START-CNT}")
A(f"s_mov_b32 s57, {STG}")
for i in range(4): A(f"v_lshl_add_u32 v{58+i}, v{58+i}, 3, s57")
for i in range(4):
    A(f"""
    s_waitcnt lgkmcnt(3)
    v_lshl_add_u32 v{54+i}, v{54+i}, 3, v{58+i}
    ds_write2_b32 v{54+i}, v{48+i}, v{44+i} offset0:0 offset1:1
    """)
A(f"""
s_mov_b64 exec, -1
v_lshl_add_u32 v12, v1, 4, s57
v_lshlrev_b32 v13, 4, v1
s_mul_i32 s56, s2, {REC_STRIDE}
s_add_u32 s56, s56, {WS_REC}
{RA(56)}
s_add_u32 s57, s56, 7168
v_cmp_gt_u32 vcc, 334, v1
""")
lsync(C_S3)
ts(3); spot()
A(f"""
ds_read_b128 v[84:87], v12
ds_read_b128 v[88:91], v12 offset:7168
v_lshl_or_b32 v80, v64, 16, v76
v_lshl_or_b32 v81, v65, 16, v77
v_lshl_or_b32 v82, v66, 16, v78
v_lshl_or_b32 v83, v67, 16, v79
s_waitcnt lgkmcnt(1)
buffer_store_dwordx4 v[84:87], v13, s[44:47], s56 offen {SC}
s_cbranch_vccz L_nost2
s_mov_b64 exec, vcc
s_waitcnt lgkmcnt(0)
buffer_store_dwordx4 v[88:91], v13, s[44:47], s57 offen {SC}
s_branch L_st3
L_nost2:
buffer_store_dwordx4 v[80:83], v14, s[44:47], s99 offen {SC}
L_st3:
s_mov_b64 exec, 1
s_waitcnt vmcnt(0) lgkmcnt(0)
ds_add_rtn_u32 v15, v42, v10 offset:{C_REC}
s_mov_b64 exec, -1
s_waitcnt lgkmcnt(0)
v_readfirstlane_b32 s58, v15
s_cmp_lg_u32 s58, 6
s_cbranch_scc1 L_B0
""")
signal(0, 13, 14, 56)
A("s_branch L_B0")
spot(True)
A(f"L_W15cont:\ns_mov_b64 exec, -1\nv_lshlrev_b32 v1, 4, v0\ns_mov_b32 s28, s10\ns_mov_b32 s29, s11\ns_mov_b32 s32, s8\ns_mov_b32 s33, s9")
common()
ts(0)
snap()
A(f"""
{RA(98)}
s_setprio {OPT['LPRIO']}
s_mov_b32 s56, {NLOG2E}
s_mov_b32 s57, {NLOG2E}
s_waitcnt vmcnt(0)
v_add_u32 v53, {33 if OPT.get('FORCE_LATE') else 32}, v53
v_lshlrev_b32 v4, 16, v36
v_and_b32 v5, s26, v36
v_lshlrev_b32 v6, 16, v37
v_and_b32 v7, s26, v37
v_lshlrev_b32 v32, 16, v38
v_and_b32 v33, s26, v38
v_lshlrev_b32 v34, 16, v39
v_and_b32 v35, s26, v39
v_pk_mul_f32 v[4:5], v[4:5], s[56:57]
v_pk_mul_f32 v[6:7], v[6:7], s[56:57]
v_pk_mul_f32 v[32:33], v[32:33], s[56:57]
v_pk_mul_f32 v[34:35], v[34:35], s[56:57]
ds_write_b128 v1, v[4:7] offset:{CW}
ds_write_b128 v1, v[32:35] offset:{CB}
""")
A("L_B0:\ns_mov_b64 exec, -1")
ts(4); spot()
if DG in (1, 2): A("s_branch L_fin")
srd(28, 12, 257*512)
A(f"""
v_lshrrev_b32 v16, 2, v0
v_lshlrev_b32 v16, 9, v16
v_lshrrev_b32 v17, 5, v0
v_lshlrev_b32 v17, 1, v17
v_and_b32 v18, 3, v0
v_xor_b32 v17, v17, v18
v_lshl_add_u32 v16, v17, 4, v16
s_lshl_b32 s56, s62, 6
v_add_u32 v16, s56, v16
s_mul_i32 s59, s62, {QBLK}
s_add_u32 s59, s59, {QB}
""")
if OPT.get('WBX', 8):
    lds_spin(C_X, 57, f"s_cmp_ge_u32 s57, {OPT.get('WBX', 8)}", "L_wb0", slp=2)
else:
    A("s_cmp_lg_u32 s3, 15\ns_cbranch_scc1 L_wb0")
    lds_spin(C_S3, 57, "s_cmp_ge_u32 s57, 7", "L_wb0", slp=2)
A("L_wb0:")
wdma(65536, 6, 8192, 16)
tailb(62, 64)
A(f"""
v_and_b32 v19, 1, v0
v_lshlrev_b32 v19, 1, v19
s_movk_i32 s57, {REC_STRIDE}
v_mul_u32_u24 v10, s57, v27
v_lshl_add_u32 v10, v19, 3, v10
""")
prep()
lds_spin(C_REC, 57, "s_cmp_ge_u32 s57, 7", "L_own", slp=1)
A("L_own:")
wdma(65536+6*8192, 2, 0, 16, 64)
A(f"v_mov_b32 v17, 1\ns_mov_b64 exec, 1\ns_waitcnt vmcnt(0)\nds_add_u32 v42, v17 offset:{C_WB}\ns_mov_b64 exec, -1")
ts(23)
A("s_cmp_eq_u32 s3, 15\ns_cbranch_scc1 L_w15b\n;@hopB\nL_Bback:\ns_mov_b64 exec, -1")
lds_spin(C_GO, 57, "s_cmp_lg_u32 s57, 0", "L_goseen", slp=2)
A(f"""
L_goseen:
s_cmp_eq_u32 s57, 1
s_cbranch_scc1 L_offok
L_B0_to:
s_mov_b64 exec, -1
""")
lds_or(C_ABORT, 2)
A("s_mov_b32 s63, 0\ns_branch L_B1done")
spot(True)
A("L_w15b:")
if OPT['PDELAY']: A(f"s_sleep {OPT['PDELAY']}")
ts(24); spot()
A(f"""
s_mov_b64 exec, 0xff
s_mov_b32 s58, 0
L_offp:
buffer_load_dword v18, v52, s[44:47], s23 offen sc1
s_add_u32 s58, s58, 1
s_waitcnt vmcnt(0)
v_cmp_ne_u32 vcc, v18, v53
""")
if OPT['FORCE_RECOV'] != 4: A("s_cbranch_vccz L_go\ns_mov_b64 exec, vcc")
def dbg(cnt, ty, v, ok):
    l = lab('dk')
    A(f"""
    s_cmp_lt_u32 s{cnt}, {(6, 16)[ty]}
    s_cbranch_scc1 {l}
    global_load_dword v{v}, v42, {DP} sc1
    s_waitcnt vmcnt(0)
    v_readfirstlane_b32 s57, v{v}
    s_cmp_eq_u32 s57, 256
    s_cbranch_scc1 {ok}
    {l}:
    """)
if OPT['FORCE_RECOV'] != 4: dbg(58, 0, 18, "L_go")
A(f"""
s_sleep {SLP}
s_cmp_lt_u32 s58, {2 if OPT['FORCE_RECOV'] == 4 else POLLMAX}
s_cbranch_scc1 L_offp
""")
lds_or(C_GO, 2)
A("s_branch L_B0_to\nL_go:")
lds_or(C_GO, 1)
if TS: A("v_writelane_b32 v41, s58, 40")
A("s_mov_b64 exec, -1")
A("L_offok:\nbuffer_load_dword v18, v25, s[44:47], s98 offen sc1")
ts(5); spot()
A("s_waitcnt vmcnt(0)")
ts(6); spot()
A(f"""
v_and_b32 v16, 0xffff, v18
v_lshrrev_b32 v11, 16, v18
v_lshl_add_u32 v10, v16, 3, v10
v_cmp_lt_u32 vcc, 24, v11
v_sub_u32 v11, v11, v19
{f's_add_u32 s56, s70, {WS_REC}' if ROT else f's_mov_b32 s56, {WS_REC}'}
s_mov_b32 s63, 0
""")
for i in range(6):
    m = 72+4*i
    A(f"""
    v_cmp_lt_i32 s[{m}:{m+1}], {4*i}, v11
    s_cmp_eq_u64 s[{m}:{m+1}], 0
    s_cbranch_scc1 L_ldone
    s_mov_b64 exec, s[{m}:{m+1}]
    buffer_load_dwordx4 v[{Nn(i)}:{Nn(i)+3}], v10, s[44:47], s56 offen offset:{32*i} sc1
    v_cmp_lt_i32 s[{m+2}:{m+3}], {4*i+1}, v11
    s_add_u32 s63, s63, 1
    """)
A(f"""
L_ldone:
s_mov_b64 exec, -1
s_cbranch_vccz L_noovf
""")
lds_or(C_ABORT, 1)
A(f"""
L_noovf:
s_lshl_b32 s57, s51, 7
v_mov_b32 v16, 0x41041
s_waitcnt vmcnt(0)
""")
ts(7)
spot()
for i in range(6):
    A(f"s_cmp_le_u32 s63, {i}\ns_cbranch_scc1 L_B1done")
    for j in range(2):
        d1 = Nn(i)+2*j+1; ad = Dd(i)+2*j; rk = ad+1; u = 20+j; m = 72+4*i+2*j
        A(f"""
        s_mov_b64 exec, s[{m}:{m+1}]
        v_subrev_u32 v{ad}, s57, v{d1}
        v_lshlrev_b32 v{u}, v{d1}, v16
        v_bfe_u32 v{ad}, v{ad}, 5, 9
        ds_add_rtn_u32 v{rk}, v{ad}, v{u} offset:{KEY}
        """)
A("L_B1done:\ns_mov_b64 exec, -1\ns_setprio 0\ns_waitcnt lgkmcnt(0)")
ts(8); spot()
if DG: A("s_branch L_fin")
bar()
ts(9); spot()
A(f"""
s_mov_b32 s57, {NL}
v_mov_b32 v20, 0
s_cmp_lg_u32 s3, 15
s_cbranch_scc1 L_nopre
s_mov_b64 exec, 0xff00
buffer_load_dword v54, v52, s[44:47], s23 offen sc1
L_nopre:
""")
for i in range(6):
    A(f"s_cmp_le_u32 s63, {i}\ns_cbranch_scc1 L_sc2")
    for j in range(2):
        ad = Dd(i)+2*j; rk = ad+1; m = 72+4*i+2*j; F = 4+2*i+j
        A(f"""
        s_mov_b64 exec, s[{m}:{m+1}]
        ds_read_b32 v{F}, v{ad} offset:{KEY}
        v_max_u32 v20, v20, v{rk}
        v_mad_u32_u24 v{ad}, v{ad}, {NCAP}, s57
        """)
A("L_sc2:\ns_mov_b64 exec, -1\n;@spot\ns_waitcnt lgkmcnt(0)")
for i in range(6):
    A(f"s_cmp_le_u32 s63, {i}\ns_cbranch_scc1 L_sc3")
    for j in range(2):
        w0 = Nn(i)+2*j; d1 = w0+1; ad = Dd(i)+2*j; rk = ad+1; m = 72+4*i+2*j; F = 4+2*i+j
        A(f"""
        s_mov_b64 exec, s[{m}:{m+1}]
        v_sub_u32 v{F}, v{F}, v{rk}
        v_lshl_add_u32 v{F}, v{F}, 6, v{rk}
        v_bfe_u32 v{F}, v{F}, v{d1}, 6
        v_lshl_add_u32 v{F}, v{F}, 2, v{ad}
        ds_write_b32 v{F}, v{w0}
        """)
A(f"""
L_sc3:
s_mov_b64 exec, -1
v_cmp_le_u32 vcc, {hex(NCAP << 26)}, v20
s_cbranch_vccz L_C2
""")
lds_or(C_ABORT, 1)
A("s_branch L_C2")
spot(True)

A(f"""
;@g0
L_Gcont:
;@spot
s_mov_b32 s23, 0
{f'ds_read_b32 v24, v42 offset:{C_SLOT}' if ROT else ''}
""")
common()
ts(21)
GSL = f's_waitcnt lgkmcnt(0)\nv_readfirstlane_b32 s70, v24\n{RA(60)}\n{RA(34)}' if ROT else ''
A(f"""
v_lshrrev_b32 v4, 4, v0
v_bfe_u32 v5, v0, 2, 2
v_lshl_add_u32 v5, v4, 3, v5
v_lshlrev_b32 v2, 6, v5
v_lshl_add_u32 v2, v3, 3, v2
v_and_b32 v5, 1, v4
v_lshl_add_u32 v2, v5, 5, v2
v_add_u32 v2, s59, v2
v_xor_b32 v3, 32, v2
v_and_b32 v5, 15, v0
v_xor_b32 v6, v4, v5
v_lshlrev_b32 v6, 4, v6
v_lshl_add_u32 v16, v5, 8, v6
v_add_u32 v16, {XB}, v16
v_xor_b32 v17, 64, v16
v_xor_b32 v18, 0x80, v16
v_xor_b32 v19, 0xc0, v16
;@spot
v_lshlrev_b32 v6, 9, v5
v_lshl_add_u32 v6, v4, 4, v6
s_lshl_b32 s56, s3, 6
v_add_u32 v6, s56, v6
v_mul_u32_u24 v7, {QROW}, v5
v_lshl_add_u32 v7, v4, 5, v7
s_and_b32 s56, s3, 1
s_lshl_b32 s56, s56, 4
s_and_b32 s57, s3, 2
s_lshl_b32 s57, s57, 6
s_add_u32 s56, s56, s57
s_add_u32 s56, s56, s59
v_add_u32 v7, s56, v7
;@spot
s_mov_b32 s32, s24
s_mov_b32 s33, s25
s_lshl_b32 s34, s50, 9
s_add_u32 s34, s34, {PB0}
s_mov_b32 s35, 0x00020000
s_mov_b32 s92, {NLOG2E}
s_lshl_b32 s60, s49, 9
s_add_u32 s60, s60, {PB0}
{GSL}
""")
tailb(3, 64)
A("s_sub_u32 s56, s64, s59\nv_add_u32 v20, s56, v2\nv_add_u32 v21, s56, v3")
ts(22); spot()
AF = 96; BFQ = ((44, 48, 52, 56), (68, 80, 88, 92)); ACC = (8, 24); PK = (32, 36, Nn(0), Dd(0), Nn(1), Dd(1), Nn(2))
def afrags(offs=(0, 2048, 4096, 6144)):
    for s in range(4):
        for a in range(2):
            for hf in range(2):
                r = AF + a*16 + s*4 + hf*2
                A(f"ds_read_b64_tr_b16 v[{r}:{r+1}], v{(2 if offs[s] >= 0 else 20)+a} offset:{max(offs[s], 0)+256*hf}")
def bfrQ(t):
    for s in range(4):
        r = BFQ[t & 1][s]
        A(f"ds_read_b128 v[{r}:{r+3}], v{16+s} offset:{4096*t}")
def grab(f, *a):
    n = len(L); f(*a); r = L[n:]; del L[n:]; return r
GP = OPT.get('GPRIO', '1100')
def gemm(post, nw, tail=None, pr='00'):
    for t in range(7):
        spot()
        if t == 0 or (t == OPT.get('GPT', 4) and pr[0] != pr[1]): A(f"s_setprio {pr[min(t, 1)]}")
        A(f"s_waitcnt lgkmcnt({nw if t > 1 else 0})")
        rd = grab(bfrQ, t+1) if t < 6 else []
        po = grab(post, t-1) if t > 0 else []
        gaps = [rd[0:2], rd[2:4]] + [[] for _ in range(6)]
        g = 2; c = 0
        for x in po:
            gaps[g].append(x)
            if not x.strip().startswith('s_'): c += 1
            if c == FPG and g < 7: g += 1; c = 0
        for s in range(4):
            for a in range(2):
                c = ACC[t & 1] + 4*a; ar = AF + a*16 + s*4; br = BFQ[t & 1][s]
                A(f"v_mfma_f32_16x16x32_bf16 v[{c}:{c+3}], v[{ar}:{ar+3}], v[{br}:{br+3}], " + ("0" if s == 0 else f"v[{c}:{c+3}]"))
                L.extend(gaps[2*s+a])
        if nw and t == OPT['PUBT'] + 1: pubA()
    if tail: tail()
    post(6)
FPG = OPT.get('FPG', 2); SPT = OPT.get('SPT', 2)
def pst(t):
    o = PK[t]
    if not OPT.get('NOST'): A(f"buffer_store_dwordx4 v[{o}:{o+3}], v6, s[32:35], s60 offen {SC}\ns_add_u32 s60, s60, 8192")
def postP(t):
    c = ACC[t & 1]; o = PK[t]
    for i in range(4):
        A(f"v_mul_f32 v{c+2*i}, s92, v{c+2*i}\nv_mul_f32 v{c+2*i+1}, s92, v{c+2*i+1}")
        if i: A(f"v_cvt_pk_bf16_f32 v{o+i-1}, v{c+2*i-2}, v{c+2*i-1}")
    A(f"v_cvt_pk_bf16_f32 v{o+3}, v{c+6}, v{c+7}")
    if t < EP: pst(t)
def postQ(t):
    c = ACC[t & 1]
    if t == 6: A("s_mov_b32 exec_lo, 0x00030003\ns_mov_b32 exec_hi, 0x00030003")
    A(f"ds_write_b128 v7, v[{c}:{c+3}] offset:{2304*t}\nds_write_b128 v7, v[{c+4}:{c+7}] offset:{2304*t+16}")
    if t == 6: A("s_mov_b64 exec, -1")
    for i in range(SPT):
        if EP + SPT*t + i < 7: pst(EP + SPT*t + i)
A(f"""
s_add_u32 s63, s54, 1
s_lshl_b32 s63, s63, 3
v_mov_b32 v4, 1
s_mov_b64 exec, 1
s_waitcnt vmcnt(0)
ds_add_u32 v42, v4 offset:{C_X}
s_mov_b64 exec, -1
""")
ts(2); spot()
lds_spin(C_X, 56, "s_cmp_ge_u32 s56, s63", "L_xok")
A("L_xok:")
ts(3); spot()
if DG: A("s_memtime s[100:101]\ns_waitcnt lgkmcnt(0)\nv_writelane_b32 v41, s100, 46"); ts(14)
afrags()
bfrQ(0)
A("s_cmp_eq_u32 s54, 0\ns_cbranch_scc1 L_nowb")
wdma(65536, 6, 8192)
wdma(65536+6*8192, 2, 0, 1, 64)
A("s_waitcnt vmcnt(0)\nL_nowb:")
def mid():
    lds_spin(C_WB, 56, "s_cmp_ge_u32 s56, 8", "L_wbok")
    A("L_wbok:")
    ts(5)
    afrags((8192, 10240, 12288, -1)); bfrQ(0)
gemm(postP, 0, mid, GP[0:2])
ts(4); spot()
def pubA():
    A(f"""
    s_cmp_lg_u32 s54, 0
    s_cbranch_scc1 L_nopub
    s_mov_b64 exec, 1
    v_mov_b32 v4, 1
    s_waitcnt vmcnt(0)
    ds_add_rtn_u32 v5, v42, v4 offset:{C_PA}
    s_waitcnt lgkmcnt(0)
    v_readfirstlane_b32 s57, v5
    s_cmp_lg_u32 s57, 7
    s_cbranch_scc1 L_nopub
    """)
    signal(1, 5, 4, 56)
    A("L_nopub:\ns_mov_b64 exec, -1")
    ts(25)
gemm(postQ, 2, None, GP[2:4])
A('s_setprio 0')
ts(7)
prep()
if OPT['PUBT'] == 6: pubA()
ts(6); spot()
if DG: A("s_memtime s[100:101]\ns_waitcnt lgkmcnt(0)\nv_writelane_b32 v41, s100, 47"); ts(15)
A(f"""
s_cmp_lg_u32 s54, 0
s_cbranch_scc1 L_recovG
v_and_b32 v9, 3, v0
v_mul_u32_u24 v9, 112, v9
v_mov_b32 v14, 0
v_mov_b32 v15, 0
s_waitcnt lgkmcnt(0)
""")
A(';@g1')
ts(8); spot()
if DG: A("s_branch L_fin")
bar()
ts(9); spot()
A(f"ds_read_b32 v10, v40 offset:{KEY}")
for q in range(7): A(f"ds_read_b128 v[{96+4*q}:{99+4*q}], v9 offset:{KEY+16*q}")
pairs = (96, 98, 56, 60)
for q in range(7):
    spot()
    A(f"s_waitcnt lgkmcnt({6-q})")
    for i in range(4): A(f"v_cmp_gt_u32 s[{pairs[i]}:{pairs[i]+1}], v{96+4*q+i}, v10")
    for i in range(4): A(f"v_addc_co_u32 v{14+(i&1)}, vcc, 0, v{14+(i&1)}, s[{pairs[i]}:{pairs[i]+1}]")
A("v_add_u32 v15, v14, v15")
dpp_add(15, "quad_perm:[1,0,3,2]", "row_mask:0xf bank_mask:0xf")
dpp_add(15, "quad_perm:[2,3,0,1]", "row_mask:0xf bank_mask:0xf")
A(f"""
v_lshlrev_b32 v15, 2, v15
ds_write_b32 v15, v10 offset:{SORT}
L_C2:
s_waitcnt lgkmcnt(0)
""")
ts(10); spot()
bar()
ts(11); spot()
MSK = (1 << 12) | (1 << 13) | (1 << 14) | (1 << 18)
LOV = sum(1 << s for s in range(3, 15)) | (1 << 18)
A(f"""
L_B4:
ds_read_b64 v[4:5], v32 offset:{SORT}
ds_read_b32 v43, v42 offset:{C_ABORT}
ds_read_b32 v36, v36 offset:{SORT}
ds_read_b32 v37, v37 offset:{SORT}
ds_read_b32 v38, v38 offset:{SORT}
s_mul_i32 s59, s3, {LW}
s_add_u32 s59, s59, {WL}
v_lshl_add_u32 v6, v0, 2, s59
v_mov_b32 v8, 0
v_mov_b32 v{VN}, 0
ds_write2st64_b32 v6, v8, v8 offset0:0 offset1:1
;@spot
s_mov_b32 s96, {hex(MSK)}
s_mov_b32 s97, 0
s_cmp_eq_u32 s3, 0
s_movk_i32 s98, 0x7fff
s_cselect_b32 s98, {hex(0x7fff | 1 << 15 | 1 << 18)}, s98
s_mov_b32 s99, 0
s_movk_i32 s60, {-NCAP}
s_movk_i32 s61, 8193
s_waitcnt lgkmcnt(4)
v_cndmask_b32 v7, v5, v4, s[96:97]
v_bfe_u32 v9, v4, v33, 6
v_bfe_u32 v11, v4, v34, 6
v_bfe_u32 v12, v5, v34, 6
v_bfe_u32 v10, v7, v33, 6
s_mov_b64 exec, {hex(LOV)}
v_min_u32 v8, v11, v12
s_mov_b64 exec, s[98:99]
v_min_u32 v9, v9, v10
v_sub_u32 v{VN}, v9, v8
s_mov_b64 exec, -1
v_mov_b32 v10, v{VN}
v_and_b32 v11, 127, v4
v_and_b32 v12, 127, v7
""")
dpp_add(10, "row_shr:1")
A("v_lshl_add_u32 v11, v12, 13, v11\nv_readfirstlane_b32 s55, v43")
dpp_add(10, "row_shr:2")
A(f"v_mad_i32_i24 v11, v11, s60, v35\nv_cmp_lt_u32 vcc, 0, v{VN}")
dpp_add(10, "row_shr:4")
A(f"v_lshl_add_u32 v13, v0, 3, s59\nv_lshrrev_b32 v1, 5, v0")
dpp_add(10, "row_shr:8")
A(f"v_mul_u32_u24 v1, {HL}, v1\nv_add_u32 v1, s59, v1")
dpp_add(10, "row_bcast:15", "row_mask:0xa bank_mask:0xf")
A(f"""
v_sub_u32 v12, v10, v{VN}
v_sub_u32 v9, v9, v10
v_readlane_b32 s58, v10, 20
v_lshl_add_u32 v12, v12, 2, s59
v_mad_i32_i24 v11, v9, s61, v11
s_sub_u32 s56, s58, 1
s_cmp_lt_u32 s56, {HL//8 - R}
s_cbranch_scc1 L_capok
s_or_b32 s55, s55, 4
L_capok:
;@spot
""")
if OPT['FORCE_SAFE']: A("s_or_b32 s55, s55, 1")
A(f"""
s_cmp_lg_u32 s55, 0
s_cbranch_scc1 L_nolist
s_mov_b64 exec, vcc
ds_write_b32 v12, v11
s_mov_b64 exec, -1
ds_read2st64_b32 v[10:11], v6 offset0:0 offset1:1
v_min_u32 v9, s56, v0
s_mov_b32 s57, {NL - 4*BIAS}
v_lshl_add_u32 v9, v9, 2, s57
s_movk_i32 s60, 512
s_waitcnt lgkmcnt(0)
""")
def fill(v, pm, ex=None, off=0):
    for c in ("row_shr:1", "row_shr:2", "row_shr:4", "row_shr:8"): dpp("v_max_u32", v, c)
    dpp("v_max_u32", v, "row_bcast:15", "row_mask:0xa bank_mask:0xf")
    dpp("v_max_u32", v, "row_bcast:31", "row_mask:0xc bank_mask:0xf")
    if ex: A(f"s_mov_b64 exec, {ex}")
    A(f"""
    v_and_b32 v14, 0x1fff, v{v}
    v_bfe_u32 v15, v{v}, 13, 13
    v_lshl_add_u32 v14, v14, 2, v{pm}
    v_lshl_add_u32 v15, v15, 2, v{pm}
    ds_read_b32 v14, v14
    ds_read_b32 v15, v15
    s_waitcnt lgkmcnt(1)
    v_and_b32 v16, 0x7fff, v14
    v_mad_u32_u24 v16, v16, s60, s60
    v_and_b32 v14, s26, v14
    ds_write2_b32 v13, v16, v14 offset0:{off} offset1:{off+2*R+1}
    s_waitcnt lgkmcnt(1)
    v_and_b32 v17, 0x7fff, v15
    v_lshlrev_b32 v17, 9, v17
    v_and_b32 v15, s26, v15
    ds_write2_b32 v13, v17, v15 offset0:{off+HL//4} offset1:{off+HL//4+2*R+1}
    """)
fill(10, 9)
A(f"s_cmp_gt_u32 s58, {64-R}\ns_cbranch_scc1 L_fill2\nL_filled:\nL_nolist:")
A(f"""
ds_read_b128 v[8:11], v1
ds_read_b128 v[12:15], v1 offset:16
ds_read_b128 v[16:19], v1 offset:32
ds_read_b128 v[20:23], v1 offset:48
""")
ts(12); spot()
A(f"""
s_movk_i32 s60, {-QROW}
v_and_b32 v36, 127, v36
v_and_b32 v37, 127, v37
v_and_b32 v38, 127, v38
v_mad_i32_i24 v36, v36, s60, v39
v_mad_i32_i24 v37, v37, s60, v39
v_mad_i32_i24 v38, v38, s60, v39
s_bitcmp1_b32 s55, 1
s_cbranch_scc1 L_recover
s_cmp_lg_u32 s3, 15
s_cbranch_scc1 L_pfdone
s_cmp_lg_u32 s54, 0
s_cbranch_scc1 L_pfdone
s_mov_b32 s56, 0
s_mov_b64 exec, 0xff00
v_mov_b32 v55, 1
L_pfp:
s_waitcnt vmcnt(0)
v_cmp_ne_u32 vcc, v54, v53
""")
if OPT['FORCE_RECOV'] != 1: A("s_cbranch_vccz L_pfok\ns_mov_b64 exec, vcc"); dbg(56, 1, 54, "L_pfok")
A(f"""
s_sleep {OPT.get('PSL', 4)}
buffer_load_dword v54, v52, s[44:47], s23 offen sc1
s_add_u32 s56, s56, 1
s_cmp_lt_u32 s56, {2 if OPT['FORCE_RECOV'] == 1 else POLLMAX}
s_cbranch_scc1 L_pfp
v_mov_b32 v55, 2
L_pfok:
ds_write_b32 v42, v55 offset:{C_PFA}
s_mov_b64 exec, -1
""")
if TS: A("v_writelane_b32 v41, s56, 41")
A(f"L_pfdone:\nds_read_b32 v43, v42 offset:{C_PFA}")
def gather(p, idx):
    A(f"buffer_load_dwordx4 v[{RING[p]}:{RING[p]+3}], v{idx}, s[40:43], s70 offen {SC}")
for k in range(NS): A(f"ds_read_b128 v[{Q(k)}:{Q(k)+3}], v{36+(k>>1)} offset:{16*(k&1)}")
A(f"""
v_lshrrev_b32 v32, 26, v4
v_lshrrev_b32 v33, 26, v5
v_and_b32 v4, 127, v4
v_and_b32 v5, 127, v5
v_lshl_or_b32 v32, v32, 8, v4
v_lshl_or_b32 v33, v33, 8, v5
s_mul_i32 s80, s3, 6
s_min_u32 s56, s3, 1
s_lshl1_add_u32 s80, s56, s80
s_lshl_b32 s56, s80, 2
v_min_u32 v34, 3, v0
v_lshl_add_u32 v34, v34, 3, s56
s_and_b32 s98, s98, 0x8007
s_waitcnt lgkmcnt(6)
v_readfirstlane_b32 s82, v43
s_cmp_lg_u32 s55, 0
s_cselect_b32 s82, 0, s82
s_cmp_lg_u32 s82, 1
s_cbranch_scc1 L_noring
""")
for p, idx in enumerate((8, 10, 12, 14)): gather(p, idx)
ts(13)
A(f"""
L_noring:
;@spot
s_mov_b64 exec, s[98:99]
ds_write_b64 v34, v[32:33] offset:{ROWI}
s_mov_b64 exec, -1
v_and_b32 v34, 31, v0
v_lshlrev_b32 v34, 5, v34
s_cmp_lg_u32 s3, 0
s_cbranch_scc1 L_noq3
v_readlane_b32 s56, v4, 15
v_readlane_b32 s57, v5, 15
v_mov_b32 v35, s56
s_mov_b32 exec_lo, 0
v_mov_b32 v35, s57
s_mov_b32 exec_lo, -1
v_mad_i32_i24 v35, v35, s60, v39
ds_read_b128 v[{Nn(4)}:{Nn(4)+3}], v35
ds_read_b128 v[{Dd(4)}:{Dd(4)+3}], v35 offset:16
L_noq3:
;@spot
ds_read_b128 v[{Nn(5)}:{Nn(5)+3}], v34 offset:{CB}
ds_read_b128 v[{Dd(5)}:{Dd(5)+3}], v34 offset:{CB+16}
ds_read_b128 v[{WA}:{WA+3}], v34 offset:{CW}
ds_read_b128 v[{WB}:{WB+3}], v34 offset:{CW+16}
v_and_b32 v35, 3, v0
v_lshlrev_b32 v35, 4, v35
v_mov_b32 v36, 0x3f80
v_mov_b32 v37, 0
v_lshlrev_b64 v[2:3], v35, v[36:37]
v_mov_b32 v43, 1
s_mov_b32 s60, 1.0
s_mov_b32 s61, 1.0
s_mov_b32 s56, {NLOG2E}
s_mov_b32 s57, {NLOG2E}
s_mov_b32 s71, 0
s_mov_b32 s83, 0
""")
srd(28, 16, 65536)
LATE = [Nn(4), Dd(4), Nn(5), Dd(5)]
initnd([r for r in ALLND if r not in LATE])
A(f"s_waitcnt lgkmcnt(2)\ns_mov_b64 exec, 1\nds_add_u32 v42, v43 offset:{C_Q}\ns_mov_b64 exec, -1")
ts(28); spot()
def qscale(r, a):
    b = (Nn(5), Dd(5))[a]
    A(f"v_pk_fma_f32 v[{r}:{r+1}], v[{r}:{r+1}], s[56:57], v[{b}:{b+1}]\nv_pk_fma_f32 v[{r+2}:{r+3}], v[{r+2}:{r+3}], s[56:57], v[{b+2}:{b+3}]")
for k in range(NS): qscale(Q(k), k & 1)
A(f"""
s_cmp_lg_u32 s3, 0
s_cbranch_scc1 L_noq3b
s_mov_b32 s58, {Q3P}
v_lshl_add_u32 v35, v0, 4, s58
""")
qscale(Nn(4), 0); qscale(Dd(4), 1)
A(f"""
ds_write_b128 v35, v[{Nn(4)}:{Nn(4)+3}]
ds_write_b128 v35, v[{Dd(4)}:{Dd(4)+3}] offset:1024
s_waitcnt lgkmcnt(0)
L_noq3b:
;@spot
""")
initnd(LATE)
A("s_cmp_eq_u32 s82, 1\ns_cbranch_scc1 L_ringd")
lds_spin(C_PFA, 57, "s_cmp_lg_u32 s57, 0", "L_pfseen", tmp=56)
A("L_pfseen:\ns_cmp_lg_u32 s57, 1\ns_cbranch_scc1 L_recover\ns_cmp_lg_u32 s55, 0\ns_cbranch_scc1 L_safe0")
for p, idx in enumerate((8, 10, 12, 14)): gather(p, idx)
ts(13)
A(f"""
L_ringd:
s_waitcnt lgkmcnt(0)
s_setprio {OPT['PRIO'][0]}
""")
ts(14); spot()
if TS: A("s_memtime s[100:101]\ns_waitcnt lgkmcnt(0)\nv_writelane_b32 v41, s100, 46")
SEL = "op_sel:[1,0,0] op_sel_hi:[1,1,1]"
TT = (8, 32)
def H1a(k, p):
    q = Q(k); a = k & 1; pr = 16 + 2*p; t = TT[a]; w = (WA, WB)[a]
    if a == 0 and p % 2 == 0: A("s_waitcnt lgkmcnt(1)")
    A(f"""
    v_pk_fma_f32 v[{t}:{t+1}], v[{pr}:{pr+1}], v[{w}:{w+1}], v[{q}:{q+1}] {SEL}
    v_pk_fma_f32 v[{t+2}:{t+3}], v[{pr}:{pr+1}], v[{w+2}:{w+3}], v[{q+2}:{q+3}] {SEL}
    """)
def H1b(k, p):
    a = k & 1; qd = 16 + 4*(p >> 1); pr = 16 + 2*p; rg = RING[p] + 2*a; t = TT[a]
    if a == 0: A(f"s_waitcnt vmcnt({R-1})\ns_sub_u32 s56, s56, 1")
    A(f"v_mfma_f32_4x4x4_16b_bf16 v[{t}:{t+3}], v[2:3], v[{rg}:{rg+1}], v[{t}:{t+3}]")
    if a == 1:
        gather(p, pr)
        if p % 2 == 1: A(f"ds_read_b128 v[{qd}:{qd+3}], v1 offset:{64+16*(p>>1)}")
        if p == 3: A("v_add_u32 v1, 32, v1")
def H2a(k):
    t = TT[k & 1]
    if OPT.get('NOV'): return
    A(f"v_exp_f32 v12, v{t}\nv_exp_f32 v13, v{t+1}")
def H2b(k):
    n, d = Nn(k), Dd(k); t = TT[k & 1]
    if OPT.get('NOV'): return
    A(f"""
    v_exp_f32 v14, v{t+2}
    v_exp_f32 v15, v{t+3}
    v_pk_fma_f32 v[{t}:{t+1}], v[{t}:{t+1}], v[{d}:{d+1}], v[{n}:{n+1}]
    v_pk_fma_f32 v[{t+2}:{t+3}], v[{t+2}:{t+3}], v[{d+2}:{d+3}], v[{n+2}:{n+3}]
    v_pk_fma_f32 v[{d}:{d+1}], v[{d}:{d+1}], v[12:13], v[{d}:{d+1}]
    v_pk_fma_f32 v[{n}:{n+1}], v[{n}:{n+1}], v[12:13], v[{t}:{t+1}]
    v_pk_fma_f32 v[{d+2}:{d+3}], v[{d+2}:{d+3}], v[14:15], v[{d+2}:{d+3}]
    v_pk_fma_f32 v[{n+2}:{n+3}], v[{n+2}:{n+3}], v[14:15], v[{t+2}:{t+3}]
    """)
def H2(k): H2a(k); H2b(k)
HK = OPT['HOOK']; PR = OPT['PRIO']
def wrap(p):
    A(f"""
    L_E3_{p}:
    s_mov_b32 s57, {p}
    """)
    if TS: A("s_memrealtime s[100:101]\ns_add_u32 s58, s71, 45\ns_min_u32 s58, s58, 63\ns_mov_b32 m0, s58\ns_waitcnt lgkmcnt(0)\nv_writelane_b32 v41, s100, m0")
    A(f"""
    s_cmp_eq_u32 s71, 3
    s_cbranch_scc1 L_wrap1
    s_setprio {PR[2]}
    s_cmp_eq_u32 s71, 6
    s_cbranch_scc1 L_E0_{p}
    s_setprio {PR[3]}
    s_cmp_eq_u32 s71, 9
    s_cbranch_scc1 L_E0_{p}
    s_mov_b32 exec_hi, 0
    s_cmp_eq_u32 s71, 12
    s_cbranch_scc1 L_E0_{p}
    s_cmp_eq_u32 s71, 18
    s_cbranch_scc1 L_E0_{p}
    s_mov_b32 exec_hi, -1
    s_cmp_lg_u32 s3, s83
    s_cbranch_scc1 L_flush
    s_branch L_rs{p}
    """)
    spot(True)
for p in range(4):
    for q in range(3):
        if q > 0:
            A(f"L_T{q-1}_{p}:"); H2(2*q-1)
        A(f"L_E{q}_{p}:")
        if q == HK: A(f"s_mov_b32 s57, {p}\ns_cmp_eq_u32 s71, {3+HK}\ns_cbranch_scc1 L_hk1\nL_H_{p}:")
        if len(PR) > 4 and q == OPT.get('LQ', 2): A(f"s_cmp_lt_u32 s71, 9\ns_cbranch_scc1 L_np{p}\ns_setprio {PR[4]}\nL_np{p}:")
        A(f"v_readlane_b32 s56, v{VN}, s71\ns_add_u32 s71, s71, 1\ns_sub_u32 s56, s56, 1\ns_cbranch_scc1 L_E{q+1}_{p}")
        H1a(2*q, p); H1a(2*q+1, p); H1b(2*q, p); H1b(2*q+1, p); H2(2*q)
        A(f"s_cbranch_scc0 L_B{q}_{(p+1)&3}\ns_branch L_T{q}_{(p+1)&3}")
        spot(True)
    A(f"L_T2_{p}:"); H2(5)
    wrap(p)
for q in range(3):
    for p in range(4):
        A(f"L_B{q}_{p}:")
        H1a(2*q, p); H1b(2*q, p); H2(2*q+1); H1a(2*q+1, p); H2a(2*q); H1b(2*q+1, p); H2b(2*q)
        A(f"s_cbranch_scc1 L_T{q}_{(p+1)&3}")
    A(f"s_branch L_B{q}_0")
    spot(True)
A(f"""
L_hk1:
s_mov_b64 exec, 1
v_mov_b32 v43, 1
s_waitcnt vmcnt(0)
ds_add_u32 v42, v43 offset:{C_W2}
s_mov_b64 exec, -1
""")
ts(27)
for p in range(4): A(f"s_cmp_eq_u32 s57, {p}\ns_cbranch_scc1 L_H_{p}")
A(f"""
s_branch L_safe
L_wrap1:
s_setprio {PR[1]}
L_wrap1b:
""")
ts(26); spot()
A(f"""
v_lshrrev_b32 v37, 4, v0
v_lshlrev_b32 v38, 2, v37
v_and_b32 v39, 15, v0
v_xor_b32 v38, v38, v39
v_lshlrev_b32 v38, 4, v38
v_lshl_add_u32 v38, v37, 8, v38
""")
lds_spin(C_Q, 60, "s_cmp_ge_u32 s60, 16", "L_qrd")
A(f"L_qrd:\ns_lshl_b32 s58, s3, 12\ns_add_u32 m0, s58, {QB}")
for i in range(4): A(f"buffer_load_dwordx4 v38, s[28:31], s58 offen offset:{1024*i} lds")
for p in range(4): A(f"s_cmp_eq_u32 s57, {p}\ns_cbranch_scc1 L_E0_{p}")
A("s_branch L_hk1")
spot(True)
for p in range(4):
    A(f"""
    L_rs{p}:
    v_readfirstlane_b32 s58, v1
    s_add_u32 s58, s58, {HL}
    s_mov_b32 exec_lo, 0
    v_mov_b32 v1, s58
    s_mov_b32 exec_lo, -1
    ds_read_b128 v[16:19], v1 offset:{32 if p < 2 else 64}
    ds_read_b128 v[20:23], v1 offset:48
    s_mov_b32 s81, {p}
    ds_read2_b32 v[36:37], v1 offset0:{2*p} offset1:{2*p+2}
    ds_read2_b32 v[38:39], v1 offset0:{2*p+4} offset1:{2*p+6}
    s_waitcnt lgkmcnt(0)
    """)
    for i in range(4): gather((p+i) & 3, 36+i)
    if p < 3: A("s_branch L_flush")
A("L_flush:\ns_waitcnt lgkmcnt(0)")
ts(15); spot()
if TS: A("s_memtime s[100:101]\ns_waitcnt lgkmcnt(0)\nv_writelane_b32 v41, s100, 47")
A(f"""
v_lshrrev_b32 v36, 5, v0
v_add_u32 v36, s80, v36
v_mul_u32_u24 v36, {HROW}, v36
v_bfe_u32 v37, v0, 2, 3
v_lshl_add_u32 v36, v37, 6, v36
v_and_b32 v37, 3, v0
v_lshl_add_u32 v36, v37, 3, v36
v_add_u32 v36, {HSB}, v36
s_cmp_lg_u32 s83, 0
s_cbranch_scc1 L_flush2
""")
def guard(ks, ok):
    for k in ks:
        if k == ks[0]: A(f"v_pk_mul_f32 v[32:33], v[{Nn(k)}:{Nn(k)+1}], v[{Dd(k)}:{Dd(k)+1}]\nv_pk_mul_f32 v[34:35], v[{Nn(k)+2}:{Nn(k)+3}], v[{Dd(k)+2}:{Dd(k)+3}]")
        else: A(f"v_pk_fma_f32 v[32:33], v[{Nn(k)}:{Nn(k)+1}], v[{Dd(k)}:{Dd(k)+1}], v[32:33]\nv_pk_fma_f32 v[34:35], v[{Nn(k)+2}:{Nn(k)+3}], v[{Dd(k)+2}:{Dd(k)+3}], v[34:35]")
    A(f"""
    v_pk_add_f32 v[32:33], v[32:33], v[34:35]
    v_add_f32 v32, v32, v33
    v_mov_b32 v33, 0x207
    v_cmp_class_f32 vcc, v32, v33
    s_cmp_lg_u32 s55, 0
    s_cbranch_scc1 {ok}
    """)
    if OPT['FORCE_GUARD'] == 1 and len(ks) > 2: A("s_bitcmp0_b32 s3, 0\ns_cbranch_scc1 L_safe")
    if OPT['FORCE_GUARD'] == 2 and len(ks) == 2: A("s_branch L_safe")
    A(f"s_cbranch_vccnz L_safe\n{ok}:")
def hout(k, off):
    spot()
    n, d = Nn(k), Dd(k); o = 8 + 2*(k & 1)
    for i in range(4): A(f"v_rcp_f32 v{d+i}, v{d+i}")
    A(f"""
    v_pk_mul_f32 v[{n}:{n+1}], v[{n}:{n+1}], v[{d}:{d+1}]
    v_pk_mul_f32 v[{n+2}:{n+3}], v[{n+2}:{n+3}], v[{d+2}:{d+3}]
    v_cvt_pk_bf16_f32 v{o}, v{n}, v{n+1}
    v_cvt_pk_bf16_f32 v{o+1}, v{n+2}, v{n+3}
    ds_write_b64 v36, v[{o}:{o+1}] offset:{off}
    """)
guard(list(range(NS)), "L_fl2")
spot()
for k in range(NS): hout(k, 2*HROW*(k >> 1) + 32*(k & 1))
A(f"""
s_cmp_lg_u32 s3, 0
s_cbranch_scc1 L_fl3
s_mov_b32 s58, {Q3P}
v_lshl_add_u32 v37, v0, 4, s58
ds_read_b128 v[{Q(0)}:{Q(0)+3}], v37
ds_read_b128 v[{Q(1)}:{Q(1)+3}], v37 offset:1024
s_mov_b32 s60, 1.0
s_mov_b32 s61, 1.0
s_mov_b32 s83, 1
""")
initnd([Nn(0), Dd(0), Nn(1), Dd(1)])
A("s_waitcnt lgkmcnt(0)\ns_cmp_lg_u32 s55, 0\ns_cbranch_scc1 L_safe")
for p in range(3): A(f"s_cmp_eq_u32 s81, {p}\ns_cbranch_scc1 L_E0_{p}")
A("s_branch L_E0_3")
spot(True)
A("L_flush2:")
guard([0, 1], "L_fl2b")
for k in range(2): hout(k, 2*HROW*3 + 32*k)
A("L_fl3:")
ts(16); spot()
A(f"""
s_and_b32 s60, s3, 3
s_lshr_b32 s61, s3, 2
s_lshl_b32 s59, s61, 2
v_mov_b32 v2, s59
v_mov_b32 v3, 1
s_waitcnt lgkmcnt(0)
s_mov_b64 exec, 1
ds_add_u32 v2, v3 offset:{C_G}
s_mov_b64 exec, -1
v_lshrrev_b32 v4, 4, v0
v_and_b32 v5, 15, v0
s_lshl_b32 s56, s60, 6
v_lshl_add_u32 v6, v4, 4, s56
global_load_dwordx4 v[124:127], v6, s[18:19]
v_bfe_u32 v7, v0, 2, 2
v_lshl_add_u32 v1, v4, 3, v7
v_lshlrev_b32 v1, 8, v1
v_xor_b32 v7, s60, v7
v_lshl_add_u32 v1, v7, 6, v1
v_and_b32 v7, 3, v0
v_lshl_add_u32 v1, v7, 4, v1
""")
lds_spin(C_W2, 57, "s_cmp_ge_u32 s57, 16", "L_w2ok")
A("L_w2ok:\ns_waitcnt vmcnt(1)")
spot()
for s in range(8):
    for a in range(2):
        for hf in range(2):
            r = 44 + a*32 + s*4 + hf*2
            A(f"ds_read_b64_tr_b16 v[{r}:{r+1}], v1 offset:{QB+8192*s+1024*hf+8*a}")
A(f"""
s_mul_i32 s56, s61, 24
s_min_u32 s57, s61, 1
s_lshl1_add_u32 s56, s57, s56
v_add_u32 v5, s56, v5
v_lshlrev_b32 v3, 2, v5
v_mul_u32_u24 v1, {HROW}, v5
v_lshl_add_u32 v1, v4, 4, v1
v_add_u32 v1, {HSB}, v1
s_mov_b32 s32, s20
s_mov_b32 s33, s21
s_add_u32 s34, s51, s52
s_lshl_b32 s34, s34, 8
s_mov_b32 s35, 0x00020000
s_add_u32 s59, s51, 127
s_lshl_b32 s59, s59, 8
v_add_u32 v6, s59, v6
s_cmp_eq_u32 s61, 0
s_mov_b32 s96, 0x00ff00ff
s_cselect_b32 s96, 0x03ff03ff, s96
s_mov_b32 s97, s96
s_movk_i32 s59, -256
s_mov_b32 s56, {NLN2}
""")
ts(17); spot()
lds_spin(C_G, 57, "s_cmp_ge_u32 s57, 4", "L_gok", av=2)
A("L_gok:")
ts(18)
spot()
A(f"ds_read_b32 v42, v3 offset:{ROWI}\nds_read_b32 v43, v3 offset:{ROWI+64}")
BB = (108, 8)
def rd(qg):
    for t in range(2):
        for h in range(2):
            r = BB[qg & 1] + 8*t + 4*h
            A(f"ds_read_b128 v[{r}:{r+3}], v1 offset:{16*HROW*t + 64*(2*qg+h)}")
rd(0)
for qg in range(4):
    spot()
    if qg < 3: rd(qg+1); A(f"s_waitcnt lgkmcnt(4)")
    else: A("s_waitcnt lgkmcnt(0)")
    for h in range(2):
        s = 2*qg + h
        for t in range(2):
            for a in range(2):
                c = 24 + 8*t + 4*a; ar = 44 + a*32 + s*4; br = BB[qg & 1] + 8*t + 4*h
                A(f"v_mfma_f32_16x16x32_bf16 v[{c}:{c+3}], v[{ar}:{ar+3}], v[{br}:{br+3}], " + ("0" if s == 0 else f"v[{c}:{c+3}]"))
    if qg == 0:
        for t in range(2):
            A(f"v_and_b32 v{4+t}, 127, v{42+t}\nv_lshrrev_b32 v{42+t}, 8, v{42+t}\nv_mad_i32_i24 v{4+t}, v{4+t}, s59, v6\nv_cvt_f32_u32 v{42+t}, v{42+t}")
spot()
A("s_waitcnt vmcnt(0)")
for i in range(4):
    A(f"v_lshlrev_b32 v{44+2*i}, 16, v{124+i}\nv_and_b32 v{45+2*i}, s26, v{124+i}")
for t in range(2):
    for i in range(8): A(f"v_mul_f32 v{52+8*t+i}, v{42+t}, v{44+i}")
for t in range(2):
    c = 24 + 8*t
    for i in range(8): A(f"v_fma_f32 v{c+i}, v{c+i}, s56, v{52+8*t+i}")
    for i in range(4): A(f"v_cvt_pk_bf16_f32 v{68+4*t+i}, v{c+2*i}, v{c+2*i+1}")
    if t == 1: A("s_mov_b64 exec, s[96:97]")
    A(f"buffer_store_dwordx4 v[{68+4*t}:{71+4*t}], v{4+t}, s[32:35], 0 offen {OPT.get('OSC', '').replace('+', ' ')}")
A("L_fin:")
if TS:
    A("s_mov_b64 exec, -1\ns_waitcnt vmcnt(0)")
    ts(19)
    A(f"""
    s_lshl_b32 s56, s2, 4
    s_add_u32 s56, s56, s3
    s_lshl_b32 s56, s56, 8
    s_add_u32 s56, s56, {WS_TS}
    v_lshlrev_b32 v1, 2, v0
    buffer_store_dword v41, v1, s[44:47], s56 offen
    """)
    if 'DIAG' in OPT:
        A(f"s_cmp_lg_u32 s3, {OPT.get('DW', 0)}\ns_cbranch_scc1 L_end\nv_readlane_b32 s56, v41, 0")
        if OPT['DIAG'] >= 100: A(f"s_mov_b32 s57, {OPT['DIAG']*100}")
        else: A(f"v_readlane_b32 s57, v41, {OPT['DIAG']}\ns_sub_u32 s57, s57, s56\ns_mul_i32 s57, s57, {OPT.get('DMUL', 10)}\ns_min_u32 s57, s57, 200000")
        A("""
        L_diag:
        s_sleep 4
        s_memrealtime s[100:101]
        s_waitcnt lgkmcnt(0)
        s_sub_u32 s58, s100, s56
        s_cmp_lt_u32 s58, s57
        s_cbranch_scc1 L_diag
        """)
A("L_end:\ns_endpgm")
A(";@cold")
A(f"""
L_fill2:
v_readlane_b32 s61, v10, 63
v_add_u32 v9, 64, v0
v_min_u32 v9, s56, v9
v_lshl_add_u32 v9, v9, 2, s57
v_add_u32 v13, 512, v13
v_max_u32 v11, s61, v11
""")
fill(11, 9, "0xffffffff")
A(f"""
s_mov_b64 exec, -1
s_branch L_filled
L_recover:
s_setprio 0
s_waitcnt vmcnt(0) lgkmcnt(0)
s_barrier
s_mov_b32 s54, 0
L_recov_step:
s_add_u32 s54, s54, 1
s_add_u32 s48, s2, s54
s_and_b32 s48, s48, 255
""")
bucket_range(48, 56, 49, 50)
A(f"""
s_cmp_lt_u32 s3, 8
s_cbranch_scc1 L_Gfirst
L_recovL:
s_barrier
L_recovG:
s_waitcnt vmcnt(0) lgkmcnt(0)
s_barrier
s_cmp_lt_u32 s54, 256
s_cbranch_scc1 L_recov_step
v_mov_b32 v43, 1
ds_write_b32 v42, v43 offset:{C_ABORT}
ds_write_b32 v42, v43 offset:{C_PFA}
v_mov_b32 v43, 0
ds_write_b32 v42, v43 offset:{C_W2}
ds_write_b32 v42, v43 offset:{C_Q}
""")
prep()
A(f"""
s_waitcnt lgkmcnt(0)
s_barrier
s_branch L_B4
L_safe0:
s_mov_b32 s57, 4
s_branch L_wrap1b
L_safe:
s_mov_b32 s55, 1
s_setprio 0
s_mov_b32 s60, 1.0
s_mov_b32 s61, 1.0
s_mul_i32 s73, s83, 6
s_add_u32 s73, s73, s80
s_lshl_b32 s73, s73, 2
v_lshl_add_u32 v23, v0, 2, s73
s_waitcnt vmcnt(0) lgkmcnt(0)
ds_read_b32 v22, v23 offset:{ROWI}
""")
initnd(ALLND)
srd(28, 10, E*4); srd(32, 8, E*4); srd(36, 6, E*2)
A(f"""
v_lshlrev_b32 v16, 2, v0
v_lshlrev_b32 v17, 1, v0
v_and_b32 v24, 31, v0
v_lshlrev_b32 v24, 4, v24
s_mov_b32 s72, 0
s_movk_i32 s74, {N-1}
s_waitcnt lgkmcnt(0)
v_and_b32 v22, 127, v22
v_sub_u32 v25, 127, v22
""")
for i in range(6): A(f"v_readlane_b32 s{64+i}, v25, {i}")
A("s_cmp_eq_u32 s83, 0\ns_cbranch_scc1 L_sloop")
for i in range(2, 6): A(f"s_mov_b32 s{64+i}, -1")
A(f"""
L_sloop:
s_lshl_b32 s56, s72, 1
buffer_load_dword v18, v16, s[28:31], s56 offen
buffer_load_dword v19, v16, s[32:35], s56 offen
buffer_load_ushort v20, v17, s[36:39], s72 offen
s_waitcnt vmcnt(0)
v_min_u32 v18, s74, v18
v_subrev_u32 v21, s51, v18
v_cmp_gt_u32 s[96:97], s52, v21
s_cmp_eq_u64 s[96:97], 0
s_cbranch_scc1 L_snext
v_mov_b32 v25, 6
""")
for i in range(6): A(f"v_cmp_eq_u32 vcc, s{64+i}, v21\nv_cndmask_b32 v25, v25, {i}, vcc")
A(f"""
v_cmp_gt_u32 vcc, 6, v25
s_and_b64 s[96:97], s[96:97], vcc
L_sbit:
s_mov_b64 exec, -1
s_cmp_eq_u64 s[96:97], 0
s_cbranch_scc1 L_snext
s_ff1_i32_b64 s56, s[96:97]
s_bitset0_b64 s[96:97], s56
v_readlane_b32 s57, v19, s56
v_readlane_b32 s58, v20, s56
v_readlane_b32 s60, v25, s56
s_min_u32 s57, s57, s74
s_lshl_b32 s57, s57, 9
s_add_u32 s57, s57, {PB0}
s_lshl_b32 s58, s58, 16
s_mov_b32 s59, s58
buffer_load_dwordx4 v[28:31], v24, s[44:47], s57 offen sc1
s_lshl_b64 exec, 1, s60
v_add_u32 v22, 0x100, v22
s_bitcmp1_b32 s60, 0
s_cselect_b32 exec_lo, 0, -1
s_cselect_b32 exec_hi, -1, 0
s_lshr_b32 s60, s60, 1
s_waitcnt vmcnt(0)
""")
for qq in range(3):
    if qq < 2: A(f"s_cmp_lg_u32 s60, {qq}\ns_cbranch_scc1 L_sk{qq+1}")
    for a in range(2):
        k = 2*qq + a; q, n = Q(k), Nn(k); w = (WA, WB)[a]
        A(f"""
        v_pk_fma_f32 v[8:9], s[58:59], v[{w}:{w+1}], v[{q}:{q+1}]
        v_pk_fma_f32 v[10:11], s[58:59], v[{w+2}:{w+3}], v[{q+2}:{q+3}]
        v_mfma_f32_4x4x4_16b_bf16 v[8:11], v[2:3], v[{28+2*a}:{29+2*a}], v[8:11]
        v_exp_f32 v12, v8
        v_exp_f32 v13, v9
        v_exp_f32 v14, v10
        v_exp_f32 v15, v11
        v_pk_add_f32 v[12:13], v[12:13], 1.0 op_sel_hi:[1,0]
        v_pk_add_f32 v[14:15], v[14:15], 1.0 op_sel_hi:[1,0]
        v_rcp_f32 v12, v12
        v_rcp_f32 v13, v13
        v_rcp_f32 v14, v14
        v_rcp_f32 v15, v15
        v_pk_fma_f32 v[{n}:{n+1}], v[8:9], v[12:13], v[{n}:{n+1}]
        v_pk_fma_f32 v[{n+2}:{n+3}], v[10:11], v[14:15], v[{n+2}:{n+3}]
        """)
    A("s_branch L_sbit")
    if qq < 2: A(f"L_sk{qq+1}:")
A(f"""
L_snext:
s_add_u32 s72, s72, 128
s_cmp_lt_u32 s72, {2*E}
s_cbranch_scc1 L_sloop
s_cmp_eq_u32 s83, 0
s_cselect_b32 exec_lo, 63, 3
s_mov_b32 exec_hi, 0
ds_write_b32 v23, v22 offset:{ROWI}
s_mov_b64 exec, -1
L_last:
s_branch L_flush
""")

KAL = OPT.get('KAL', 12)
body, npad = pad(L, verbose=bool(OPT.get('V')))
hdr = open('standalone__edge_featured_mpnn_mpnn__graph.s.ref').read().split('; Override')[0]
def emit(body):
    out = hdr + f"; @launch grid=(256,1,1) block=(1024,1,1) lds={LDS}\n"
    out += f'.amdgcn_target "amdgcn-amd-amdhsa--gfx950"\n.text\n.globl {KN}\n.p2align {KAL}\n.type {KN},@function\n'
    out += "\n".join(body) + "\n"
    out += f""".section .rodata,"a"
.p2align 6
.amdhsa_kernel {KN}
  .amdhsa_next_free_vgpr 128
  .amdhsa_next_free_sgpr 102
  .amdhsa_accum_offset 128
  .amdhsa_group_segment_fixed_size 0
  .amdhsa_kernarg_size 88
  .amdhsa_user_sgpr_count 2
  .amdhsa_user_sgpr_kernarg_segment_ptr 1
  .amdhsa_system_sgpr_workgroup_id_x 1
.end_amdhsa_kernel
"""
    return out
import subprocess, re
def offsets(body):
    t = []; k = 0
    for b in body:
        if b.startswith(';@'): t.append(f"M_{k}:"); k += 1
        else: t.append(b)
    open('_m.s', 'w').write(emit(t))
    subprocess.run(["clang", "-x", "assembler", "-target", "amdgcn-amd-amdhsa", "-mcpu=gfx950", "-c", "_m.s", "-o", "_m.o"], check=True)
    o = subprocess.run(["llvm-objdump", "-t", "_m.o"], capture_output=True, text=True).stdout
    d = {int(m.group(2)): int(m.group(1), 16) for m in re.finditer(r"^([0-9a-f]+) .* M_(\d+)$", o, re.M)}
    return [d[i] for i in range(k)]
nb = []
for i, b in enumerate(body):
    nb.append(b)
    if b.strip().startswith('s_branch') and i+1 < len(body) and body[i+1].endswith(':'): nb.append(';@dead')
body = nb
def place(body, chosen, chains):
    out = []; k = 0
    for b in body:
        if not b.startswith(';@'): out.append(b); continue
        out.append(b)
        if k in chosen:
            n = chosen[k]
            out.append(f"L_stub{n}:"); out.append(f"    {'s_branch' if b == ';@dead' else 's_cbranch_execz'} {chains[n]}")
        if b in (';@hopB', ';@hopW') and chosen:
            ws = {';@hopB': range(8, 15), ';@hopW': (15,)}[b]
            if any(w in first for w in ws): out.append("    s_mov_b64 exec, 0")
            for w in ws:
                if w in first:
                    if b == ';@hopW': out.append(f"    s_branch L_stub{first[w]}")
                    else: out.append(f"    s_cmp_eq_u32 s3, {w}"); out.append(f"    s_cbranch_scc1 L_stub{first[w]}")
        k += 1
    return out
if OPT.get('WARM', 1):
    marks = [b for b in body if b.startswith(';@')]
    chosen = {}; chains = {}; first = {}
    COV = OPT.get('COV', 1024)
    for it in range(6):
        off = offsets(place(body, chosen, chains))
        g0 = off[marks.index(';@g0')]; g1 = off[marks.index(';@g1')]; b0 = off[marks.index(';@hopB')]
        sel = []; gap = 0
        for lo, hi, forced in ((b0, g0 - 64, 0), (g0 - 64, off[marks.index(';@cold')], 1)):
            cand = [k for k, m in enumerate(marks) if m in (';@spot', ';@dead') and lo <= off[k] < hi and m != ';@hopB']
            end = min((lo & ~127) + COV, (lo | 4095) + 1)
            if forced: sel.append(cand[0]); end = min((off[cand[0]] & ~127) + COV + 128, (off[cand[0]] | 4095) + 1)
            while end < hi:
                c = [k for k in cand if (off[k] & ~127) <= end and (not sel or off[k] > off[sel[-1]]) and (off[k] >> 12) == (end >> 12) and off[k] > end - 640]
                d = [k for k in c if marks[k] == ';@dead' and off[k] > end - 256]
                if d: k = d[-1]
                elif c: k = c[-1]
                else:
                    c = [k for k in cand if off[k] > end]
                    if not c: break
                    k = c[0]; gap += (off[k] & ~127) - end
                sel.append(k)
                end = min((off[k] & ~127) + COV + 128, (off[k] | 4095) + 1)
        new = {k: n for n, k in enumerate(sel)}
        per = {w: [] for w in range(8, 16)}; j = 0
        for n, k in enumerate(sel):
            if g0 - 64 <= off[k] < g1: per[15].append(n)
            else: per[8 + j % 7].append(n); j += 1
        first = {w: v[0] for w, v in per.items() if v}
        chains = {}
        for w, v in per.items():
            back = 'L_W15cont' if w == 15 else 'L_Bback'
            for i, n in enumerate(v): chains[n] = f"L_stub{v[i+1]}" if i+1 < len(v) else back
        if new == chosen: break
        chosen = new
    print("stubs", len(sel), "gap", gap, [hex(off[k]) + marks[k][2] for k in sel], hex(b0), hex(g0), hex(g1), hex(hi), file=sys.stderr)
    body = place(body, chosen, chains)
body = [b for b in body if not b.startswith(';@')]
open(OPT.get('OUT', 'k.s'), 'w').write(emit(body))
print("pads", npad, "lines", len(body), file=sys.stderr)
```

```python
import sys, os, struct
sys.path.insert(0, os.path.dirname(os.path.abspath(__file__)))
from asmlib import *

OPT = dict(TS=0, FORCE_SAFE=0, FORCE_RECOV=0, FORCE_GUARD=0, POLLMAX=6000, SLP=8, NT=1, PDELAY=8, LPRIO=2, PUBT=3, HOOK=1, EP=7, WBM=6,
           PRIO='3210')
for a in sys.argv[1:]:
    k, v = a.split('=')
    OPT[k] = int(v) if v.lstrip('-').isdigit() and k not in ('PRIO', 'GPRIO') else v
TS = OPT['TS']; POLLMAX = OPT['POLLMAX']; SLP = OPT['SLP']
SC = 'sc1'
KN = "standalone__edge_featured_mpnn_mpnn__graph_kernel"

def f32(x): return "0x%08x" % struct.unpack('<I', struct.pack('<f', x))[0]
NLOG2E = f32(-1.4426950408889634); NLN2 = f32(-0.6931471805599453)

N = 25000; E = 400000; CH = 1564
PB0 = 512
WS_REC = 0xD00000; REC_STRIDE = 12544; WS_OFF = 0x1040000; WS_PF = 0x1080000; WS_TS = 0x1500000; WS_SIZE = 0x2000000
QBLK = 14336; QROW = 144
CTR = 0; KEY = 256; SORT = 768; ROWI = 1280; CW = 2048; CB = 3072; QB = 4096
STG = QB + 8*QBLK; CNT = STG + 12544; START = CNT + 1024; XB = START + 1024; LDS = 163840
NL = STG; NCAP = 46; WL = NL + 98*NCAP*4; HL = 768; LW = 2*HL; Q3P = LDS - 2048
assert XB % 256 == 0 and XB + 28672 <= LDS and WL + 16*LW + 64 <= Q3P and WL % 16 == 0
C_REC, C_PA, C_GO, C_ABORT, C_W2, C_Q, C_PFA, C_X, C_S2, C_S3, C_WB = 0, 4, 8, 12, 16, 20, 28, 32, 40, 44, 48
TAIL7 = XB + 25600
TGT = 64
C_G = 192
C_SLOT = 60
ROT = 0; WB0 = OPT.get('BASE', 238) << 20; PB0 += WB0; WS_REC += WB0; WS_OFF += WB0; WS_PF += WB0; assert WS_PF + 16384 <= 1 << 28 and WB0 + 32768*512 + 2048 <= 1 << 28; DBK = OPT.get('DBK', 4); DP = 's[0:1]'
EP = OPT['EP']; WBM = OPT['WBM']; assert OPT['PUBT'] >= 6 - EP and STG + 7*2048 <= XB
RA = lambda r: f's_add_u32 s{r}, s{r}, s70' if ROT else ''
HSB = QB + 65536; HROW = 528
assert HSB + 106*HROW <= WL
R = 4; NS = 6
SB0 = 56
def Q(k): return SB0 + 12*k
def Nn(k): return SB0 + 12*k + 4
def Dd(k): return SB0 + 12*k + 8
RING = (24, 28, 44, 48); WA = 4; WB = 52; VN = 40
SPIN = 0x100000
BIAS = 128
ASG = [[28, 34, 46, 48], [1, 29, 45], [10, 19, 37], [3, 24, 42], [0, 39, 47], [9, 25, 32], [2, 23, 44], [4, 20, 43], [8, 26, 30], [6, 21, 40], [5, 31, 33], [11, 18, 38], [12, 15, 36], [7, 16, 41], [13, 17, 35], [14, 22, 27]]
assert sorted(sum(ASG, [])) == list(range(49))

L = []
def A(s):
    for line in s.strip('\n').split('\n'):
        line = line.strip()
        if not line: continue
        L.append(line if line.endswith(':') or line.startswith(('.', ';')) else "    " + line)
def srd(r, lo, size, w3="0x00020000"):
    A(f"s_mov_b32 s{r}, s{lo}\ns_mov_b32 s{r+1}, s{lo+1}\ns_mov_b32 s{r+2}, {size}\ns_mov_b32 s{r+3}, {w3}")
def ts(i):
    if TS: A(f"s_memrealtime s[100:101]\ns_waitcnt lgkmcnt(0)\nv_writelane_b32 v41, s100, {i}")
def bar(): A("s_barrier")
def spot(dead=False): A(";@dead" if dead else ";@spot")
uid = [0]
def lab(p):
    uid[0] += 1; return f"L_{p}_{uid[0]}"
def dpp(op, v, ctl, m="row_mask:0xf bank_mask:0xf bound_ctrl:0"):
    A(f"{op}_dpp v{v}, v{v}, v{v} {ctl} {m}")
def dpp_add(v, ctl, m="row_mask:0xf bank_mask:0xf bound_ctrl:0"): dpp("v_add_u32", v, ctl, m)
def bucket_range(cur, b, n0, n1):
    A(f"""
    s_and_b32 s{b}, s{cur}, 7
    s_lshl_b32 s{b}, s{b}, 5
    s_lshr_b32 s27, s{cur}, 3
    s_or_b32 s{b}, s{b}, s27
    s_mul_i32 s{n0}, s{b}, 6400845
    s_add_u32 s{n0}, s{n0}, 65535
    s_add_u32 s{n1}, s{n0}, 6400845
    s_lshr_b32 s{n0}, s{n0}, 16
    s_lshr_b32 s{n1}, s{n1}, 16
    s_min_u32 s{n1}, s{n1}, {N}
    """)
def lds_or(off, val):
    A(f"v_mov_b32 v43, {val}\nds_or_b32 v42, v43 offset:{off}")
def lds_spin(off, dst, cmp_ok, ok, tmp=58, slp=1, av=42):
    l = lab('spin')
    A(f"""
    s_mov_b32 s{tmp}, 0
    {l}:
    ds_read_b32 v43, v{av} offset:{off}
    s_add_u32 s{tmp}, s{tmp}, 1
    s_waitcnt lgkmcnt(0)
    v_readfirstlane_b32 s{dst}, v43
    {cmp_ok}
    s_cbranch_scc1 {ok}
    s_sleep {slp}
    s_cmp_lt_u32 s{tmp}, {SPIN}
    s_cbranch_scc1 {l}
    """)
def lsync(off, tmp=60):
    l = lab('ls'); ok = lab('lsok')
    A(f"""
    s_mov_b64 exec, 1
    ds_add_u32 v42, v10 offset:{off}
    s_mov_b64 exec, -1
    s_mov_b32 s{tmp}, 0
    {l}:
    ds_read_b32 v43, v42 offset:{off}
    s_add_u32 s{tmp}, s{tmp}, 1
    s_waitcnt lgkmcnt(0)
    v_readfirstlane_b32 s{tmp+1}, v43
    s_cmp_ge_u32 s{tmp+1}, 7
    s_cbranch_scc1 {ok}
    s_cmp_lt_u32 s{tmp}, {SPIN}
    s_cbranch_scc1 {l}
    {ok}:
    """)
NT = 'nt' if OPT['NT'] else ''
def caddr(v, t, s, rot=True):
    A(f"""
    v_lshrrev_b32 v{v}, 3, v0
    v_lshlrev_b32 v{v}, 13, v{v}
    v_and_b32 v{t}, 7, v0
    v_lshl_add_u32 v{v}, v{t}, 7, v{v}
    v_lshlrev_b32 v{t}, 2, v0
    s_and_b32 s{s}, s2, 7
    s_lshl_b32 s{s}, s{s}, 10
    s_add_u32 s{s}, s{s}, {WS_PF}
    {RA(s) if rot else ''}
    """)
def signal(ty, v, one, s):
    A(f"""
    s_mov_b64 exec, 0xff
    v_lshlrev_b32 v{v}, 10, v0
    v_mov_b32 v{one}, 1
    s_lshl_b32 s{s}, s2, 4
    s_and_b32 s{s}, s{s}, 0x380
    s_add_u32 s{s}, s{s}, {WS_PF + 8192*ty}
    {RA(s)}
    buffer_atomic_add v{one}, v{v}, s[44:47], s{s} offen sc1
    """)
    if ty == 1: A(f"s_mov_b64 exec, 1\nglobal_atomic_add v42, v{one}, {DP} sc1")
def snap():
    A(f"""
    v_lshrrev_b32 v27, 1, v0
    s_lshl_b32 s56, s62, 5
    v_add_u32 v27, s56, v27
    v_lshlrev_b32 v25, 10, v27
    s_lshl_b32 s98, s53, 2
    s_add_u32 s98, s98, {WS_OFF}
    """)
def initnd(regs):
    for k in range(NS):
        for r, val in ((Nn(k), "0"), (Dd(k), "s[60:61]")):
            if r in regs: A(f"v_mov_b64 v[{r}:{r+1}], {val}\nv_mov_b64 v[{r+2}:{r+3}], {val}")
ALLND = [r for k in range(NS) for r in (Nn(k), Dd(k))]
def prep():
    spot()
    A("s_mov_b32 s22, 0")
    for w in range(16):
        a = ASG[w] + [0]
        A(f"s_cmp_eq_u32 s3, {w}\ns_cselect_b32 s22, {hex(a[0] | a[1] << 8 | a[2] << 16 | a[3] << 24)}, s22")
    A(f"""
    ;@spot
    v_mul_u32_u24 v33, 43, v0
    v_lshrrev_b32 v33, 7, v33
    v_mul_u32_u24 v34, 24, v33
    v_lshlrev_b32 v32, 3, v0
    v_sub_u32 v32, v32, v34
    v_cmp_lt_u32 vcc, 14, v0
    v_cndmask_b32 v32, v32, 24, vcc
    v_bfe_u32 v32, s22, v32, 8
    v_lshlrev_b32 v32, 3, v32
    v_mad_u32_u24 v33, v33, 6, 8
    v_subrev_u32 v34, 6, v33
    v_min_u32 v33, 26, v33
    v_min_u32 v34, 26, v34
    s_mov_b32 s56, {(127*NCAP + BIAS)*8193}
    v_lshl_add_u32 v35, v0, 26, s56
    v_lshrrev_b32 v43, 5, v0
    s_bfe_u32 s56, s22, 0x80000
    s_bfe_u32 s57, s22, 0x80008
    s_bfe_u32 s58, s22, 0x80010
    s_lshl_b32 s56, s56, 3
    s_lshl_b32 s57, s57, 3
    s_lshl_b32 s58, s58, 3
    v_lshl_add_u32 v36, v43, 2, s56
    v_lshl_add_u32 v37, v43, 2, s57
    v_lshl_add_u32 v38, v43, 2, s58
    ;@spot
    v_bfe_u32 v43, v0, 2, 3
    v_mul_u32_u24 v39, {QBLK}, v43
    v_and_b32 v43, 3, v0
    v_lshl_add_u32 v39, v43, 5, v39
    v_and_b32 v43, 4, v0
    v_lshl_add_u32 v39, v43, 2, v39
    v_and_b32 v43, 8, v0
    v_lshl_add_u32 v39, v43, 4, v39
    v_add_u32 v39, {QB + 127*QROW}, v39
    s_lshl_b32 s56, s3, 6
    v_and_b32 v40, 60, v0
    v_add_u32 v40, s56, v40
    """)

def gaddr():
    A(f"""
    v_lshrrev_b32 v7, 4, v0
    v_and_b32 v6, 15, v0
    v_xor_b32 v6, v6, v7
    s_and_b32 s61, s3, 3
    s_lshl_b32 s61, s61, 2
    v_xor_b32 v6, s61, v6
    v_lshlrev_b32 v6, 4, v6
    v_lshl_add_u32 v6, v7, 8, v6
    s_lshl_b32 s61, s3, 10
    s_add_u32 s64, s61, {XB}
    s_lshl_b32 s65, s49, 8
    s_add_u32 s65, s65, s61
    v_lshrrev_b32 v5, 2, v0
    v_lshlrev_b32 v5, 9, v5
    v_lshrrev_b32 v8, 5, v0
    v_lshlrev_b32 v8, 1, v8
    v_and_b32 v3, 3, v0
    v_xor_b32 v8, v8, v3
    v_lshl_add_u32 v5, v8, 4, v5
    s_lshl_b32 s56, s3, 6
    v_add_u32 v1, s56, v5
    s_mul_i32 s59, s3, {QBLK}
    s_add_u32 s59, s59, {QB}
    """)
def tailb(b, d):
    A(f"s_lshl_b32 s{d}, s{b}, 11\ns_add_u32 s{d}, s{d}, {STG}\ns_cmp_eq_u32 s{b}, 7\ns_cselect_b32 s{d}, {TAIL7}, s{d}")
def wdma(base, n=8, ldsoff=0, av=1, sb=59):
    A(f"s_add_u32 m0, s{sb}, {ldsoff}\ns_mov_b32 s56, {base}")
    for i in range(n):
        A(f"buffer_load_dwordx4 v{av}, s[28:31], s56 offen lds")
        if i < n-1: A("s_add_u32 m0, m0, 1024\ns_add_u32 s56, s56, 8192")
A(f"""
{KN}:
s_cmp_ge_u32 s2, 256
s_cbranch_scc1 L_end
s_load_dwordx16 s[4:19], s[0:1], 0
s_load_dwordx2 s[20:21], s[0:1], 64
s_load_dwordx2 s[24:25], s[0:1], 80
s_load_dwordx2 s[0:1], s[0:1], 72
v_lshrrev_b32 v1, 6, v0
v_and_b32 v0, 63, v0
v_readfirstlane_b32 s3, v1
v_mov_b32 v42, 0
v_mov_b32 v41, 0
s_cmp_lg_u32 s3, 15
s_cbranch_scc1 L_noinit
v_mov_b64 v[16:17], 0
v_mov_b64 v[18:19], 0
s_mov_b32 s56, {CNT}
v_lshl_add_u32 v2, v0, 4, s56
v_lshlrev_b32 v23, 2, v0
v_sub_u32 v20, 127, v0
v_sub_u32 v21, 63, v0
ds_write_b128 v2, v[16:19]
ds_write_b32 v23, v16
ds_write2st64_b32 v23, v20, v21 offset0:{KEY//256} offset1:{KEY//256+1}
L_noinit:
s_mov_b32 s26, 0xffff0000
s_mov_b32 s54, 0
s_mov_b32 s55, 0
s_mov_b32 s48, s2
""")
bucket_range(2, 53, 51, 52)
A("s_mov_b32 s49, s51\ns_mov_b32 s50, s52\ns_sub_u32 s52, s52, s51\ns_sub_u32 s62, s3, 8")
A(f"""
s_mov_b32 s31, 0x00020000
s_mov_b32 s35, 0x00020000
s_mov_b32 s38, {E*2}
s_mov_b32 s39, 0x00020000
s_mov_b32 s46, 0x10000000
s_mov_b32 s70, {WB0}
s_mov_b32 s47, 0x00020000
s_cmp_lt_u32 s3, 8
s_cbranch_scc1 L_Gfirst
s_lshl_b32 s56, s62, 6
v_add_u32 v1, s56, v0
s_mul_i32 s57, s2, {CH}
v_lshl_add_u32 v2, v1, 2, s57
v_lshlrev_b32 v3, 2, v2
v_lshlrev_b32 v4, 1, v2
s_mov_b32 s30, {E*4}
s_mov_b32 s34, {E*4}
s_cmp_eq_u32 s3, 15
s_cbranch_scc1 L_W15
s_waitcnt lgkmcnt(0)
s_mov_b32 s28, s10
s_mov_b32 s29, s11
s_mov_b32 s32, s8
s_mov_b32 s33, s9
s_mov_b32 s36, s6
s_mov_b32 s37, s7
buffer_load_dwordx4 v[44:47], v3, s[28:31], 0 offen {NT}
buffer_load_dwordx4 v[48:51], v3, s[32:35], 0 offen {NT}
buffer_load_dwordx2 v[52:53], v4, s[36:39], 0 offen {NT}
s_barrier
s_branch L_Lcont
L_W15:
""")
CPF = '''v_cmp_gt_u32 vcc, s58, v34
s_and_b64 exec, exec, vcc
s_cbranch_execz L_nocpf
global_load_dword v35, v34, s[56:57]
L_nocpf:
s_mov_b64 exec, 0xffff
''' if OPT.get('CPF', 1) else ''
SLOTC = (f's_bfe_u32 s70, s60, {hex(ROT | 3 << 16)}\ns_mul_i32 s70, s70, 0x1800000\n' if ROT < 32 else f's_mov_b32 s70, {ROT << 20}\n') + f'''v_mov_b32 v16, s70
ds_write_b32 v42, v16 offset:{C_SLOT}
s_add_u32 s23, s23, s70''' if ROT else ''
caddr(52, 23, 23, False)
if 0 < ROT < 32: A('s_memrealtime s[60:61]')
A(f"""
s_lshr_b32 s56, s2, 3
s_lshl_b32 s56, s56, 11
v_lshl_add_u32 v28, v0, 7, s56
v_add_u32 v29, 0x10000, v28
v_lshrrev_b32 v32, 3, v0
v_lshlrev_b32 v32, 6, v32
v_and_b32 v33, 1, v0
v_lshl_add_u32 v32, v33, 5, v32
v_bfe_u32 v33, v0, 1, 2
v_lshl_add_u32 v32, v33, 3, v32
v_add_u32 v33, 0x20000, v32
v_lshrrev_b32 v34, 1, v28
v_and_b32 v34, 0xffffff80, v34
s_getpc_b64 s[56:57]
L_pc:
s_mov_b32 s58, L_last-L_pc
s_waitcnt lgkmcnt(0)
{SLOTC}
s_mov_b32 s44, s24
s_mov_b32 s45, s25
s_mov_b64 exec, 0xffff
buffer_load_dword v53, v52, s[44:47], s23 offen sc1
{CPF}global_load_dword v30, v28, s[12:13]
global_load_dword v30, v29, s[12:13]
global_load_dword v31, v28, s[16:17]
s_mov_b64 exec, -1
global_load_dwordx2 v[36:37], v33, s[12:13]
global_load_dwordx2 v[38:39], v32, s[14:15]
{'s_waitcnt lgkmcnt(0)' if ROT else ''}
s_barrier
;@hopW
s_branch L_W15cont
L_Gfirst:
""")
gaddr()
A(f"""
s_mov_b32 s30, {257*512}
s_mov_b32 s34, {N*256}
s_waitcnt lgkmcnt(0)
s_mov_b32 s28, s12
s_mov_b32 s29, s13
s_mov_b32 s32, s4
s_mov_b32 s33, s5
""")
if OPT.get('GDP'): A(f"s_setprio {OPT['GDP']}")
ts(0)
bar()
ts(20)
WF = OPT.get('WF', 0)
if WF: wdma(0, WF)
if OPT.get('XD'): A(f"s_sleep {OPT['XD']}")
A("s_mov_b32 m0, s64")
for i in range(3): A(f"buffer_load_dwordx4 v6, s[32:35], s65 offen {NT} lds\ns_add_u32 m0, m0, 8192\ns_add_u32 s65, s65, 8192")
A(f"s_cmp_lg_u32 s3, 0\ns_cbranch_scc1 L_Gw\nbuffer_load_dwordx4 v6, s[32:35], s65 offen {NT} lds\nL_Gw:")
if WF < 8: wdma(8192*WF, 8-WF, 1024*WF)
A("s_branch L_Gcont")
def common():
    A(f"""
    s_mov_b32 s44, s24
    s_mov_b32 s45, s25
    s_mov_b32 s36, s6
    s_mov_b32 s37, s7
    s_mov_b32 s40, s24
    s_and_b32 s41, s25, 0xffff
    s_or_b32 s41, s41, 0x00100000
    s_mov_b32 s42, 64
    s_mov_b32 s43, 0x00800000
    """)
A(";@warm")
A(f"L_Lcont:\ns_mov_b64 exec, -1\ns_setprio {OPT['LPRIO']}\ns_mov_b32 s23, 0")
common()
ts(0)
ts(20)
DG = OPT.get('DG', 0)
if DG == 1: A("s_branch L_fin")
A(f"""
s_lshl_b32 s99, s2, 10
s_add_u32 s99, s99, {WS_OFF}
v_lshlrev_b32 v14, 4, v0
{f'ds_read_b32 v16, v42 offset:{C_SLOT}' if ROT else ''}
""")
snap()
A(f"""
v_cmp_gt_u32 vcc, {CH//4}, v1
v_mov_b32 v3, {E}
v_cmp_gt_u32 s[96:97], v3, v2
s_and_b64 s[96:97], s[96:97], vcc
v_mov_b32 v10, 1
s_movk_i32 s56, 2684
s_mov_b32 s57, {CNT}
s_movk_i32 s58, {N-1}
v_lshl_add_u32 v11, v0, 4, s57
""")
ts(22); spot()
A(f"s_waitcnt vmcnt(2)")
ts(1); spot()
A("s_mov_b64 exec, s[96:97]")
for i in range(4):
    A(f"""
    v_min_u32 v{44+i}, s58, v{44+i}
    v_mul_u32_u24 v{54+i}, s56, v{44+i}
    v_lshrrev_b32 v{54+i}, 18, v{54+i}
    v_lshl_add_u32 v{54+i}, v{54+i}, 2, s57
    ds_add_rtn_u32 v{58+i}, v{54+i}, v10
    """)
lsync(C_S2)
if ROT: A(f"v_readfirstlane_b32 s70, v16\n{RA(98)}\n{RA(99)}")
ts(2); spot()
SL = OPT.get('SL', 4)
assert CNT % 128 == 0
def slc(i):
    if SL >= 0: return f"v_bfe_u32 v62, v{48+i}, {SL}, 2"
    if SL == -1: return f"v_mul_u32_u24 v62, s56, v{48+i}\nv_lshrrev_b32 v62, 24, v62"
    return f"v_mul_u32_u24 v62, s56, v{48+i}\nv_lshrrev_b32 v62, 23, v62\nv_sub_u32 v62, v62, v{20+i}\nv_bfe_u32 v62, v62, 1, 2"
A(f"ds_read_b128 v[64:67], v11")
if SL == -2:
    for i in range(4): A(f"v_lshrrev_b32 v{20+i}, 7, v{54+i}\nv_add_u32 v{20+i}, {(-(CNT >> 7) + OPT.get('SLO', 0)) & 7}, v{20+i}")
A("s_waitcnt vmcnt(0)")
for i in range(4):
    A(f"""
    v_min_u32 v{48+i}, s58, v{48+i}
    v_and_b32 v{44+i}, 127, v{44+i}
    {slc(i)}
    v_mad_u32_u24 v62, v62, 6, 8
    v_lshl_or_b32 v{44+i}, v{44+i}, 7, v62
    """)
A(f"""
s_waitcnt lgkmcnt(0)
v_add_u32 v69, v64, v65
v_add_u32 v70, v69, v66
v_add_u32 v72, v70, v67
v_mov_b32 v73, v72
v_lshl_or_b32 v48, v52, 16, v48
v_and_or_b32 v49, v52, s26, v49
""")
dpp_add(73, "row_shr:1")
A("v_lshl_or_b32 v50, v53, 16, v50\nv_and_or_b32 v51, v53, s26, v51")
dpp_add(73, "row_shr:2"); dpp_add(73, "row_shr:4"); dpp_add(73, "row_shr:8")
dpp_add(73, "row_bcast:15", "row_mask:0xa bank_mask:0xf"); dpp_add(73, "row_bcast:31", "row_mask:0xc bank_mask:0xf")
A(f"""
;@spot
v_sub_u32 v76, v73, v72
v_add_u32 v77, v76, v64
v_add_u32 v78, v76, v69
v_add_u32 v79, v76, v70
ds_write_b128 v11, v[76:79] offset:{START-CNT}
s_mov_b64 exec, s[96:97]
""")
for i in range(4): A(f"ds_read_b32 v{54+i}, v{54+i} offset:{START-CNT}")
A(f"s_mov_b32 s57, {STG}")
for i in range(4): A(f"v_lshl_add_u32 v{58+i}, v{58+i}, 3, s57")
for i in range(4):
    A(f"""
    s_waitcnt lgkmcnt(3)
    v_lshl_add_u32 v{54+i}, v{54+i}, 3, v{58+i}
    ds_write2_b32 v{54+i}, v{48+i}, v{44+i} offset0:0 offset1:1
    """)
A(f"""
s_mov_b64 exec, -1
v_lshl_add_u32 v12, v1, 4, s57
v_lshlrev_b32 v13, 4, v1
s_mul_i32 s56, s2, {REC_STRIDE}
s_add_u32 s56, s56, {WS_REC}
{RA(56)}
s_add_u32 s57, s56, 7168
v_cmp_gt_u32 vcc, 334, v1
""")
lsync(C_S3)
ts(3); spot()
A(f"""
ds_read_b128 v[84:87], v12
ds_read_b128 v[88:91], v12 offset:7168
v_lshl_or_b32 v80, v64, 16, v76
v_lshl_or_b32 v81, v65, 16, v77
v_lshl_or_b32 v82, v66, 16, v78
v_lshl_or_b32 v83, v67, 16, v79
s_waitcnt lgkmcnt(1)
buffer_store_dwordx4 v[84:87], v13, s[44:47], s56 offen {SC}
s_cbranch_vccz L_nost2
s_mov_b64 exec, vcc
s_waitcnt lgkmcnt(0)
buffer_store_dwordx4 v[88:91], v13, s[44:47], s57 offen {SC}
s_branch L_st3
L_nost2:
buffer_store_dwordx4 v[80:83], v14, s[44:47], s99 offen {SC}
L_st3:
s_mov_b64 exec, 1
s_waitcnt vmcnt(0) lgkmcnt(0)
ds_add_rtn_u32 v15, v42, v10 offset:{C_REC}
s_mov_b64 exec, -1
s_waitcnt lgkmcnt(0)
v_readfirstlane_b32 s58, v15
s_cmp_lg_u32 s58, 6
s_cbranch_scc1 L_B0
""")
signal(0, 13, 14, 56)
A("s_branch L_B0")
spot(True)
TW = OPT.get('TW', 0)
TLBW = f'''v_lshlrev_b32 v30, {TW}, v0
s_lshl_b32 s56, s2, 9
s_add_u32 s56, s56, {WB0}
s_mov_b64 exec, {hex((1 << min(64, (16 << 20) >> TW)) - 1) if TW > 18 else -1}
buffer_load_dword v31, v30, s[44:47], s56 offen sc1''' if TW else ''
A(f"L_W15cont:\ns_mov_b64 exec, -1\nv_lshlrev_b32 v1, 4, v0\ns_mov_b32 s28, s10\ns_mov_b32 s29, s11\ns_mov_b32 s32, s8\ns_mov_b32 s33, s9")
common()
ts(0)
snap()
A(f"""
{RA(98)}
s_setprio {OPT['LPRIO']}
s_mov_b32 s56, {NLOG2E}
s_mov_b32 s57, {NLOG2E}
s_waitcnt vmcnt(0)
v_add_u32 v53, {33 if OPT.get('FORCE_LATE') else 32}, v53
v_lshlrev_b32 v4, 16, v36
v_and_b32 v5, s26, v36
v_lshlrev_b32 v6, 16, v37
v_and_b32 v7, s26, v37
v_lshlrev_b32 v32, 16, v38
v_and_b32 v33, s26, v38
v_lshlrev_b32 v34, 16, v39
v_and_b32 v35, s26, v39
v_pk_mul_f32 v[4:5], v[4:5], s[56:57]
v_pk_mul_f32 v[6:7], v[6:7], s[56:57]
v_pk_mul_f32 v[32:33], v[32:33], s[56:57]
v_pk_mul_f32 v[34:35], v[34:35], s[56:57]
ds_write_b128 v1, v[4:7] offset:{CW}
ds_write_b128 v1, v[32:35] offset:{CB}
{TLBW}
""")
A("L_B0:\ns_mov_b64 exec, -1")
ts(4); spot()
if DG in (1, 2): A("s_branch L_fin")
srd(28, 12, 257*512)
A(f"""
v_lshrrev_b32 v16, 2, v0
v_lshlrev_b32 v16, 9, v16
v_lshrrev_b32 v17, 5, v0
v_lshlrev_b32 v17, 1, v17
v_and_b32 v18, 3, v0
v_xor_b32 v17, v17, v18
v_lshl_add_u32 v16, v17, 4, v16
s_lshl_b32 s56, s62, 6
v_add_u32 v16, s56, v16
s_mul_i32 s59, s62, {QBLK}
s_add_u32 s59, s59, {QB}
""")
if OPT.get('WBX', 8):
    lds_spin(C_X, 57, f"s_cmp_ge_u32 s57, {OPT.get('WBX', 8)}", "L_wb0", slp=2)
else:
    A("s_cmp_lg_u32 s3, 15\ns_cbranch_scc1 L_wb0")
    lds_spin(C_S3, 57, "s_cmp_ge_u32 s57, 7", "L_wb0", slp=2)
A("L_wb0:")
wdma(65536, 6, 8192, 16)
tailb(62, 64)
A(f"""
v_and_b32 v19, 1, v0
v_lshlrev_b32 v19, 1, v19
s_movk_i32 s57, {REC_STRIDE}
v_mul_u32_u24 v10, s57, v27
v_lshl_add_u32 v10, v19, 3, v10
""")
prep()
lds_spin(C_REC, 57, "s_cmp_ge_u32 s57, 7", "L_own", slp=1)
A("L_own:")
wdma(65536+6*8192, 2, 0, 16, 64)
A(f"v_mov_b32 v17, 1\ns_mov_b64 exec, 1\ns_waitcnt vmcnt(0)\nds_add_u32 v42, v17 offset:{C_WB}\ns_mov_b64 exec, -1")
ts(23)
A("s_cmp_eq_u32 s3, 15\ns_cbranch_scc1 L_w15b\n;@hopB\nL_Bback:\ns_mov_b64 exec, -1")
lds_spin(C_GO, 57, "s_cmp_lg_u32 s57, 0", "L_goseen", slp=2)
A(f"""
L_goseen:
s_cmp_eq_u32 s57, 1
s_cbranch_scc1 L_offok
L_B0_to:
s_mov_b64 exec, -1
""")
lds_or(C_ABORT, 2)
A("s_mov_b32 s63, 0\ns_branch L_B1done")
spot(True)
A("L_w15b:")
if OPT['PDELAY']: A(f"s_sleep {OPT['PDELAY']}")
ts(24); spot()
A(f"""
s_mov_b64 exec, 0xff
s_mov_b32 s58, 0
L_offp:
buffer_load_dword v18, v52, s[44:47], s23 offen sc1
s_add_u32 s58, s58, 1
s_waitcnt vmcnt(0)
v_cmp_ne_u32 vcc, v18, v53
""")
if OPT['FORCE_RECOV'] != 4: A("s_cbranch_vccz L_go\ns_mov_b64 exec, vcc")
def dbg(cnt, ty, v, ok):
    l = lab('dk')
    A(f"""
    s_cmp_lt_u32 s{cnt}, {(6, 16)[ty]}
    s_cbranch_scc1 {l}
    global_load_dword v{v}, v42, {DP} sc1
    s_waitcnt vmcnt(0)
    v_readfirstlane_b32 s57, v{v}
    s_cmp_eq_u32 s57, 256
    s_cbranch_scc1 {ok}
    {l}:
    """)
if OPT['FORCE_RECOV'] != 4: dbg(58, 0, 18, "L_go")
A(f"""
s_sleep {SLP}
s_cmp_lt_u32 s58, {2 if OPT['FORCE_RECOV'] == 4 else POLLMAX}
s_cbranch_scc1 L_offp
""")
lds_or(C_GO, 2)
A("s_branch L_B0_to\nL_go:")
lds_or(C_GO, 1)
if TS: A("v_writelane_b32 v41, s58, 40")
A("s_mov_b64 exec, -1")
A("L_offok:\nbuffer_load_dword v18, v25, s[44:47], s98 offen sc1")
ts(5); spot()
A("s_waitcnt vmcnt(0)")
ts(6); spot()
A(f"""
v_and_b32 v16, 0xffff, v18
v_lshrrev_b32 v11, 16, v18
v_lshl_add_u32 v10, v16, 3, v10
v_cmp_lt_u32 vcc, 24, v11
v_sub_u32 v11, v11, v19
{f's_add_u32 s56, s70, {WS_REC}' if ROT else f's_mov_b32 s56, {WS_REC}'}
s_mov_b32 s63, 0
""")
for i in range(6):
    m = 72+4*i
    A(f"""
    v_cmp_lt_i32 s[{m}:{m+1}], {4*i}, v11
    s_cmp_eq_u64 s[{m}:{m+1}], 0
    s_cbranch_scc1 L_ldone
    s_mov_b64 exec, s[{m}:{m+1}]
    buffer_load_dwordx4 v[{Nn(i)}:{Nn(i)+3}], v10, s[44:47], s56 offen offset:{32*i} sc1
    v_cmp_lt_i32 s[{m+2}:{m+3}], {4*i+1}, v11
    s_add_u32 s63, s63, 1
    """)
A(f"""
L_ldone:
s_mov_b64 exec, -1
s_cbranch_vccz L_noovf
""")
lds_or(C_ABORT, 1)
A(f"""
L_noovf:
s_lshl_b32 s57, s51, 7
v_mov_b32 v16, 0x41041
s_waitcnt vmcnt(0)
""")
ts(7)
spot()
for i in range(6):
    A(f"s_cmp_le_u32 s63, {i}\ns_cbranch_scc1 L_B1done")
    for j in range(2):
        d1 = Nn(i)+2*j+1; ad = Dd(i)+2*j; rk = ad+1; u = 20+j; m = 72+4*i+2*j
        A(f"""
        s_mov_b64 exec, s[{m}:{m+1}]
        v_subrev_u32 v{ad}, s57, v{d1}
        v_lshlrev_b32 v{u}, v{d1}, v16
        v_bfe_u32 v{ad}, v{ad}, 5, 9
        ds_add_rtn_u32 v{rk}, v{ad}, v{u} offset:{KEY}
        """)
A("L_B1done:\ns_mov_b64 exec, -1\ns_setprio 0\ns_waitcnt lgkmcnt(0)")
ts(8); spot()
if DG: A("s_branch L_fin")
bar()
ts(9); spot()
PRE = OPT.get('PRE', 2)
PREP = 's_mov_b64 exec, 0xff00\nbuffer_load_dword v54, v52, s[44:47], s23 offen sc1\ns_mov_b64 exec, -1'
def prepoll(n):
    if PRE == n: A(f"s_cmp_lg_u32 s3, 15\ns_cbranch_scc1 L_nopre2\ns_cmp_lg_u32 s54, 0\ns_cbranch_scc1 L_nopre2\n{PREP}\nL_nopre2:")
A(f"""
s_mov_b32 s57, {NL}
v_mov_b32 v20, 0
s_cmp_lg_u32 s3, 15
s_cbranch_scc1 L_nopre
{'s_setprio 3' if PRE else PREP}
L_nopre:
""")
for i in range(6):
    A(f"s_cmp_le_u32 s63, {i}\ns_cbranch_scc1 L_sc2")
    for j in range(2):
        ad = Dd(i)+2*j; rk = ad+1; m = 72+4*i+2*j; F = 4+2*i+j
        A(f"""
        s_mov_b64 exec, s[{m}:{m+1}]
        ds_read_b32 v{F}, v{ad} offset:{KEY}
        v_max_u32 v20, v20, v{rk}
        v_mad_u32_u24 v{ad}, v{ad}, {NCAP}, s57
        """)
A("L_sc2:\ns_mov_b64 exec, -1\n;@spot\ns_waitcnt lgkmcnt(0)")
for i in range(6):
    A(f"s_cmp_le_u32 s63, {i}\ns_cbranch_scc1 L_sc3")
    for j in range(2):
        w0 = Nn(i)+2*j; d1 = w0+1; ad = Dd(i)+2*j; rk = ad+1; m = 72+4*i+2*j; F = 4+2*i+j
        A(f"""
        s_mov_b64 exec, s[{m}:{m+1}]
        v_sub_u32 v{F}, v{F}, v{rk}
        v_lshl_add_u32 v{F}, v{F}, 6, v{rk}
        v_bfe_u32 v{F}, v{F}, v{d1}, 6
        v_lshl_add_u32 v{F}, v{F}, 2, v{ad}
        ds_write_b32 v{F}, v{w0}
        """)
A(f"""
L_sc3:
s_mov_b64 exec, -1
v_cmp_le_u32 vcc, {hex(NCAP << 26)}, v20
s_cbranch_vccz L_C2
""")
lds_or(C_ABORT, 1)
A("s_branch L_C2")
spot(True)

A(f"""
;@g0
L_Gcont:
;@spot
s_mov_b32 s23, 0
{f'ds_read_b32 v24, v42 offset:{C_SLOT}' if ROT else ''}
""")
common()
ts(21)
GSL = f's_waitcnt lgkmcnt(0)\nv_readfirstlane_b32 s70, v24\n{RA(60)}\n{RA(34)}' if ROT else ''
A(f"""
v_lshrrev_b32 v4, 4, v0
v_bfe_u32 v5, v0, 2, 2
v_lshl_add_u32 v5, v4, 3, v5
v_lshlrev_b32 v2, 6, v5
v_lshl_add_u32 v2, v3, 3, v2
v_and_b32 v5, 1, v4
v_lshl_add_u32 v2, v5, 5, v2
v_add_u32 v2, s59, v2
v_xor_b32 v3, 32, v2
v_and_b32 v5, 15, v0
v_xor_b32 v6, v4, v5
v_lshlrev_b32 v6, 4, v6
v_lshl_add_u32 v16, v5, 8, v6
v_add_u32 v16, {XB}, v16
v_xor_b32 v17, 64, v16
v_xor_b32 v18, 0x80, v16
v_xor_b32 v19, 0xc0, v16
;@spot
v_lshlrev_b32 v6, 9, v5
v_lshl_add_u32 v6, v4, 4, v6
s_lshl_b32 s56, s3, 6
v_add_u32 v6, s56, v6
v_mul_u32_u24 v7, {QROW}, v5
v_lshl_add_u32 v7, v4, 5, v7
s_and_b32 s56, s3, 1
s_lshl_b32 s56, s56, 4
s_and_b32 s57, s3, 2
s_lshl_b32 s57, s57, 6
s_add_u32 s56, s56, s57
s_add_u32 s56, s56, s59
v_add_u32 v7, s56, v7
;@spot
s_mov_b32 s32, s24
s_mov_b32 s33, s25
s_lshl_b32 s34, s50, 9
s_add_u32 s34, s34, {PB0}
s_mov_b32 s35, 0x00020000
s_mov_b32 s92, {NLOG2E}
s_lshl_b32 s60, s49, 9
s_add_u32 s60, s60, {PB0}
{GSL}
""")
tailb(3, 64)
A("s_sub_u32 s56, s64, s59\nv_add_u32 v20, s56, v2\nv_add_u32 v21, s56, v3")
ts(22); spot()
AF = 96; BFQ = ((44, 48, 52, 56), (68, 80, 88, 92)); ACC = (8, 24); PK = (32, 36, Nn(0), Dd(0), Nn(1), Dd(1), Nn(2))
def afrags(offs=(0, 2048, 4096, 6144)):
    for s in range(4):
        for a in range(2):
            for hf in range(2):
                r = AF + a*16 + s*4 + hf*2
                A(f"ds_read_b64_tr_b16 v[{r}:{r+1}], v{(2 if offs[s] >= 0 else 20)+a} offset:{max(offs[s], 0)+256*hf}")
def bfrQ(t):
    for s in range(4):
        r = BFQ[t & 1][s]
        A(f"ds_read_b128 v[{r}:{r+3}], v{16+s} offset:{4096*t}")
def grab(f, *a):
    n = len(L); f(*a); r = L[n:]; del L[n:]; return r
GP = OPT.get('GPRIO', '1100')
def gemm(post, nw, tail=None, pr='00'):
    for t in range(7):
        spot()
        if t == 0 or (t == OPT.get('GPT', 4) and pr[0] != pr[1]): A(f"s_setprio {pr[min(t, 1)]}")
        A(f"s_waitcnt lgkmcnt({nw if t > 1 else 0})")
        rd = grab(bfrQ, t+1) if t < 6 else []
        po = grab(post, t-1) if t > 0 else []
        gaps = [rd[0:2], rd[2:4]] + [[] for _ in range(6)]
        g = 2; c = 0
        for x in po:
            gaps[g].append(x)
            if not x.strip().startswith('s_'): c += 1
            if c == FPG and g < 7: g += 1; c = 0
        for s in range(4):
            for a in range(2):
                c = ACC[t & 1] + 4*a; ar = AF + a*16 + s*4; br = BFQ[t & 1][s]
                A(f"v_mfma_f32_16x16x32_bf16 v[{c}:{c+3}], v[{ar}:{ar+3}], v[{br}:{br+3}], " + ("0" if s == 0 else f"v[{c}:{c+3}]"))
                L.extend(gaps[2*s+a])
        if nw and t == OPT['PUBT'] + 1: pubA()
    if tail: tail()
    post(6)
FPG = OPT.get('FPG', 2); SPT = OPT.get('SPT', 2)
def pst(t):
    o = PK[t]
    if not OPT.get('NOST'): A(f"buffer_store_dwordx4 v[{o}:{o+3}], v6, s[32:35], s60 offen {SC}\ns_add_u32 s60, s60, 8192")
def postP(t):
    c = ACC[t & 1]; o = PK[t]
    for i in range(4):
        A(f"v_mul_f32 v{c+2*i}, s92, v{c+2*i}\nv_mul_f32 v{c+2*i+1}, s92, v{c+2*i+1}")
        if i: A(f"v_cvt_pk_bf16_f32 v{o+i-1}, v{c+2*i-2}, v{c+2*i-1}")
    A(f"v_cvt_pk_bf16_f32 v{o+3}, v{c+6}, v{c+7}")
    if OPT.get('LAG'):
        if t >= 7 - EP: pst(t - 7 + EP)
    elif t < EP: pst(t)
def postQ(t):
    c = ACC[t & 1]
    if t == 6: A("s_mov_b32 exec_lo, 0x00030003\ns_mov_b32 exec_hi, 0x00030003")
    A(f"ds_write_b128 v7, v[{c}:{c+3}] offset:{2304*t}\nds_write_b128 v7, v[{c+4}:{c+7}] offset:{2304*t+16}")
    if t == 6: A("s_mov_b64 exec, -1")
    for i in range(SPT):
        if EP + SPT*t + i < 7: pst(EP + SPT*t + i)
A(f"""
s_add_u32 s63, s54, 1
s_lshl_b32 s63, s63, 3
v_mov_b32 v4, 1
s_mov_b64 exec, 1
s_waitcnt vmcnt(0)
ds_add_u32 v42, v4 offset:{C_X}
s_mov_b64 exec, -1
""")
ts(2); spot()
lds_spin(C_X, 56, "s_cmp_ge_u32 s56, s63", "L_xok")
A("L_xok:")
ts(3); spot()
if DG: A("s_memtime s[100:101]\ns_waitcnt lgkmcnt(0)\nv_writelane_b32 v41, s100, 46"); ts(14)
afrags()
bfrQ(0)
A("s_cmp_eq_u32 s54, 0\ns_cbranch_scc1 L_nowb")
wdma(65536, 6, 8192)
wdma(65536+6*8192, 2, 0, 1, 64)
A("s_waitcnt vmcnt(0)\nL_nowb:")
def mid():
    lds_spin(C_WB, 56, "s_cmp_ge_u32 s56, 8", "L_wbok")
    A("L_wbok:")
    ts(5)
    afrags((8192, 10240, 12288, -1)); bfrQ(0)
gemm(postP, 0, mid, GP[0:2])
ts(4); spot()
def pubA():
    A(f"""
    s_cmp_lg_u32 s54, 0
    s_cbranch_scc1 L_nopub
    s_mov_b64 exec, 1
    v_mov_b32 v4, 1
    s_waitcnt vmcnt(0)
    ds_add_rtn_u32 v5, v42, v4 offset:{C_PA}
    s_waitcnt lgkmcnt(0)
    v_readfirstlane_b32 s57, v5
    s_cmp_lg_u32 s57, 7
    s_cbranch_scc1 L_nopub
    """)
    signal(1, 5, 4, 56)
    A("L_nopub:\ns_mov_b64 exec, -1")
    ts(25)
gemm(postQ, 2, None, GP[2:4])
A('s_setprio 0')
ts(7)
prep()
if OPT['PUBT'] == 6: pubA()
ts(6); spot()
if DG: A("s_memtime s[100:101]\ns_waitcnt lgkmcnt(0)\nv_writelane_b32 v41, s100, 47"); ts(15)
A(f"""
s_cmp_lg_u32 s54, 0
s_cbranch_scc1 L_recovG
v_and_b32 v9, 3, v0
v_mul_u32_u24 v9, 112, v9
v_mov_b32 v14, 0
v_mov_b32 v15, 0
s_waitcnt lgkmcnt(0)
""")
A(';@g1')
ts(8); spot()
if DG: A("s_branch L_fin")
bar()
ts(9); spot()
A(f"ds_read_b32 v10, v40 offset:{KEY}")
for q in range(7): A(f"ds_read_b128 v[{96+4*q}:{99+4*q}], v9 offset:{KEY+16*q}")
pairs = (96, 98, 56, 60)
for q in range(7):
    spot()
    A(f"s_waitcnt lgkmcnt({6-q})")
    for i in range(4): A(f"v_cmp_gt_u32 s[{pairs[i]}:{pairs[i]+1}], v{96+4*q+i}, v10")
    for i in range(4): A(f"v_addc_co_u32 v{14+(i&1)}, vcc, 0, v{14+(i&1)}, s[{pairs[i]}:{pairs[i]+1}]")
A("v_add_u32 v15, v14, v15")
dpp_add(15, "quad_perm:[1,0,3,2]", "row_mask:0xf bank_mask:0xf")
dpp_add(15, "quad_perm:[2,3,0,1]", "row_mask:0xf bank_mask:0xf")
A(f"""
v_lshlrev_b32 v15, 2, v15
ds_write_b32 v15, v10 offset:{SORT}
L_C2:
s_waitcnt lgkmcnt(0)
""")
ts(10); spot()
bar()
ts(11); spot()
prepoll(1)
MSK = (1 << 12) | (1 << 13) | (1 << 14) | (1 << 18)
LOV = sum(1 << s for s in range(3, 15)) | (1 << 18)
A(f"""
L_B4:
ds_read_b64 v[4:5], v32 offset:{SORT}
ds_read_b32 v43, v42 offset:{C_ABORT}
ds_read_b32 v36, v36 offset:{SORT}
ds_read_b32 v37, v37 offset:{SORT}
ds_read_b32 v38, v38 offset:{SORT}
s_mul_i32 s59, s3, {LW}
s_add_u32 s59, s59, {WL}
v_lshl_add_u32 v6, v0, 2, s59
v_mov_b32 v8, 0
v_mov_b32 v{VN}, 0
ds_write2st64_b32 v6, v8, v8 offset0:0 offset1:1
;@spot
s_mov_b32 s96, {hex(MSK)}
s_mov_b32 s97, 0
s_cmp_eq_u32 s3, 0
s_movk_i32 s98, 0x7fff
s_cselect_b32 s98, {hex(0x7fff | 1 << 15 | 1 << 18)}, s98
s_mov_b32 s99, 0
s_movk_i32 s60, {-NCAP}
s_movk_i32 s61, 8193
s_waitcnt lgkmcnt(4)
v_cndmask_b32 v7, v5, v4, s[96:97]
v_bfe_u32 v9, v4, v33, 6
v_bfe_u32 v11, v4, v34, 6
v_bfe_u32 v12, v5, v34, 6
v_bfe_u32 v10, v7, v33, 6
s_mov_b64 exec, {hex(LOV)}
v_min_u32 v8, v11, v12
s_mov_b64 exec, s[98:99]
v_min_u32 v9, v9, v10
v_sub_u32 v{VN}, v9, v8
s_mov_b64 exec, -1
v_mov_b32 v10, v{VN}
v_and_b32 v11, 127, v4
v_and_b32 v12, 127, v7
""")
dpp_add(10, "row_shr:1")
A("v_lshl_add_u32 v11, v12, 13, v11\nv_readfirstlane_b32 s55, v43")
dpp_add(10, "row_shr:2")
A(f"v_mad_i32_i24 v11, v11, s60, v35\nv_cmp_lt_u32 vcc, 0, v{VN}")
dpp_add(10, "row_shr:4")
A(f"v_lshl_add_u32 v13, v0, 3, s59\nv_lshrrev_b32 v1, 5, v0")
dpp_add(10, "row_shr:8")
A(f"v_mul_u32_u24 v1, {HL}, v1\nv_add_u32 v1, s59, v1")
dpp_add(10, "row_bcast:15", "row_mask:0xa bank_mask:0xf")
A(f"""
v_sub_u32 v12, v10, v{VN}
v_sub_u32 v9, v9, v10
v_readlane_b32 s58, v10, 20
v_lshl_add_u32 v12, v12, 2, s59
v_mad_i32_i24 v11, v9, s61, v11
s_sub_u32 s56, s58, 1
s_cmp_lt_u32 s56, {HL//8 - R}
s_cbranch_scc1 L_capok
s_or_b32 s55, s55, 4
L_capok:
;@spot
""")
if OPT['FORCE_SAFE']: A("s_or_b32 s55, s55, 1")
prepoll(2)
A(f"""
s_cmp_lg_u32 s55, 0
s_cbranch_scc1 L_nolist
s_mov_b64 exec, vcc
ds_write_b32 v12, v11
s_mov_b64 exec, -1
ds_read2st64_b32 v[10:11], v6 offset0:0 offset1:1
v_min_u32 v9, s56, v0
s_mov_b32 s57, {NL - 4*BIAS}
v_lshl_add_u32 v9, v9, 2, s57
s_movk_i32 s60, 512
s_waitcnt lgkmcnt(0)
""")
def fill(v, pm, ex=None, off=0):
    for c in ("row_shr:1", "row_shr:2", "row_shr:4", "row_shr:8"): dpp("v_max_u32", v, c)
    dpp("v_max_u32", v, "row_bcast:15", "row_mask:0xa bank_mask:0xf")
    dpp("v_max_u32", v, "row_bcast:31", "row_mask:0xc bank_mask:0xf")
    if ex: A(f"s_mov_b64 exec, {ex}")
    A(f"""
    v_and_b32 v14, 0x1fff, v{v}
    v_bfe_u32 v15, v{v}, 13, 13
    v_lshl_add_u32 v14, v14, 2, v{pm}
    v_lshl_add_u32 v15, v15, 2, v{pm}
    ds_read_b32 v14, v14
    ds_read_b32 v15, v15
    s_waitcnt lgkmcnt(1)
    v_and_b32 v16, 0x7fff, v14
    v_mad_u32_u24 v16, v16, s60, s60
    v_and_b32 v14, s26, v14
    ds_write2_b32 v13, v16, v14 offset0:{off} offset1:{off+2*R+1}
    s_waitcnt lgkmcnt(1)
    v_and_b32 v17, 0x7fff, v15
    v_lshlrev_b32 v17, 9, v17
    v_and_b32 v15, s26, v15
    ds_write2_b32 v13, v17, v15 offset0:{off+HL//4} offset1:{off+HL//4+2*R+1}
    """)
fill(10, 9)
A(f"s_cmp_gt_u32 s58, {64-R}\ns_cbranch_scc1 L_fill2\nL_filled:\nL_nolist:")
A(f"""
ds_read_b128 v[8:11], v1
ds_read_b128 v[12:15], v1 offset:16
ds_read_b128 v[16:19], v1 offset:32
ds_read_b128 v[20:23], v1 offset:48
""")
ts(12); spot()
A(f"""
s_movk_i32 s60, {-QROW}
v_and_b32 v36, 127, v36
v_and_b32 v37, 127, v37
v_and_b32 v38, 127, v38
v_mad_i32_i24 v36, v36, s60, v39
v_mad_i32_i24 v37, v37, s60, v39
v_mad_i32_i24 v38, v38, s60, v39
s_bitcmp1_b32 s55, 1
s_cbranch_scc1 L_recover
s_cmp_lg_u32 s3, 15
s_cbranch_scc1 L_pfdone
s_cmp_lg_u32 s54, 0
s_cbranch_scc1 L_pfdone
s_mov_b32 s56, 0
s_mov_b64 exec, 0xff00
v_mov_b32 v55, 1
L_pfp:
s_waitcnt vmcnt(0)
v_cmp_ne_u32 vcc, v54, v53
""")
if OPT['FORCE_RECOV'] != 1: A("s_cbranch_vccz L_pfok\ns_mov_b64 exec, vcc"); dbg(56, 1, 54, "L_pfok")
A(f"""
s_sleep {OPT.get('PSL', 1)}
buffer_load_dword v54, v52, s[44:47], s23 offen sc1
s_add_u32 s56, s56, 1
s_cmp_lt_u32 s56, {2 if OPT['FORCE_RECOV'] == 1 else POLLMAX}
s_cbranch_scc1 L_pfp
v_mov_b32 v55, 2
L_pfok:
ds_write_b32 v42, v55 offset:{C_PFA}
s_mov_b64 exec, -1
""")
if TS: A("v_writelane_b32 v41, s56, 41")
A(f"L_pfdone:\nds_read_b32 v43, v42 offset:{C_PFA}")
def gather(p, idx):
    A(f"buffer_load_dwordx4 v[{RING[p]}:{RING[p]+3}], v{idx}, s[40:43], s70 offen {SC}")
for k in range(NS): A(f"ds_read_b128 v[{Q(k)}:{Q(k)+3}], v{36+(k>>1)} offset:{16*(k&1)}")
A(f"""
v_lshrrev_b32 v32, 26, v4
v_lshrrev_b32 v33, 26, v5
v_and_b32 v4, 127, v4
v_and_b32 v5, 127, v5
v_lshl_or_b32 v32, v32, 8, v4
v_lshl_or_b32 v33, v33, 8, v5
s_mul_i32 s80, s3, 6
s_min_u32 s56, s3, 1
s_lshl1_add_u32 s80, s56, s80
s_lshl_b32 s56, s80, 2
v_min_u32 v34, 3, v0
v_lshl_add_u32 v34, v34, 3, s56
s_and_b32 s98, s98, 0x8007
s_waitcnt lgkmcnt(6)
v_readfirstlane_b32 s82, v43
s_cmp_lg_u32 s55, 0
s_cselect_b32 s82, 0, s82
s_cmp_lg_u32 s82, 1
s_cbranch_scc1 L_noring
""")
for p, idx in enumerate((8, 10, 12, 14)): gather(p, idx)
ts(13)
A(f"""
L_noring:
;@spot
s_mov_b64 exec, s[98:99]
ds_write_b64 v34, v[32:33] offset:{ROWI}
s_mov_b64 exec, -1
v_and_b32 v34, 31, v0
v_lshlrev_b32 v34, 5, v34
s_cmp_lg_u32 s3, 0
s_cbranch_scc1 L_noq3
v_readlane_b32 s56, v4, 15
v_readlane_b32 s57, v5, 15
v_mov_b32 v35, s56
s_mov_b32 exec_lo, 0
v_mov_b32 v35, s57
s_mov_b32 exec_lo, -1
v_mad_i32_i24 v35, v35, s60, v39
ds_read_b128 v[{Nn(4)}:{Nn(4)+3}], v35
ds_read_b128 v[{Dd(4)}:{Dd(4)+3}], v35 offset:16
L_noq3:
;@spot
ds_read_b128 v[{Nn(5)}:{Nn(5)+3}], v34 offset:{CB}
ds_read_b128 v[{Dd(5)}:{Dd(5)+3}], v34 offset:{CB+16}
ds_read_b128 v[{WA}:{WA+3}], v34 offset:{CW}
ds_read_b128 v[{WB}:{WB+3}], v34 offset:{CW+16}
v_and_b32 v35, 3, v0
v_lshlrev_b32 v35, 4, v35
v_mov_b32 v36, 0x3f80
v_mov_b32 v37, 0
v_lshlrev_b64 v[2:3], v35, v[36:37]
v_mov_b32 v43, 1
s_mov_b32 s60, 1.0
s_mov_b32 s61, 1.0
s_mov_b32 s56, {NLOG2E}
s_mov_b32 s57, {NLOG2E}
s_mov_b32 s71, 0
s_mov_b32 s83, 0
""")
srd(28, 16, 65536)
LATE = [Nn(4), Dd(4), Nn(5), Dd(5)]
initnd([r for r in ALLND if r not in LATE])
A(f"s_waitcnt lgkmcnt(2)\ns_mov_b64 exec, 1\nds_add_u32 v42, v43 offset:{C_Q}\ns_mov_b64 exec, -1")
ts(28); spot()
def qscale(r, a):
    b = (Nn(5), Dd(5))[a]
    A(f"v_pk_fma_f32 v[{r}:{r+1}], v[{r}:{r+1}], s[56:57], v[{b}:{b+1}]\nv_pk_fma_f32 v[{r+2}:{r+3}], v[{r+2}:{r+3}], s[56:57], v[{b+2}:{b+3}]")
for k in range(NS): qscale(Q(k), k & 1)
A(f"""
s_cmp_lg_u32 s3, 0
s_cbranch_scc1 L_noq3b
s_mov_b32 s58, {Q3P}
v_lshl_add_u32 v35, v0, 4, s58
""")
qscale(Nn(4), 0); qscale(Dd(4), 1)
A(f"""
ds_write_b128 v35, v[{Nn(4)}:{Nn(4)+3}]
ds_write_b128 v35, v[{Dd(4)}:{Dd(4)+3}] offset:1024
s_waitcnt lgkmcnt(0)
L_noq3b:
;@spot
""")
initnd(LATE)
A("s_cmp_eq_u32 s82, 1\ns_cbranch_scc1 L_ringd")
lds_spin(C_PFA, 57, "s_cmp_lg_u32 s57, 0", "L_pfseen", tmp=56)
A("L_pfseen:\ns_cmp_lg_u32 s57, 1\ns_cbranch_scc1 L_recover\ns_cmp_lg_u32 s55, 0\ns_cbranch_scc1 L_safe0")
for p, idx in enumerate((8, 10, 12, 14)): gather(p, idx)
ts(13)
A(f"""
L_ringd:
s_waitcnt lgkmcnt(0)
s_setprio {OPT['PRIO'][0]}
""")
ts(14); spot()
if TS: A("s_memtime s[100:101]\ns_waitcnt lgkmcnt(0)\nv_writelane_b32 v41, s100, 46")
SEL = "op_sel:[1,0,0] op_sel_hi:[1,1,1]"
TT = (8, 32)
def H1a(k, p):
    q = Q(k); a = k & 1; pr = 16 + 2*p; t = TT[a]; w = (WA, WB)[a]
    if a == 0 and p % 2 == 0: A("s_waitcnt lgkmcnt(1)")
    A(f"""
    v_pk_fma_f32 v[{t}:{t+1}], v[{pr}:{pr+1}], v[{w}:{w+1}], v[{q}:{q+1}] {SEL}
    v_pk_fma_f32 v[{t+2}:{t+3}], v[{pr}:{pr+1}], v[{w+2}:{w+3}], v[{q+2}:{q+3}] {SEL}
    """)
def H1b(k, p):
    a = k & 1; qd = 16 + 4*(p >> 1); pr = 16 + 2*p; rg = RING[p] + 2*a; t = TT[a]
    if a == 0: A(f"s_waitcnt vmcnt({R-1})\ns_sub_u32 s56, s56, 1")
    A(f"v_mfma_f32_4x4x4_16b_bf16 v[{t}:{t+3}], v[2:3], v[{rg}:{rg+1}], v[{t}:{t+3}]")
    if a == 1:
        gather(p, pr)
        if p % 2 == 1: A(f"ds_read_b128 v[{qd}:{qd+3}], v1 offset:{64+16*(p>>1)}")
        if p == 3: A("v_add_u32 v1, 32, v1")
def H2a(k):
    t = TT[k & 1]
    if OPT.get('NOV'): return
    A(f"v_exp_f32 v12, v{t}\nv_exp_f32 v13, v{t+1}")
def H2b(k):
    n, d = Nn(k), Dd(k); t = TT[k & 1]
    if OPT.get('NOV'): return
    A(f"""
    v_exp_f32 v14, v{t+2}
    v_exp_f32 v15, v{t+3}
    v_pk_fma_f32 v[{t}:{t+1}], v[{t}:{t+1}], v[{d}:{d+1}], v[{n}:{n+1}]
    v_pk_fma_f32 v[{t+2}:{t+3}], v[{t+2}:{t+3}], v[{d+2}:{d+3}], v[{n+2}:{n+3}]
    v_pk_fma_f32 v[{d}:{d+1}], v[{d}:{d+1}], v[12:13], v[{d}:{d+1}]
    v_pk_fma_f32 v[{n}:{n+1}], v[{n}:{n+1}], v[12:13], v[{t}:{t+1}]
    v_pk_fma_f32 v[{d+2}:{d+3}], v[{d+2}:{d+3}], v[14:15], v[{d+2}:{d+3}]
    v_pk_fma_f32 v[{n+2}:{n+3}], v[{n+2}:{n+3}], v[14:15], v[{t+2}:{t+3}]
    """)
def H2(k): H2a(k); H2b(k)
HK = OPT['HOOK']; PR = OPT['PRIO']
def wrap(p):
    A(f"""
    L_E3_{p}:
    s_mov_b32 s57, {p}
    """)
    if TS: A("s_memrealtime s[100:101]\ns_add_u32 s58, s71, 45\ns_min_u32 s58, s58, 63\ns_mov_b32 m0, s58\ns_waitcnt lgkmcnt(0)\nv_writelane_b32 v41, s100, m0")
    A(f"""
    s_cmp_eq_u32 s71, 3
    s_cbranch_scc1 L_wrap1
    s_setprio {PR[2]}
    s_cmp_eq_u32 s71, 6
    s_cbranch_scc1 L_E0_{p}
    s_setprio {PR[3]}
    s_cmp_eq_u32 s71, 9
    s_cbranch_scc1 L_E0_{p}
    s_mov_b32 exec_hi, 0
    s_cmp_eq_u32 s71, 12
    s_cbranch_scc1 L_E0_{p}
    s_cmp_eq_u32 s71, 18
    s_cbranch_scc1 L_E0_{p}
    s_mov_b32 exec_hi, -1
    s_cmp_lg_u32 s3, s83
    s_cbranch_scc1 L_flush
    s_branch L_rs{p}
    """)
    spot(True)
for p in range(4):
    for q in range(3):
        if q > 0:
            A(f"L_T{q-1}_{p}:"); H2(2*q-1)
        A(f"L_E{q}_{p}:")
        if q == HK: A(f"s_mov_b32 s57, {p}\ns_cmp_eq_u32 s71, {3+HK}\ns_cbranch_scc1 L_hk1\nL_H_{p}:")
        if len(PR) > 4 and q == OPT.get('LQ', 2): A(f"s_cmp_lt_u32 s71, 9\ns_cbranch_scc1 L_np{p}\ns_setprio {PR[4]}\nL_np{p}:")
        A(f"v_readlane_b32 s56, v{VN}, s71\ns_add_u32 s71, s71, 1\ns_sub_u32 s56, s56, 1\ns_cbranch_scc1 L_E{q+1}_{p}")
        H1a(2*q, p); H1a(2*q+1, p); H1b(2*q, p); H1b(2*q+1, p); H2(2*q)
        A(f"s_cbranch_scc0 L_B{q}_{(p+1)&3}\ns_branch L_T{q}_{(p+1)&3}")
        spot(True)
    A(f"L_T2_{p}:"); H2(5)
    wrap(p)
for q in range(3):
    for p in range(4):
        A(f"L_B{q}_{p}:")
        H1a(2*q, p); H1b(2*q, p); H2(2*q+1); H1a(2*q+1, p); H2a(2*q); H1b(2*q+1, p); H2b(2*q)
        A(f"s_cbranch_scc1 L_T{q}_{(p+1)&3}")
    A(f"s_branch L_B{q}_0")
    spot(True)
A(f"""
L_hk1:
s_mov_b64 exec, 1
v_mov_b32 v43, 1
s_waitcnt vmcnt(0)
ds_add_u32 v42, v43 offset:{C_W2}
s_mov_b64 exec, -1
""")
ts(27)
for p in range(4): A(f"s_cmp_eq_u32 s57, {p}\ns_cbranch_scc1 L_H_{p}")
A(f"""
s_branch L_safe
L_wrap1:
s_setprio {PR[1]}
L_wrap1b:
""")
ts(26); spot()
A(f"""
v_lshrrev_b32 v37, 4, v0
v_lshlrev_b32 v38, 2, v37
v_and_b32 v39, 15, v0
v_xor_b32 v38, v38, v39
v_lshlrev_b32 v38, 4, v38
v_lshl_add_u32 v38, v37, 8, v38
""")
lds_spin(C_Q, 60, "s_cmp_ge_u32 s60, 16", "L_qrd")
A(f"L_qrd:\ns_lshl_b32 s58, s3, 12\ns_add_u32 m0, s58, {QB}")
for i in range(4): A(f"buffer_load_dwordx4 v38, s[28:31], s58 offen offset:{1024*i} lds")
for p in range(4): A(f"s_cmp_eq_u32 s57, {p}\ns_cbranch_scc1 L_E0_{p}")
A("s_branch L_hk1")
spot(True)
for p in range(4):
    A(f"""
    L_rs{p}:
    v_readfirstlane_b32 s58, v1
    s_add_u32 s58, s58, {HL}
    s_mov_b32 exec_lo, 0
    v_mov_b32 v1, s58
    s_mov_b32 exec_lo, -1
    ds_read_b128 v[16:19], v1 offset:{32 if p < 2 else 64}
    ds_read_b128 v[20:23], v1 offset:48
    s_mov_b32 s81, {p}
    ds_read2_b32 v[36:37], v1 offset0:{2*p} offset1:{2*p+2}
    ds_read2_b32 v[38:39], v1 offset0:{2*p+4} offset1:{2*p+6}
    s_waitcnt lgkmcnt(0)
    """)
    for i in range(4): gather((p+i) & 3, 36+i)
    if p < 3: A("s_branch L_flush")
A("L_flush:\ns_waitcnt lgkmcnt(0)")
ts(15); spot()
if TS: A("s_memtime s[100:101]\ns_waitcnt lgkmcnt(0)\nv_writelane_b32 v41, s100, 47")
A(f"""
v_lshrrev_b32 v36, 5, v0
v_add_u32 v36, s80, v36
v_mul_u32_u24 v36, {HROW}, v36
v_bfe_u32 v37, v0, 2, 3
v_lshl_add_u32 v36, v37, 6, v36
v_and_b32 v37, 3, v0
v_lshl_add_u32 v36, v37, 3, v36
v_add_u32 v36, {HSB}, v36
s_cmp_lg_u32 s83, 0
s_cbranch_scc1 L_flush2
""")
def guard(ks, ok):
    for k in ks:
        if k == ks[0]: A(f"v_pk_mul_f32 v[32:33], v[{Nn(k)}:{Nn(k)+1}], v[{Dd(k)}:{Dd(k)+1}]\nv_pk_mul_f32 v[34:35], v[{Nn(k)+2}:{Nn(k)+3}], v[{Dd(k)+2}:{Dd(k)+3}]")
        else: A(f"v_pk_fma_f32 v[32:33], v[{Nn(k)}:{Nn(k)+1}], v[{Dd(k)}:{Dd(k)+1}], v[32:33]\nv_pk_fma_f32 v[34:35], v[{Nn(k)+2}:{Nn(k)+3}], v[{Dd(k)+2}:{Dd(k)+3}], v[34:35]")
    A(f"""
    v_pk_add_f32 v[32:33], v[32:33], v[34:35]
    v_add_f32 v32, v32, v33
    v_mov_b32 v33, 0x207
    v_cmp_class_f32 vcc, v32, v33
    s_cmp_lg_u32 s55, 0
    s_cbranch_scc1 {ok}
    """)
    if OPT['FORCE_GUARD'] == 1 and len(ks) > 2: A("s_bitcmp0_b32 s3, 0\ns_cbranch_scc1 L_safe")
    if OPT['FORCE_GUARD'] == 2 and len(ks) == 2: A("s_branch L_safe")
    A(f"s_cbranch_vccnz L_safe\n{ok}:")
def hout(k, off):
    spot()
    n, d = Nn(k), Dd(k); o = 8 + 2*(k & 1)
    for i in range(4): A(f"v_rcp_f32 v{d+i}, v{d+i}")
    A(f"""
    v_pk_mul_f32 v[{n}:{n+1}], v[{n}:{n+1}], v[{d}:{d+1}]
    v_pk_mul_f32 v[{n+2}:{n+3}], v[{n+2}:{n+3}], v[{d+2}:{d+3}]
    v_cvt_pk_bf16_f32 v{o}, v{n}, v{n+1}
    v_cvt_pk_bf16_f32 v{o+1}, v{n+2}, v{n+3}
    ds_write_b64 v36, v[{o}:{o+1}] offset:{off}
    """)
guard(list(range(NS)), "L_fl2")
spot()
for k in range(NS): hout(k, 2*HROW*(k >> 1) + 32*(k & 1))
A(f"""
s_cmp_lg_u32 s3, 0
s_cbranch_scc1 L_fl3
s_mov_b32 s58, {Q3P}
v_lshl_add_u32 v37, v0, 4, s58
ds_read_b128 v[{Q(0)}:{Q(0)+3}], v37
ds_read_b128 v[{Q(1)}:{Q(1)+3}], v37 offset:1024
s_mov_b32 s60, 1.0
s_mov_b32 s61, 1.0
s_mov_b32 s83, 1
""")
initnd([Nn(0), Dd(0), Nn(1), Dd(1)])
A("s_waitcnt lgkmcnt(0)\ns_cmp_lg_u32 s55, 0\ns_cbranch_scc1 L_safe")
for p in range(3): A(f"s_cmp_eq_u32 s81, {p}\ns_cbranch_scc1 L_E0_{p}")
A("s_branch L_E0_3")
spot(True)
A("L_flush2:")
guard([0, 1], "L_fl2b")
for k in range(2): hout(k, 2*HROW*3 + 32*k)
A("L_fl3:")
ts(16); spot()
A(f"""
s_and_b32 s60, s3, 3
s_lshr_b32 s61, s3, 2
s_lshl_b32 s59, s61, 2
v_mov_b32 v2, s59
v_mov_b32 v3, 1
s_waitcnt lgkmcnt(0)
s_mov_b64 exec, 1
ds_add_u32 v2, v3 offset:{C_G}
s_mov_b64 exec, -1
v_lshrrev_b32 v4, 4, v0
v_and_b32 v5, 15, v0
s_lshl_b32 s56, s60, 6
v_lshl_add_u32 v6, v4, 4, s56
global_load_dwordx4 v[124:127], v6, s[18:19]
v_bfe_u32 v7, v0, 2, 2
v_lshl_add_u32 v1, v4, 3, v7
v_lshlrev_b32 v1, 8, v1
v_xor_b32 v7, s60, v7
v_lshl_add_u32 v1, v7, 6, v1
v_and_b32 v7, 3, v0
v_lshl_add_u32 v1, v7, 4, v1
""")
lds_spin(C_W2, 57, "s_cmp_ge_u32 s57, 16", "L_w2ok")
A("L_w2ok:\ns_waitcnt vmcnt(1)")
spot()
for s in range(8):
    for a in range(2):
        for hf in range(2):
            r = 44 + a*32 + s*4 + hf*2
            A(f"ds_read_b64_tr_b16 v[{r}:{r+1}], v1 offset:{QB+8192*s+1024*hf+8*a}")
A(f"""
s_mul_i32 s56, s61, 24
s_min_u32 s57, s61, 1
s_lshl1_add_u32 s56, s57, s56
v_add_u32 v5, s56, v5
v_lshlrev_b32 v3, 2, v5
v_mul_u32_u24 v1, {HROW}, v5
v_lshl_add_u32 v1, v4, 4, v1
v_add_u32 v1, {HSB}, v1
s_mov_b32 s32, s20
s_mov_b32 s33, s21
s_add_u32 s34, s51, s52
s_lshl_b32 s34, s34, 8
s_mov_b32 s35, 0x00020000
s_add_u32 s59, s51, 127
s_lshl_b32 s59, s59, 8
v_add_u32 v6, s59, v6
s_cmp_eq_u32 s61, 0
s_mov_b32 s96, 0x00ff00ff
s_cselect_b32 s96, 0x03ff03ff, s96
s_mov_b32 s97, s96
s_movk_i32 s59, -256
s_mov_b32 s56, {NLN2}
""")
ts(17); spot()
lds_spin(C_G, 57, "s_cmp_ge_u32 s57, 4", "L_gok", av=2)
A("L_gok:")
ts(18)
spot()
A(f"ds_read_b32 v42, v3 offset:{ROWI}\nds_read_b32 v43, v3 offset:{ROWI+64}")
BB = (108, 8)
def rd(qg):
    for t in range(2):
        for h in range(2):
            r = BB[qg & 1] + 8*t + 4*h
            A(f"ds_read_b128 v[{r}:{r+3}], v1 offset:{16*HROW*t + 64*(2*qg+h)}")
rd(0)
for qg in range(4):
    spot()
    if qg < 3: rd(qg+1); A(f"s_waitcnt lgkmcnt(4)")
    else: A("s_waitcnt lgkmcnt(0)")
    for h in range(2):
        s = 2*qg + h
        for t in range(2):
            for a in range(2):
                c = 24 + 8*t + 4*a; ar = 44 + a*32 + s*4; br = BB[qg & 1] + 8*t + 4*h
                A(f"v_mfma_f32_16x16x32_bf16 v[{c}:{c+3}], v[{ar}:{ar+3}], v[{br}:{br+3}], " + ("0" if s == 0 else f"v[{c}:{c+3}]"))
    if qg == 0:
        for t in range(2):
            A(f"v_and_b32 v{4+t}, 127, v{42+t}\nv_lshrrev_b32 v{42+t}, 8, v{42+t}\nv_mad_i32_i24 v{4+t}, v{4+t}, s59, v6\nv_cvt_f32_u32 v{42+t}, v{42+t}")
spot()
A("s_waitcnt vmcnt(0)")
for i in range(4):
    A(f"v_lshlrev_b32 v{44+2*i}, 16, v{124+i}\nv_and_b32 v{45+2*i}, s26, v{124+i}")
for t in range(2):
    for i in range(8): A(f"v_mul_f32 v{52+8*t+i}, v{42+t}, v{44+i}")
for t in range(2):
    c = 24 + 8*t
    for i in range(8): A(f"v_fma_f32 v{c+i}, v{c+i}, s56, v{52+8*t+i}")
    for i in range(4): A(f"v_cvt_pk_bf16_f32 v{68+4*t+i}, v{c+2*i}, v{c+2*i+1}")
    if t == 1: A("s_mov_b64 exec, s[96:97]")
    A(f"buffer_store_dwordx4 v[{68+4*t}:{71+4*t}], v{4+t}, s[32:35], 0 offen {OPT.get('OSC', '').replace('+', ' ')}")
A("L_fin:")
if TS:
    A("s_mov_b64 exec, -1\ns_waitcnt vmcnt(0)")
    ts(19)
    A(f"""
    s_lshl_b32 s56, s2, 4
    s_add_u32 s56, s56, s3
    s_lshl_b32 s56, s56, 8
    s_add_u32 s56, s56, {WS_TS}
    v_lshlrev_b32 v1, 2, v0
    buffer_store_dword v41, v1, s[44:47], s56 offen
    """)
    if 'DIAG' in OPT:
        A(f"s_cmp_lg_u32 s3, {OPT.get('DW', 0)}\ns_cbranch_scc1 L_end\nv_readlane_b32 s56, v41, 0")
        if OPT['DIAG'] >= 100: A(f"s_mov_b32 s57, {OPT['DIAG']*100}")
        else: A(f"v_readlane_b32 s57, v41, {OPT['DIAG']}\ns_sub_u32 s57, s57, s56\ns_mul_i32 s57, s57, {OPT.get('DMUL', 10)}\ns_min_u32 s57, s57, 200000")
        A("""
        L_diag:
        s_sleep 4
        s_memrealtime s[100:101]
        s_waitcnt lgkmcnt(0)
        s_sub_u32 s58, s100, s56
        s_cmp_lt_u32 s58, s57
        s_cbranch_scc1 L_diag
        """)
A("L_end:\ns_endpgm")
A(";@cold")
A(f"""
L_fill2:
v_readlane_b32 s61, v10, 63
v_add_u32 v9, 64, v0
v_min_u32 v9, s56, v9
v_lshl_add_u32 v9, v9, 2, s57
v_add_u32 v13, 512, v13
v_max_u32 v11, s61, v11
""")
fill(11, 9, "0xffffffff")
A(f"""
s_mov_b64 exec, -1
s_branch L_filled
L_recover:
s_setprio 0
s_waitcnt vmcnt(0) lgkmcnt(0)
s_barrier
s_mov_b32 s54, 0
L_recov_step:
s_add_u32 s54, s54, 1
s_add_u32 s48, s2, s54
s_and_b32 s48, s48, 255
""")
bucket_range(48, 56, 49, 50)
A(f"""
s_cmp_lt_u32 s3, 8
s_cbranch_scc1 L_Gfirst
L_recovL:
s_barrier
L_recovG:
s_waitcnt vmcnt(0) lgkmcnt(0)
s_barrier
s_cmp_lt_u32 s54, 256
s_cbranch_scc1 L_recov_step
v_mov_b32 v43, 1
ds_write_b32 v42, v43 offset:{C_ABORT}
ds_write_b32 v42, v43 offset:{C_PFA}
v_mov_b32 v43, 0
ds_write_b32 v42, v43 offset:{C_W2}
ds_write_b32 v42, v43 offset:{C_Q}
""")
prep()
A(f"""
s_waitcnt lgkmcnt(0)
s_barrier
s_branch L_B4
L_safe0:
s_mov_b32 s57, 4
s_branch L_wrap1b
L_safe:
s_mov_b32 s55, 1
s_setprio 0
s_mov_b32 s60, 1.0
s_mov_b32 s61, 1.0
s_mul_i32 s73, s83, 6
s_add_u32 s73, s73, s80
s_lshl_b32 s73, s73, 2
v_lshl_add_u32 v23, v0, 2, s73
s_waitcnt vmcnt(0) lgkmcnt(0)
ds_read_b32 v22, v23 offset:{ROWI}
""")
initnd(ALLND)
srd(28, 10, E*4); srd(32, 8, E*4); srd(36, 6, E*2)
A(f"""
v_lshlrev_b32 v16, 2, v0
v_lshlrev_b32 v17, 1, v0
v_and_b32 v24, 31, v0
v_lshlrev_b32 v24, 4, v24
s_mov_b32 s72, 0
s_movk_i32 s74, {N-1}
s_waitcnt lgkmcnt(0)
v_and_b32 v22, 127, v22
v_sub_u32 v25, 127, v22
""")
for i in range(6): A(f"v_readlane_b32 s{64+i}, v25, {i}")
A("s_cmp_eq_u32 s83, 0\ns_cbranch_scc1 L_sloop")
for i in range(2, 6): A(f"s_mov_b32 s{64+i}, -1")
A(f"""
L_sloop:
s_lshl_b32 s56, s72, 1
buffer_load_dword v18, v16, s[28:31], s56 offen
buffer_load_dword v19, v16, s[32:35], s56 offen
buffer_load_ushort v20, v17, s[36:39], s72 offen
s_waitcnt vmcnt(0)
v_min_u32 v18, s74, v18
v_subrev_u32 v21, s51, v18
v_cmp_gt_u32 s[96:97], s52, v21
s_cmp_eq_u64 s[96:97], 0
s_cbranch_scc1 L_snext
v_mov_b32 v25, 6
""")
for i in range(6): A(f"v_cmp_eq_u32 vcc, s{64+i}, v21\nv_cndmask_b32 v25, v25, {i}, vcc")
A(f"""
v_cmp_gt_u32 vcc, 6, v25
s_and_b64 s[96:97], s[96:97], vcc
L_sbit:
s_mov_b64 exec, -1
s_cmp_eq_u64 s[96:97], 0
s_cbranch_scc1 L_snext
s_ff1_i32_b64 s56, s[96:97]
s_bitset0_b64 s[96:97], s56
v_readlane_b32 s57, v19, s56
v_readlane_b32 s58, v20, s56
v_readlane_b32 s60, v25, s56
s_min_u32 s57, s57, s74
s_lshl_b32 s57, s57, 9
s_add_u32 s57, s57, {PB0}
s_lshl_b32 s58, s58, 16
s_mov_b32 s59, s58
buffer_load_dwordx4 v[28:31], v24, s[44:47], s57 offen sc1
s_lshl_b64 exec, 1, s60
v_add_u32 v22, 0x100, v22
s_bitcmp1_b32 s60, 0
s_cselect_b32 exec_lo, 0, -1
s_cselect_b32 exec_hi, -1, 0
s_lshr_b32 s60, s60, 1
s_waitcnt vmcnt(0)
""")
for qq in range(3):
    if qq < 2: A(f"s_cmp_lg_u32 s60, {qq}\ns_cbranch_scc1 L_sk{qq+1}")
    for a in range(2):
        k = 2*qq + a; q, n = Q(k), Nn(k); w = (WA, WB)[a]
        A(f"""
        v_pk_fma_f32 v[8:9], s[58:59], v[{w}:{w+1}], v[{q}:{q+1}]
        v_pk_fma_f32 v[10:11], s[58:59], v[{w+2}:{w+3}], v[{q+2}:{q+3}]
        v_mfma_f32_4x4x4_16b_bf16 v[8:11], v[2:3], v[{28+2*a}:{29+2*a}], v[8:11]
        v_exp_f32 v12, v8
        v_exp_f32 v13, v9
        v_exp_f32 v14, v10
        v_exp_f32 v15, v11
        v_pk_add_f32 v[12:13], v[12:13], 1.0 op_sel_hi:[1,0]
        v_pk_add_f32 v[14:15], v[14:15], 1.0 op_sel_hi:[1,0]
        v_rcp_f32 v12, v12
        v_rcp_f32 v13, v13
        v_rcp_f32 v14, v14
        v_rcp_f32 v15, v15
        v_pk_fma_f32 v[{n}:{n+1}], v[8:9], v[12:13], v[{n}:{n+1}]
        v_pk_fma_f32 v[{n+2}:{n+3}], v[10:11], v[14:15], v[{n+2}:{n+3}]
        """)
    A("s_branch L_sbit")
    if qq < 2: A(f"L_sk{qq+1}:")
A(f"""
L_snext:
s_add_u32 s72, s72, 128
s_cmp_lt_u32 s72, {2*E}
s_cbranch_scc1 L_sloop
s_cmp_eq_u32 s83, 0
s_cselect_b32 exec_lo, 63, 3
s_mov_b32 exec_hi, 0
ds_write_b32 v23, v22 offset:{ROWI}
s_mov_b64 exec, -1
L_last:
s_branch L_flush
""")

KAL = OPT.get('KAL', 12)
body, npad = pad(L, verbose=bool(OPT.get('V')))
hdr = open('standalone__edge_featured_mpnn_mpnn__graph.s.ref').read().split('; Override')[0]
def emit(body):
    out = hdr + f"; @launch grid=(256,1,1) block=(1024,1,1) lds={LDS}\n"
    out += f'.amdgcn_target "amdgcn-amd-amdhsa--gfx950"\n.text\n.globl {KN}\n.p2align {KAL}\n.type {KN},@function\n'
    out += "\n".join(body) + "\n"
    out += f""".section .rodata,"a"
.p2align 6
.amdhsa_kernel {KN}
  .amdhsa_next_free_vgpr 128
  .amdhsa_next_free_sgpr 102
  .amdhsa_accum_offset 128
  .amdhsa_group_segment_fixed_size 0
  .amdhsa_kernarg_size 88
  .amdhsa_user_sgpr_count 2
  .amdhsa_user_sgpr_kernarg_segment_ptr 1
  .amdhsa_system_sgpr_workgroup_id_x 1
.end_amdhsa_kernel
"""
    return out
import subprocess, re
def offsets(body):
    t = []; k = 0
    for b in body:
        if b.startswith(';@'): t.append(f"M_{k}:"); k += 1
        else: t.append(b)
    open('_m.s', 'w').write(emit(t))
    subprocess.run(["clang", "-x", "assembler", "-target", "amdgcn-amd-amdhsa", "-mcpu=gfx950", "-c", "_m.s", "-o", "_m.o"], check=True)
    o = subprocess.run(["llvm-objdump", "-t", "_m.o"], capture_output=True, text=True).stdout
    d = {int(m.group(2)): int(m.group(1), 16) for m in re.finditer(r"^([0-9a-f]+) .* M_(\d+)$", o, re.M)}
    return [d[i] for i in range(k)]
nb = []
for i, b in enumerate(body):
    nb.append(b)
    if b.strip().startswith('s_branch') and i+1 < len(body) and body[i+1].endswith(':'): nb.append(';@dead')
body = nb
def place(body, chosen, chains):
    out = []; k = 0
    for b in body:
        if not b.startswith(';@'): out.append(b); continue
        out.append(b)
        if k in chosen:
            n = chosen[k]
            out.append(f"L_stub{n}:"); out.append(f"    {'s_branch' if b == ';@dead' else 's_cbranch_execz'} {chains[n]}")
        if b in (';@hopB', ';@hopW') and chosen:
            ws = {';@hopB': range(8, 15), ';@hopW': (15,)}[b]
            if any(w in first for w in ws): out.append("    s_mov_b64 exec, 0")
            for w in ws:
                if w in first:
                    if b == ';@hopW': out.append(f"    s_branch L_stub{first[w]}")
                    else: out.append(f"    s_cmp_eq_u32 s3, {w}"); out.append(f"    s_cbranch_scc1 L_stub{first[w]}")
        k += 1
    return out
if OPT.get('WARM', 1):
    marks = [b for b in body if b.startswith(';@')]
    chosen = {}; chains = {}; first = {}
    COV = OPT.get('COV', 1024)
    for it in range(6):
        off = offsets(place(body, chosen, chains))
        g0 = off[marks.index(';@g0')]; g1 = off[marks.index(';@g1')]; b0 = off[marks.index(';@hopB')]
        sel = []; gap = 0
        for lo, hi, forced in ((b0, g0 - 64, 0), (g0 - 64, off[marks.index(';@cold')], 1)):
            cand = [k for k, m in enumerate(marks) if m in (';@spot', ';@dead') and lo <= off[k] < hi and m != ';@hopB']
            end = min((lo & ~127) + COV, (lo | 4095) + 1)
            if forced: sel.append(cand[0]); end = min((off[cand[0]] & ~127) + COV + 128, (off[cand[0]] | 4095) + 1)
            while end < hi:
                c = [k for k in cand if (off[k] & ~127) <= end and (not sel or off[k] > off[sel[-1]]) and (off[k] >> 12) == (end >> 12) and off[k] > end - 640]
                d = [k for k in c if marks[k] == ';@dead' and off[k] > end - 256]
                if d: k = d[-1]
                elif c: k = c[-1]
                else:
                    c = [k for k in cand if off[k] > end]
                    if not c: break
                    k = c[0]; gap += (off[k] & ~127) - end
                sel.append(k)
                end = min((off[k] & ~127) + COV + 128, (off[k] | 4095) + 1)
        new = {k: n for n, k in enumerate(sel)}
        per = {w: [] for w in range(8, 16)}; j = 0
        for n, k in enumerate(sel):
            if g0 - 64 <= off[k] < g1: per[15].append(n)
            else: per[8 + j % 7].append(n); j += 1
        first = {w: v[0] for w, v in per.items() if v}
        chains = {}
        for w, v in per.items():
            back = 'L_W15cont' if w == 15 else 'L_Bback'
            for i, n in enumerate(v): chains[n] = f"L_stub{v[i+1]}" if i+1 < len(v) else back
        if new == chosen: break
        chosen = new
    print("stubs", len(sel), "gap", gap, [hex(off[k]) + marks[k][2] for k in sel], hex(b0), hex(g0), hex(g1), hex(hi), file=sys.stderr)
    body = place(body, chosen, chains)
body = [b for b in body if not b.startswith(';@')]
open(OPT.get('OUT', 'k.s'), 'w').write(emit(body))
print("pads", npad, "lines", len(body), file=sys.stderr)
```

```python
import sys, os, struct
sys.path.insert(0, os.path.dirname(os.path.abspath(__file__)))
from asmlib import *

OPT = dict(TS=0, FORCE_SAFE=0, FORCE_RECOV=0, FORCE_GUARD=0, POLLMAX=6000, SLP=8, NT=1, PDELAY=8, LPRIO=2, PUBT=3, HOOK=1, EP=7, WBM=6,
           PRIO='3210')
for a in sys.argv[1:]:
    k, v = a.split('=')
    OPT[k] = int(v) if v.lstrip('-').isdigit() and k not in ('PRIO', 'GPRIO') else v
TS = OPT['TS']; POLLMAX = OPT['POLLMAX']; SLP = OPT['SLP']
SC = 'sc1'
KN = "standalone__edge_featured_mpnn_mpnn__graph_kernel"

def f32(x): return "0x%08x" % struct.unpack('<I', struct.pack('<f', x))[0]
NLOG2E = f32(-1.4426950408889634); NLN2 = f32(-0.6931471805599453)

N = 25000; E = 400000; CH = 1564
PB0 = 512
WS_REC = 0xD00000; REC_STRIDE = 12544; WS_OFF = 0x1040000; WS_PF = 0x1080000; WS_TS = 0x1500000; WS_SIZE = 0x2000000
QBLK = 14336; QROW = 144
CTR = 0; KEY = 256; SORT = 768; ROWI = 1280; CW = 2048; CB = 3072; QB = 4096
STG = QB + 8*QBLK; CNT = STG + 12544; START = CNT + 1024; XB = START + 1024; LDS = 163840
NL = STG; NCAP = 46; WL = NL + 98*NCAP*4; HL = 768; LW = 2*HL; Q3P = LDS - 2048
assert XB % 256 == 0 and XB + 28672 <= LDS and WL + 16*LW + 64 <= Q3P and WL % 16 == 0
C_REC, C_PA, C_GO, C_ABORT, C_W2, C_Q, C_PFA, C_X, C_S2, C_S3, C_WB = 0, 4, 8, 12, 16, 20, 28, 32, 40, 44, 48
TAIL7 = XB + 25600
TGT = 64
C_G = 192
C_SLOT = 60
ROT = 0; WB0 = OPT.get('BASE', 238) << 20; PB0 += WB0; WS_REC += WB0; WS_OFF += WB0; WS_PF += WB0; assert WS_PF + 16384 <= 1 << 28 and WB0 + 32768*512 + 2048 <= 1 << 28; DBK = OPT.get('DBK', 4); DP = 's[0:1]'
EP = OPT['EP']; WBM = OPT['WBM']; assert OPT['PUBT'] >= 6 - EP and STG + 7*2048 <= XB
RA = lambda r: f's_add_u32 s{r}, s{r}, s70' if ROT else ''
HSB = QB + 65536; HROW = 528
assert HSB + 106*HROW <= WL
R = 4; NS = 6
SB0 = 56
def Q(k): return SB0 + 12*k
def Nn(k): return SB0 + 12*k + 4
def Dd(k): return SB0 + 12*k + 8
RING = (24, 28, 44, 48); WA = 4; WB = 52; VN = 40
SPIN = 0x100000
BIAS = 128
ASG = [[28, 34, 46, 48], [1, 29, 45], [10, 19, 37], [3, 24, 42], [0, 39, 47], [9, 25, 32], [2, 23, 44], [4, 20, 43], [8, 26, 30], [6, 21, 40], [5, 31, 33], [11, 18, 38], [12, 15, 36], [7, 16, 41], [13, 17, 35], [14, 22, 27]]
assert sorted(sum(ASG, [])) == list(range(49))

L = []
def A(s):
    for line in s.strip('\n').split('\n'):
        line = line.strip()
        if not line: continue
        L.append(line if line.endswith(':') or line.startswith(('.', ';')) else "    " + line)
def srd(r, lo, size, w3="0x00020000"):
    A(f"s_mov_b32 s{r}, s{lo}\ns_mov_b32 s{r+1}, s{lo+1}\ns_mov_b32 s{r+2}, {size}\ns_mov_b32 s{r+3}, {w3}")
def ts(i):
    if TS: A(f"s_memrealtime s[100:101]\ns_waitcnt lgkmcnt(0)\nv_writelane_b32 v41, s100, {i}")
def bar(): A("s_barrier")
def spot(dead=False): A(";@dead" if dead else ";@spot")
uid = [0]
def lab(p):
    uid[0] += 1; return f"L_{p}_{uid[0]}"
def dpp(op, v, ctl, m="row_mask:0xf bank_mask:0xf bound_ctrl:0"):
    A(f"{op}_dpp v{v}, v{v}, v{v} {ctl} {m}")
def dpp_add(v, ctl, m="row_mask:0xf bank_mask:0xf bound_ctrl:0"): dpp("v_add_u32", v, ctl, m)
def bucket_range(cur, b, n0, n1):
    A(f"""
    s_and_b32 s{b}, s{cur}, 7
    s_lshl_b32 s{b}, s{b}, 5
    s_lshr_b32 s27, s{cur}, 3
    s_or_b32 s{b}, s{b}, s27
    s_mul_i32 s{n0}, s{b}, 6400845
    s_add_u32 s{n0}, s{n0}, 65535
    s_add_u32 s{n1}, s{n0}, 6400845
    s_lshr_b32 s{n0}, s{n0}, 16
    s_lshr_b32 s{n1}, s{n1}, 16
    s_min_u32 s{n1}, s{n1}, {N}
    """)
def lds_or(off, val):
    A(f"v_mov_b32 v43, {val}\nds_or_b32 v42, v43 offset:{off}")
def lds_spin(off, dst, cmp_ok, ok, tmp=58, slp=1, av=42):
    l = lab('spin')
    A(f"""
    s_mov_b32 s{tmp}, 0
    {l}:
    ds_read_b32 v43, v{av} offset:{off}
    s_add_u32 s{tmp}, s{tmp}, 1
    s_waitcnt lgkmcnt(0)
    v_readfirstlane_b32 s{dst}, v43
    {cmp_ok}
    s_cbranch_scc1 {ok}
    s_sleep {slp}
    s_cmp_lt_u32 s{tmp}, {SPIN}
    s_cbranch_scc1 {l}
    """)
def lsync(off, tmp=60):
    l = lab('ls'); ok = lab('lsok')
    A(f"""
    s_mov_b64 exec, 1
    ds_add_u32 v42, v10 offset:{off}
    s_mov_b64 exec, -1
    s_mov_b32 s{tmp}, 0
    {l}:
    ds_read_b32 v43, v42 offset:{off}
    s_add_u32 s{tmp}, s{tmp}, 1
    s_waitcnt lgkmcnt(0)
    v_readfirstlane_b32 s{tmp+1}, v43
    s_cmp_ge_u32 s{tmp+1}, 7
    s_cbranch_scc1 {ok}
    s_cmp_lt_u32 s{tmp}, {SPIN}
    s_cbranch_scc1 {l}
    {ok}:
    """)
NT = 'nt' if OPT['NT'] else ''
def caddr(v, t, s, rot=True):
    A(f"""
    v_lshrrev_b32 v{v}, 3, v0
    v_lshlrev_b32 v{v}, 13, v{v}
    v_and_b32 v{t}, 7, v0
    v_lshl_add_u32 v{v}, v{t}, 7, v{v}
    v_lshlrev_b32 v{t}, 2, v0
    s_and_b32 s{s}, s2, 7
    s_lshl_b32 s{s}, s{s}, 10
    s_add_u32 s{s}, s{s}, {WS_PF}
    {RA(s) if rot else ''}
    """)
def signal(ty, v, one, s):
    A(f"""
    s_mov_b64 exec, 0xff
    v_lshlrev_b32 v{v}, 10, v0
    v_mov_b32 v{one}, 1
    s_lshl_b32 s{s}, s2, 4
    s_and_b32 s{s}, s{s}, 0x380
    s_add_u32 s{s}, s{s}, {WS_PF + 8192*ty}
    {RA(s)}
    buffer_atomic_add v{one}, v{v}, s[44:47], s{s} offen sc1
    """)
    if ty == 1: A(f"s_mov_b64 exec, 1\nglobal_atomic_add v42, v{one}, {DP} sc1")
def snap():
    A(f"""
    v_lshrrev_b32 v27, 1, v0
    s_lshl_b32 s56, s62, 5
    v_add_u32 v27, s56, v27
    v_lshlrev_b32 v25, 10, v27
    s_lshl_b32 s98, s53, 2
    s_add_u32 s98, s98, {WS_OFF}
    """)
def initnd(regs):
    for k in range(NS):
        for r, val in ((Nn(k), "0"), (Dd(k), "s[60:61]")):
            if r in regs: A(f"v_mov_b64 v[{r}:{r+1}], {val}\nv_mov_b64 v[{r+2}:{r+3}], {val}")
ALLND = [r for k in range(NS) for r in (Nn(k), Dd(k))]
def prep():
    spot()
    A("s_mov_b32 s22, 0")
    for w in range(16):
        a = ASG[w] + [0]
        A(f"s_cmp_eq_u32 s3, {w}\ns_cselect_b32 s22, {hex(a[0] | a[1] << 8 | a[2] << 16 | a[3] << 24)}, s22")
    A(f"""
    ;@spot
    v_mul_u32_u24 v33, 43, v0
    v_lshrrev_b32 v33, 7, v33
    v_mul_u32_u24 v34, 24, v33
    v_lshlrev_b32 v32, 3, v0
    v_sub_u32 v32, v32, v34
    v_cmp_lt_u32 vcc, 14, v0
    v_cndmask_b32 v32, v32, 24, vcc
    v_bfe_u32 v32, s22, v32, 8
    v_lshlrev_b32 v32, 3, v32
    v_mad_u32_u24 v33, v33, 6, 8
    v_subrev_u32 v34, 6, v33
    v_min_u32 v33, 26, v33
    v_min_u32 v34, 26, v34
    s_mov_b32 s56, {(127*NCAP + BIAS)*8193}
    v_lshl_add_u32 v35, v0, 26, s56
    v_lshrrev_b32 v43, 5, v0
    s_bfe_u32 s56, s22, 0x80000
    s_bfe_u32 s57, s22, 0x80008
    s_bfe_u32 s58, s22, 0x80010
    s_lshl_b32 s56, s56, 3
    s_lshl_b32 s57, s57, 3
    s_lshl_b32 s58, s58, 3
    v_lshl_add_u32 v36, v43, 2, s56
    v_lshl_add_u32 v37, v43, 2, s57
    v_lshl_add_u32 v38, v43, 2, s58
    ;@spot
    v_bfe_u32 v43, v0, 2, 3
    v_mul_u32_u24 v39, {QBLK}, v43
    v_and_b32 v43, 3, v0
    v_lshl_add_u32 v39, v43, 5, v39
    v_and_b32 v43, 4, v0
    v_lshl_add_u32 v39, v43, 2, v39
    v_and_b32 v43, 8, v0
    v_lshl_add_u32 v39, v43, 4, v39
    v_add_u32 v39, {QB + 127*QROW}, v39
    s_lshl_b32 s56, s3, 6
    v_and_b32 v40, 60, v0
    v_add_u32 v40, s56, v40
    """)

def gaddr():
    A(f"""
    v_lshrrev_b32 v7, 4, v0
    v_and_b32 v6, 15, v0
    v_xor_b32 v6, v6, v7
    s_and_b32 s61, s3, 3
    s_lshl_b32 s61, s61, 2
    v_xor_b32 v6, s61, v6
    v_lshlrev_b32 v6, 4, v6
    v_lshl_add_u32 v6, v7, 8, v6
    s_lshl_b32 s61, s3, 10
    s_add_u32 s64, s61, {XB}
    s_lshl_b32 s65, s49, 8
    s_add_u32 s65, s65, s61
    v_lshrrev_b32 v5, 2, v0
    v_lshlrev_b32 v5, 9, v5
    v_lshrrev_b32 v8, 5, v0
    v_lshlrev_b32 v8, 1, v8
    v_and_b32 v3, 3, v0
    v_xor_b32 v8, v8, v3
    v_lshl_add_u32 v5, v8, 4, v5
    s_lshl_b32 s56, s3, 6
    v_add_u32 v1, s56, v5
    s_mul_i32 s59, s3, {QBLK}
    s_add_u32 s59, s59, {QB}
    """)
def tailb(b, d):
    A(f"s_lshl_b32 s{d}, s{b}, 11\ns_add_u32 s{d}, s{d}, {STG}\ns_cmp_eq_u32 s{b}, 7\ns_cselect_b32 s{d}, {TAIL7}, s{d}")
def wdma(base, n=8, ldsoff=0, av=1, sb=59):
    A(f"s_add_u32 m0, s{sb}, {ldsoff}\ns_mov_b32 s56, {base}")
    for i in range(n):
        A(f"buffer_load_dwordx4 v{av}, s[28:31], s56 offen lds")
        if i < n-1: A("s_add_u32 m0, m0, 1024\ns_add_u32 s56, s56, 8192")
A(f"""
{KN}:
s_cmp_ge_u32 s2, 256
s_cbranch_scc1 L_end
s_load_dwordx16 s[4:19], s[0:1], 0
s_load_dwordx2 s[20:21], s[0:1], 64
s_load_dwordx2 s[24:25], s[0:1], 80
s_load_dwordx2 s[0:1], s[0:1], 72
v_lshrrev_b32 v1, 6, v0
v_and_b32 v0, 63, v0
v_readfirstlane_b32 s3, v1
v_mov_b32 v42, 0
v_mov_b32 v41, 0
s_cmp_lg_u32 s3, 15
s_cbranch_scc1 L_noinit
v_mov_b64 v[16:17], 0
v_mov_b64 v[18:19], 0
s_mov_b32 s56, {CNT}
v_lshl_add_u32 v2, v0, 4, s56
v_lshlrev_b32 v23, 2, v0
v_sub_u32 v20, 127, v0
v_sub_u32 v21, 63, v0
ds_write_b128 v2, v[16:19]
ds_write_b32 v23, v16
ds_write2st64_b32 v23, v20, v21 offset0:{KEY//256} offset1:{KEY//256+1}
L_noinit:
s_mov_b32 s26, 0xffff0000
s_mov_b32 s54, 0
s_mov_b32 s55, 0
s_mov_b32 s48, s2
""")
bucket_range(2, 53, 51, 52)
A("s_mov_b32 s49, s51\ns_mov_b32 s50, s52\ns_sub_u32 s52, s52, s51\ns_sub_u32 s62, s3, 8")
A(f"""
s_mov_b32 s31, 0x00020000
s_mov_b32 s35, 0x00020000
s_mov_b32 s38, {E*2}
s_mov_b32 s39, 0x00020000
s_mov_b32 s46, 0x10000000
s_mov_b32 s70, {WB0}
s_mov_b32 s47, 0x00020000
s_cmp_lt_u32 s3, 8
s_cbranch_scc1 L_Gfirst
s_lshl_b32 s56, s62, 6
v_add_u32 v1, s56, v0
s_mul_i32 s57, s2, {CH}
v_lshl_add_u32 v2, v1, 2, s57
v_lshlrev_b32 v3, 2, v2
v_lshlrev_b32 v4, 1, v2
s_mov_b32 s30, {E*4}
s_mov_b32 s34, {E*4}
s_cmp_eq_u32 s3, 15
s_cbranch_scc1 L_W15
s_waitcnt lgkmcnt(0)
s_mov_b32 s28, s10
s_mov_b32 s29, s11
s_mov_b32 s32, s8
s_mov_b32 s33, s9
s_mov_b32 s36, s6
s_mov_b32 s37, s7
buffer_load_dwordx4 v[44:47], v3, s[28:31], 0 offen {NT}
buffer_load_dwordx4 v[48:51], v3, s[32:35], 0 offen {NT}
buffer_load_dwordx2 v[52:53], v4, s[36:39], 0 offen {NT}
s_barrier
s_branch L_Lcont
L_W15:
""")
CPF = '''v_cmp_gt_u32 vcc, s58, v34
s_and_b64 exec, exec, vcc
s_cbranch_execz L_nocpf
global_load_dword v35, v34, s[56:57]
L_nocpf:
s_mov_b64 exec, 0xffff
''' if OPT.get('CPF', 1) else ''
SLOTC = (f's_bfe_u32 s70, s60, {hex(ROT | 3 << 16)}\ns_mul_i32 s70, s70, 0x1800000\n' if ROT < 32 else f's_mov_b32 s70, {ROT << 20}\n') + f'''v_mov_b32 v16, s70
ds_write_b32 v42, v16 offset:{C_SLOT}
s_add_u32 s23, s23, s70''' if ROT else ''
caddr(52, 23, 23, False)
if 0 < ROT < 32: A('s_memrealtime s[60:61]')
A(f"""
s_lshr_b32 s56, s2, 3
s_lshl_b32 s56, s56, 11
v_lshl_add_u32 v28, v0, 7, s56
v_add_u32 v29, 0x10000, v28
v_lshrrev_b32 v32, 3, v0
v_lshlrev_b32 v32, 6, v32
v_and_b32 v33, 1, v0
v_lshl_add_u32 v32, v33, 5, v32
v_bfe_u32 v33, v0, 1, 2
v_lshl_add_u32 v32, v33, 3, v32
v_add_u32 v33, 0x20000, v32
v_lshrrev_b32 v34, 1, v28
v_and_b32 v34, 0xffffff80, v34
s_getpc_b64 s[56:57]
L_pc:
s_mov_b32 s58, L_last-L_pc
s_waitcnt lgkmcnt(0)
{SLOTC}
s_mov_b32 s44, s24
s_mov_b32 s45, s25
s_mov_b64 exec, 0xffff
buffer_load_dword v53, v52, s[44:47], s23 offen sc1
global_load_dword v55, v42, {DP} sc1
{CPF}global_load_dword v30, v28, s[12:13]
global_load_dword v30, v29, s[12:13]
global_load_dword v31, v28, s[16:17]
s_mov_b64 exec, -1
global_load_dwordx2 v[36:37], v33, s[12:13]
global_load_dwordx2 v[38:39], v32, s[14:15]
{'s_waitcnt lgkmcnt(0)' if ROT else ''}
s_barrier
;@hopW
s_branch L_W15cont
L_Gfirst:
""")
gaddr()
A(f"""
s_mov_b32 s30, {257*512}
s_mov_b32 s34, {N*256}
s_waitcnt lgkmcnt(0)
s_mov_b32 s28, s12
s_mov_b32 s29, s13
s_mov_b32 s32, s4
s_mov_b32 s33, s5
""")
if OPT.get('GDP'): A(f"s_setprio {OPT['GDP']}")
ts(0)
bar()
ts(20)
WF = OPT.get('WF', 0)
if WF: wdma(0, WF)
if OPT.get('XD'): A(f"s_sleep {OPT['XD']}")
A("s_mov_b32 m0, s64")
for i in range(3): A(f"buffer_load_dwordx4 v6, s[32:35], s65 offen {NT} lds\ns_add_u32 m0, m0, 8192\ns_add_u32 s65, s65, 8192")
A(f"s_cmp_lg_u32 s3, 0\ns_cbranch_scc1 L_Gw\nbuffer_load_dwordx4 v6, s[32:35], s65 offen {NT} lds\nL_Gw:")
if WF < 8: wdma(8192*WF, 8-WF, 1024*WF)
A("s_branch L_Gcont")
def common():
    A(f"""
    s_mov_b32 s44, s24
    s_mov_b32 s45, s25
    s_mov_b32 s36, s6
    s_mov_b32 s37, s7
    s_mov_b32 s40, s24
    s_and_b32 s41, s25, 0xffff
    s_or_b32 s41, s41, 0x00100000
    s_mov_b32 s42, 64
    s_mov_b32 s43, 0x00800000
    """)
A(";@warm")
A(f"L_Lcont:\ns_mov_b64 exec, -1\ns_setprio {OPT['LPRIO']}\ns_mov_b32 s23, 0")
common()
ts(0)
ts(20)
DG = OPT.get('DG', 0)
if DG == 1: A("s_branch L_fin")
A(f"""
s_lshl_b32 s99, s2, 10
s_add_u32 s99, s99, {WS_OFF}
v_lshlrev_b32 v14, 4, v0
{f'ds_read_b32 v16, v42 offset:{C_SLOT}' if ROT else ''}
""")
snap()
A(f"""
v_cmp_gt_u32 vcc, {CH//4}, v1
v_mov_b32 v3, {E}
v_cmp_gt_u32 s[96:97], v3, v2
s_and_b64 s[96:97], s[96:97], vcc
v_mov_b32 v10, 1
s_movk_i32 s56, 2684
s_mov_b32 s57, {CNT}
s_movk_i32 s58, {N-1}
v_lshl_add_u32 v11, v0, 4, s57
""")
ts(22); spot()
A(f"s_waitcnt vmcnt(2)")
ts(1); spot()
A("s_mov_b64 exec, s[96:97]")
for i in range(4):
    A(f"""
    v_min_u32 v{44+i}, s58, v{44+i}
    v_mul_u32_u24 v{54+i}, s56, v{44+i}
    v_lshrrev_b32 v{54+i}, 18, v{54+i}
    v_lshl_add_u32 v{54+i}, v{54+i}, 2, s57
    ds_add_rtn_u32 v{58+i}, v{54+i}, v10
    """)
lsync(C_S2)
if ROT: A(f"v_readfirstlane_b32 s70, v16\n{RA(98)}\n{RA(99)}")
ts(2); spot()
SL = OPT.get('SL', 4)
assert CNT % 128 == 0
def slc(i):
    if SL >= 0: return f"v_bfe_u32 v62, v{48+i}, {SL}, 2"
    if SL == -1: return f"v_mul_u32_u24 v62, s56, v{48+i}\nv_lshrrev_b32 v62, 24, v62"
    return f"v_mul_u32_u24 v62, s56, v{48+i}\nv_lshrrev_b32 v62, 23, v62\nv_sub_u32 v62, v62, v{20+i}\nv_bfe_u32 v62, v62, 1, 2"
A(f"ds_read_b128 v[64:67], v11")
if SL == -2:
    for i in range(4): A(f"v_lshrrev_b32 v{20+i}, 7, v{54+i}\nv_add_u32 v{20+i}, {(-(CNT >> 7) + OPT.get('SLO', 0)) & 7}, v{20+i}")
A("s_waitcnt vmcnt(0)")
for i in range(4):
    A(f"""
    v_min_u32 v{48+i}, s58, v{48+i}
    v_and_b32 v{44+i}, 127, v{44+i}
    {slc(i)}
    v_mad_u32_u24 v62, v62, 6, 8
    v_lshl_or_b32 v{44+i}, v{44+i}, 7, v62
    """)
A(f"""
s_waitcnt lgkmcnt(0)
v_add_u32 v69, v64, v65
v_add_u32 v70, v69, v66
v_add_u32 v72, v70, v67
v_mov_b32 v73, v72
v_lshl_or_b32 v48, v52, 16, v48
v_and_or_b32 v49, v52, s26, v49
""")
dpp_add(73, "row_shr:1")
A("v_lshl_or_b32 v50, v53, 16, v50\nv_and_or_b32 v51, v53, s26, v51")
dpp_add(73, "row_shr:2"); dpp_add(73, "row_shr:4"); dpp_add(73, "row_shr:8")
dpp_add(73, "row_bcast:15", "row_mask:0xa bank_mask:0xf"); dpp_add(73, "row_bcast:31", "row_mask:0xc bank_mask:0xf")
A(f"""
;@spot
v_sub_u32 v76, v73, v72
v_add_u32 v77, v76, v64
v_add_u32 v78, v76, v69
v_add_u32 v79, v76, v70
ds_write_b128 v11, v[76:79] offset:{START-CNT}
s_mov_b64 exec, s[96:97]
""")
for i in range(4): A(f"ds_read_b32 v{54+i}, v{54+i} offset:{START-CNT}")
A(f"s_mov_b32 s57, {STG}")
for i in range(4): A(f"v_lshl_add_u32 v{58+i}, v{58+i}, 3, s57")
for i in range(4):
    A(f"""
    s_waitcnt lgkmcnt(3)
    v_lshl_add_u32 v{54+i}, v{54+i}, 3, v{58+i}
    ds_write2_b32 v{54+i}, v{48+i}, v{44+i} offset0:0 offset1:1
    """)
A(f"""
s_mov_b64 exec, -1
v_lshl_add_u32 v12, v1, 4, s57
v_lshlrev_b32 v13, 4, v1
s_mul_i32 s56, s2, {REC_STRIDE}
s_add_u32 s56, s56, {WS_REC}
{RA(56)}
s_add_u32 s57, s56, 7168
v_cmp_gt_u32 vcc, 334, v1
""")
lsync(C_S3)
ts(3); spot()
A(f"""
ds_read_b128 v[84:87], v12
ds_read_b128 v[88:91], v12 offset:7168
v_lshl_or_b32 v80, v64, 16, v76
v_lshl_or_b32 v81, v65, 16, v77
v_lshl_or_b32 v82, v66, 16, v78
v_lshl_or_b32 v83, v67, 16, v79
s_waitcnt lgkmcnt(1)
buffer_store_dwordx4 v[84:87], v13, s[44:47], s56 offen {SC}
s_cbranch_vccz L_nost2
s_mov_b64 exec, vcc
s_waitcnt lgkmcnt(0)
buffer_store_dwordx4 v[88:91], v13, s[44:47], s57 offen {SC}
s_branch L_st3
L_nost2:
buffer_store_dwordx4 v[80:83], v14, s[44:47], s99 offen {SC}
L_st3:
s_mov_b64 exec, 1
s_waitcnt vmcnt(0) lgkmcnt(0)
ds_add_rtn_u32 v15, v42, v10 offset:{C_REC}
s_mov_b64 exec, -1
s_waitcnt lgkmcnt(0)
v_readfirstlane_b32 s58, v15
s_cmp_lg_u32 s58, 6
s_cbranch_scc1 L_B0
""")
signal(0, 13, 14, 56)
A("s_branch L_B0")
spot(True)
TW = OPT.get('TW', 0)
TLBW = f'''v_lshlrev_b32 v30, {TW}, v0
s_lshl_b32 s56, s2, 9
s_add_u32 s56, s56, {WB0}
s_mov_b64 exec, {hex((1 << min(64, (16 << 20) >> TW)) - 1) if TW > 18 else -1}
buffer_load_dword v31, v30, s[44:47], s56 offen sc1''' if TW else ''
A(f"L_W15cont:\ns_mov_b64 exec, -1\nv_lshlrev_b32 v1, 4, v0\ns_mov_b32 s28, s10\ns_mov_b32 s29, s11\ns_mov_b32 s32, s8\ns_mov_b32 s33, s9")
common()
ts(0)
snap()
A(f"""
{RA(98)}
s_setprio {OPT['LPRIO']}
s_mov_b32 s56, {NLOG2E}
s_mov_b32 s57, {NLOG2E}
s_waitcnt vmcnt(0)
v_add_u32 v53, {33 if OPT.get('FORCE_LATE') else 32}, v53
v_readfirstlane_b32 s100, v55
s_sub_u32 s101, s100, 1
s_cmp_lt_u32 s100, 256
s_cselect_b32 s100, 256, s101
v_lshlrev_b32 v4, 16, v36
v_and_b32 v5, s26, v36
v_lshlrev_b32 v6, 16, v37
v_and_b32 v7, s26, v37
v_lshlrev_b32 v32, 16, v38
v_and_b32 v33, s26, v38
v_lshlrev_b32 v34, 16, v39
v_and_b32 v35, s26, v39
v_pk_mul_f32 v[4:5], v[4:5], s[56:57]
v_pk_mul_f32 v[6:7], v[6:7], s[56:57]
v_pk_mul_f32 v[32:33], v[32:33], s[56:57]
v_pk_mul_f32 v[34:35], v[34:35], s[56:57]
ds_write_b128 v1, v[4:7] offset:{CW}
ds_write_b128 v1, v[32:35] offset:{CB}
{TLBW}
""")
A("L_B0:\ns_mov_b64 exec, -1")
ts(4); spot()
if DG in (1, 2): A("s_branch L_fin")
srd(28, 12, 257*512)
A(f"""
v_lshrrev_b32 v16, 2, v0
v_lshlrev_b32 v16, 9, v16
v_lshrrev_b32 v17, 5, v0
v_lshlrev_b32 v17, 1, v17
v_and_b32 v18, 3, v0
v_xor_b32 v17, v17, v18
v_lshl_add_u32 v16, v17, 4, v16
s_lshl_b32 s56, s62, 6
v_add_u32 v16, s56, v16
s_mul_i32 s59, s62, {QBLK}
s_add_u32 s59, s59, {QB}
""")
if OPT.get('WBX', 8):
    lds_spin(C_X, 57, f"s_cmp_ge_u32 s57, {OPT.get('WBX', 8)}", "L_wb0", slp=2)
else:
    A("s_cmp_lg_u32 s3, 15\ns_cbranch_scc1 L_wb0")
    lds_spin(C_S3, 57, "s_cmp_ge_u32 s57, 7", "L_wb0", slp=2)
A("L_wb0:")
wdma(65536, 6, 8192, 16)
tailb(62, 64)
A(f"""
v_and_b32 v19, 1, v0
v_lshlrev_b32 v19, 1, v19
s_movk_i32 s57, {REC_STRIDE}
v_mul_u32_u24 v10, s57, v27
v_lshl_add_u32 v10, v19, 3, v10
""")
prep()
lds_spin(C_REC, 57, "s_cmp_ge_u32 s57, 7", "L_own", slp=1)
A("L_own:")
wdma(65536+6*8192, 2, 0, 16, 64)
A(f"v_mov_b32 v17, 1\ns_mov_b64 exec, 1\ns_waitcnt vmcnt(0)\nds_add_u32 v42, v17 offset:{C_WB}\ns_mov_b64 exec, -1")
ts(23)
A("s_cmp_eq_u32 s3, 15\ns_cbranch_scc1 L_w15b\n;@hopB\nL_Bback:\ns_mov_b64 exec, -1")
lds_spin(C_GO, 57, "s_cmp_lg_u32 s57, 0", "L_goseen", slp=2)
A(f"""
L_goseen:
s_cmp_eq_u32 s57, 1
s_cbranch_scc1 L_offok
L_B0_to:
s_mov_b64 exec, -1
""")
lds_or(C_ABORT, 2)
A("s_mov_b32 s63, 0\ns_branch L_B1done")
spot(True)
A("L_w15b:")
if OPT['PDELAY']: A(f"s_sleep {OPT['PDELAY']}")
ts(24); spot()
A(f"""
s_mov_b64 exec, 0xff
s_mov_b32 s58, 0
L_offp:
buffer_load_dword v18, v52, s[44:47], s23 offen sc1
s_add_u32 s58, s58, 1
s_waitcnt vmcnt(0)
v_cmp_ne_u32 vcc, v18, v53
""")
if OPT['FORCE_RECOV'] != 4: A("s_cbranch_vccz L_go\ns_mov_b64 exec, vcc")
def dbg(cnt, ty, v, ok):
    l = lab('dk')
    A(f"""
    s_cmp_lt_u32 s{cnt}, {(6, 16)[ty]}
    s_cbranch_scc1 {l}
    global_load_dword v{v}, v42, {DP} sc1
    s_waitcnt vmcnt(0)
    v_readfirstlane_b32 s57, v{v}
    s_cmp_eq_u32 s57, s100
    s_cbranch_scc1 {ok}
    {l}:
    """)
if OPT['FORCE_RECOV'] != 4: dbg(58, 0, 18, "L_go")
A(f"""
s_sleep {SLP}
s_cmp_lt_u32 s58, {2 if OPT['FORCE_RECOV'] == 4 else POLLMAX}
s_cbranch_scc1 L_offp
""")
lds_or(C_GO, 2)
A("s_branch L_B0_to\nL_go:")
lds_or(C_GO, 1)
if TS: A("v_writelane_b32 v41, s58, 40")
A("s_mov_b64 exec, -1")
A("L_offok:\nbuffer_load_dword v18, v25, s[44:47], s98 offen sc1")
ts(5); spot()
A("s_waitcnt vmcnt(0)")
ts(6); spot()
A(f"""
v_and_b32 v16, 0xffff, v18
v_lshrrev_b32 v11, 16, v18
v_lshl_add_u32 v10, v16, 3, v10
v_cmp_lt_u32 vcc, 24, v11
v_sub_u32 v11, v11, v19
{f's_add_u32 s56, s70, {WS_REC}' if ROT else f's_mov_b32 s56, {WS_REC}'}
s_mov_b32 s63, 0
""")
for i in range(6):
    m = 72+4*i
    A(f"""
    v_cmp_lt_i32 s[{m}:{m+1}], {4*i}, v11
    s_cmp_eq_u64 s[{m}:{m+1}], 0
    s_cbranch_scc1 L_ldone
    s_mov_b64 exec, s[{m}:{m+1}]
    buffer_load_dwordx4 v[{Nn(i)}:{Nn(i)+3}], v10, s[44:47], s56 offen offset:{32*i} sc1
    v_cmp_lt_i32 s[{m+2}:{m+3}], {4*i+1}, v11
    s_add_u32 s63, s63, 1
    """)
A(f"""
L_ldone:
s_mov_b64 exec, -1
s_cbranch_vccz L_noovf
""")
lds_or(C_ABORT, 1)
A(f"""
L_noovf:
s_lshl_b32 s57, s51, 7
v_mov_b32 v16, 0x41041
s_waitcnt vmcnt(0)
""")
ts(7)
spot()
for i in range(6):
    A(f"s_cmp_le_u32 s63, {i}\ns_cbranch_scc1 L_B1done")
    for j in range(2):
        d1 = Nn(i)+2*j+1; ad = Dd(i)+2*j; rk = ad+1; u = 20+j; m = 72+4*i+2*j
        A(f"""
        s_mov_b64 exec, s[{m}:{m+1}]
        v_subrev_u32 v{ad}, s57, v{d1}
        v_lshlrev_b32 v{u}, v{d1}, v16
        v_bfe_u32 v{ad}, v{ad}, 5, 9
        ds_add_rtn_u32 v{rk}, v{ad}, v{u} offset:{KEY}
        """)
A("L_B1done:\ns_mov_b64 exec, -1\ns_setprio 0\ns_waitcnt lgkmcnt(0)")
ts(8); spot()
if DG: A("s_branch L_fin")
bar()
ts(9); spot()
PRE = OPT.get('PRE', 2)
PREP = 's_mov_b64 exec, 0xff00\nbuffer_load_dword v54, v52, s[44:47], s23 offen sc1\ns_mov_b64 exec, -1'
def prepoll(n):
    if PRE == n: A(f"s_cmp_lg_u32 s3, 15\ns_cbranch_scc1 L_nopre2\ns_cmp_lg_u32 s54, 0\ns_cbranch_scc1 L_nopre2\n{PREP}\nL_nopre2:")
A(f"""
s_mov_b32 s57, {NL}
v_mov_b32 v20, 0
s_cmp_lg_u32 s3, 15
s_cbranch_scc1 L_nopre
{'s_setprio 3' if PRE else PREP}
L_nopre:
""")
for i in range(6):
    A(f"s_cmp_le_u32 s63, {i}\ns_cbranch_scc1 L_sc2")
    for j in range(2):
        ad = Dd(i)+2*j; rk = ad+1; m = 72+4*i+2*j; F = 4+2*i+j
        A(f"""
        s_mov_b64 exec, s[{m}:{m+1}]
        ds_read_b32 v{F}, v{ad} offset:{KEY}
        v_max_u32 v20, v20, v{rk}
        v_mad_u32_u24 v{ad}, v{ad}, {NCAP}, s57
        """)
A("L_sc2:\ns_mov_b64 exec, -1\n;@spot\ns_waitcnt lgkmcnt(0)")
for i in range(6):
    A(f"s_cmp_le_u32 s63, {i}\ns_cbranch_scc1 L_sc3")
    for j in range(2):
        w0 = Nn(i)+2*j; d1 = w0+1; ad = Dd(i)+2*j; rk = ad+1; m = 72+4*i+2*j; F = 4+2*i+j
        A(f"""
        s_mov_b64 exec, s[{m}:{m+1}]
        v_sub_u32 v{F}, v{F}, v{rk}
        v_lshl_add_u32 v{F}, v{F}, 6, v{rk}
        v_bfe_u32 v{F}, v{F}, v{d1}, 6
        v_lshl_add_u32 v{F}, v{F}, 2, v{ad}
        ds_write_b32 v{F}, v{w0}
        """)
A(f"""
L_sc3:
s_mov_b64 exec, -1
v_cmp_le_u32 vcc, {hex(NCAP << 26)}, v20
s_cbranch_vccz L_C2
""")
lds_or(C_ABORT, 1)
A("s_branch L_C2")
spot(True)

A(f"""
;@g0
L_Gcont:
;@spot
s_mov_b32 s23, 0
{f'ds_read_b32 v24, v42 offset:{C_SLOT}' if ROT else ''}
""")
common()
ts(21)
GSL = f's_waitcnt lgkmcnt(0)\nv_readfirstlane_b32 s70, v24\n{RA(60)}\n{RA(34)}' if ROT else ''
A(f"""
v_lshrrev_b32 v4, 4, v0
v_bfe_u32 v5, v0, 2, 2
v_lshl_add_u32 v5, v4, 3, v5
v_lshlrev_b32 v2, 6, v5
v_lshl_add_u32 v2, v3, 3, v2
v_and_b32 v5, 1, v4
v_lshl_add_u32 v2, v5, 5, v2
v_add_u32 v2, s59, v2
v_xor_b32 v3, 32, v2
v_and_b32 v5, 15, v0
v_xor_b32 v6, v4, v5
v_lshlrev_b32 v6, 4, v6
v_lshl_add_u32 v16, v5, 8, v6
v_add_u32 v16, {XB}, v16
v_xor_b32 v17, 64, v16
v_xor_b32 v18, 0x80, v16
v_xor_b32 v19, 0xc0, v16
;@spot
v_lshlrev_b32 v6, 9, v5
v_lshl_add_u32 v6, v4, 4, v6
s_lshl_b32 s56, s3, 6
v_add_u32 v6, s56, v6
v_mul_u32_u24 v7, {QROW}, v5
v_lshl_add_u32 v7, v4, 5, v7
s_and_b32 s56, s3, 1
s_lshl_b32 s56, s56, 4
s_and_b32 s57, s3, 2
s_lshl_b32 s57, s57, 6
s_add_u32 s56, s56, s57
s_add_u32 s56, s56, s59
v_add_u32 v7, s56, v7
;@spot
s_mov_b32 s32, s24
s_mov_b32 s33, s25
s_lshl_b32 s34, s50, 9
s_add_u32 s34, s34, {PB0}
s_mov_b32 s35, 0x00020000
s_mov_b32 s92, {NLOG2E}
s_lshl_b32 s60, s49, 9
s_add_u32 s60, s60, {PB0}
{GSL}
""")
tailb(3, 64)
A("s_sub_u32 s56, s64, s59\nv_add_u32 v20, s56, v2\nv_add_u32 v21, s56, v3")
ts(22); spot()
AF = 96; BFQ = ((44, 48, 52, 56), (68, 80, 88, 92)); ACC = (8, 24); PK = (32, 36, Nn(0), Dd(0), Nn(1), Dd(1), Nn(2))
def afrags(offs=(0, 2048, 4096, 6144)):
    for s in range(4):
        for a in range(2):
            for hf in range(2):
                r = AF + a*16 + s*4 + hf*2
                A(f"ds_read_b64_tr_b16 v[{r}:{r+1}], v{(2 if offs[s] >= 0 else 20)+a} offset:{max(offs[s], 0)+256*hf}")
def bfrQ(t):
    for s in range(4):
        r = BFQ[t & 1][s]
        A(f"ds_read_b128 v[{r}:{r+3}], v{16+s} offset:{4096*t}")
def grab(f, *a):
    n = len(L); f(*a); r = L[n:]; del L[n:]; return r
GP = OPT.get('GPRIO', '1100')
def gemm(post, nw, tail=None, pr='00'):
    for t in range(7):
        spot()
        if t == 0 or (t == OPT.get('GPT', 4) and pr[0] != pr[1]): A(f"s_setprio {pr[min(t, 1)]}")
        A(f"s_waitcnt lgkmcnt({nw if t > 1 else 0})")
        rd = grab(bfrQ, t+1) if t < 6 else []
        po = grab(post, t-1) if t > 0 else []
        gaps = [rd[0:2], rd[2:4]] + [[] for _ in range(6)]
        g = 2; c = 0
        for x in po:
            gaps[g].append(x)
            if not x.strip().startswith('s_'): c += 1
            if c == FPG and g < 7: g += 1; c = 0
        for s in range(4):
            for a in range(2):
                c = ACC[t & 1] + 4*a; ar = AF + a*16 + s*4; br = BFQ[t & 1][s]
                A(f"v_mfma_f32_16x16x32_bf16 v[{c}:{c+3}], v[{ar}:{ar+3}], v[{br}:{br+3}], " + ("0" if s == 0 else f"v[{c}:{c+3}]"))
                L.extend(gaps[2*s+a])
        if nw and t == OPT['PUBT'] + 1: pubA()
    if tail: tail()
    post(6)
FPG = OPT.get('FPG', 2); SPT = OPT.get('SPT', 2)
def pst(t):
    o = PK[t]
    if not OPT.get('NOST'): A(f"buffer_store_dwordx4 v[{o}:{o+3}], v6, s[32:35], s60 offen {SC}\ns_add_u32 s60, s60, 8192")
def postP(t):
    c = ACC[t & 1]; o = PK[t]
    for i in range(4):
        A(f"v_mul_f32 v{c+2*i}, s92, v{c+2*i}\nv_mul_f32 v{c+2*i+1}, s92, v{c+2*i+1}")
        if i: A(f"v_cvt_pk_bf16_f32 v{o+i-1}, v{c+2*i-2}, v{c+2*i-1}")
    A(f"v_cvt_pk_bf16_f32 v{o+3}, v{c+6}, v{c+7}")
    if OPT.get('LAG'):
        if t >= 7 - EP: pst(t - 7 + EP)
    elif t < EP: pst(t)
def postQ(t):
    c = ACC[t & 1]
    if t == 6: A("s_mov_b32 exec_lo, 0x00030003\ns_mov_b32 exec_hi, 0x00030003")
    A(f"ds_write_b128 v7, v[{c}:{c+3}] offset:{2304*t}\nds_write_b128 v7, v[{c+4}:{c+7}] offset:{2304*t+16}")
    if t == 6: A("s_mov_b64 exec, -1")
    for i in range(SPT):
        if EP + SPT*t + i < 7: pst(EP + SPT*t + i)
A(f"""
s_add_u32 s63, s54, 1
s_lshl_b32 s63, s63, 3
v_mov_b32 v4, 1
s_mov_b64 exec, 1
s_waitcnt vmcnt(0)
ds_add_u32 v42, v4 offset:{C_X}
s_mov_b64 exec, -1
""")
ts(2); spot()
lds_spin(C_X, 56, "s_cmp_ge_u32 s56, s63", "L_xok")
A("L_xok:")
ts(3); spot()
if DG: A("s_memtime s[100:101]\ns_waitcnt lgkmcnt(0)\nv_writelane_b32 v41, s100, 46"); ts(14)
afrags()
bfrQ(0)
A("s_cmp_eq_u32 s54, 0\ns_cbranch_scc1 L_nowb")
wdma(65536, 6, 8192)
wdma(65536+6*8192, 2, 0, 1, 64)
A("s_waitcnt vmcnt(0)\nL_nowb:")
def mid():
    lds_spin(C_WB, 56, "s_cmp_ge_u32 s56, 8", "L_wbok")
    A("L_wbok:")
    ts(5)
    afrags((8192, 10240, 12288, -1)); bfrQ(0)
gemm(postP, 0, mid, GP[0:2])
ts(4); spot()
def pubA():
    A(f"""
    s_cmp_lg_u32 s54, 0
    s_cbranch_scc1 L_nopub
    s_mov_b64 exec, 1
    v_mov_b32 v4, 1
    s_waitcnt vmcnt(0)
    ds_add_rtn_u32 v5, v42, v4 offset:{C_PA}
    s_waitcnt lgkmcnt(0)
    v_readfirstlane_b32 s57, v5
    s_cmp_lg_u32 s57, 7
    s_cbranch_scc1 L_nopub
    """)
    signal(1, 5, 4, 56)
    A("L_nopub:\ns_mov_b64 exec, -1")
    ts(25)
gemm(postQ, 2, None, GP[2:4])
A('s_setprio 0')
ts(7)
prep()
if OPT['PUBT'] == 6: pubA()
ts(6); spot()
if DG: A("s_memtime s[100:101]\ns_waitcnt lgkmcnt(0)\nv_writelane_b32 v41, s100, 47"); ts(15)
A(f"""
s_cmp_lg_u32 s54, 0
s_cbranch_scc1 L_recovG
v_and_b32 v9, 3, v0
v_mul_u32_u24 v9, 112, v9
v_mov_b32 v14, 0
v_mov_b32 v15, 0
s_waitcnt lgkmcnt(0)
""")
A(';@g1')
ts(8); spot()
if DG: A("s_branch L_fin")
bar()
ts(9); spot()
A(f"ds_read_b32 v10, v40 offset:{KEY}")
for q in range(7): A(f"ds_read_b128 v[{96+4*q}:{99+4*q}], v9 offset:{KEY+16*q}")
pairs = (96, 98, 56, 60)
for q in range(7):
    spot()
    A(f"s_waitcnt lgkmcnt({6-q})")
    for i in range(4): A(f"v_cmp_gt_u32 s[{pairs[i]}:{pairs[i]+1}], v{96+4*q+i}, v10")
    for i in range(4): A(f"v_addc_co_u32 v{14+(i&1)}, vcc, 0, v{14+(i&1)}, s[{pairs[i]}:{pairs[i]+1}]")
A("v_add_u32 v15, v14, v15")
dpp_add(15, "quad_perm:[1,0,3,2]", "row_mask:0xf bank_mask:0xf")
dpp_add(15, "quad_perm:[2,3,0,1]", "row_mask:0xf bank_mask:0xf")
A(f"""
v_lshlrev_b32 v15, 2, v15
ds_write_b32 v15, v10 offset:{SORT}
L_C2:
s_waitcnt lgkmcnt(0)
""")
ts(10); spot()
bar()
ts(11); spot()
prepoll(1)
MSK = (1 << 12) | (1 << 13) | (1 << 14) | (1 << 18)
LOV = sum(1 << s for s in range(3, 15)) | (1 << 18)
A(f"""
L_B4:
ds_read_b64 v[4:5], v32 offset:{SORT}
ds_read_b32 v43, v42 offset:{C_ABORT}
ds_read_b32 v36, v36 offset:{SORT}
ds_read_b32 v37, v37 offset:{SORT}
ds_read_b32 v38, v38 offset:{SORT}
s_mul_i32 s59, s3, {LW}
s_add_u32 s59, s59, {WL}
v_lshl_add_u32 v6, v0, 2, s59
v_mov_b32 v8, 0
v_mov_b32 v{VN}, 0
ds_write2st64_b32 v6, v8, v8 offset0:0 offset1:1
;@spot
s_mov_b32 s96, {hex(MSK)}
s_mov_b32 s97, 0
s_cmp_eq_u32 s3, 0
s_movk_i32 s98, 0x7fff
s_cselect_b32 s98, {hex(0x7fff | 1 << 15 | 1 << 18)}, s98
s_mov_b32 s99, 0
s_movk_i32 s60, {-NCAP}
s_movk_i32 s61, 8193
s_waitcnt lgkmcnt(4)
v_cndmask_b32 v7, v5, v4, s[96:97]
v_bfe_u32 v9, v4, v33, 6
v_bfe_u32 v11, v4, v34, 6
v_bfe_u32 v12, v5, v34, 6
v_bfe_u32 v10, v7, v33, 6
s_mov_b64 exec, {hex(LOV)}
v_min_u32 v8, v11, v12
s_mov_b64 exec, s[98:99]
v_min_u32 v9, v9, v10
v_sub_u32 v{VN}, v9, v8
s_mov_b64 exec, -1
v_mov_b32 v10, v{VN}
v_and_b32 v11, 127, v4
v_and_b32 v12, 127, v7
""")
dpp_add(10, "row_shr:1")
A("v_lshl_add_u32 v11, v12, 13, v11\nv_readfirstlane_b32 s55, v43")
dpp_add(10, "row_shr:2")
A(f"v_mad_i32_i24 v11, v11, s60, v35\nv_cmp_lt_u32 vcc, 0, v{VN}")
dpp_add(10, "row_shr:4")
A(f"v_lshl_add_u32 v13, v0, 3, s59\nv_lshrrev_b32 v1, 5, v0")
dpp_add(10, "row_shr:8")
A(f"v_mul_u32_u24 v1, {HL}, v1\nv_add_u32 v1, s59, v1")
dpp_add(10, "row_bcast:15", "row_mask:0xa bank_mask:0xf")
A(f"""
v_sub_u32 v12, v10, v{VN}
v_sub_u32 v9, v9, v10
v_readlane_b32 s58, v10, 20
v_lshl_add_u32 v12, v12, 2, s59
v_mad_i32_i24 v11, v9, s61, v11
s_sub_u32 s56, s58, 1
s_cmp_lt_u32 s56, {HL//8 - R}
s_cbranch_scc1 L_capok
s_or_b32 s55, s55, 4
L_capok:
;@spot
""")
if OPT['FORCE_SAFE']: A("s_or_b32 s55, s55, 1")
prepoll(2)
A(f"""
s_cmp_lg_u32 s55, 0
s_cbranch_scc1 L_nolist
s_mov_b64 exec, vcc
ds_write_b32 v12, v11
s_mov_b64 exec, -1
ds_read2st64_b32 v[10:11], v6 offset0:0 offset1:1
v_min_u32 v9, s56, v0
s_mov_b32 s57, {NL - 4*BIAS}
v_lshl_add_u32 v9, v9, 2, s57
s_movk_i32 s60, 512
s_waitcnt lgkmcnt(0)
""")
def fill(v, pm, ex=None, off=0):
    for c in ("row_shr:1", "row_shr:2", "row_shr:4", "row_shr:8"): dpp("v_max_u32", v, c)
    dpp("v_max_u32", v, "row_bcast:15", "row_mask:0xa bank_mask:0xf")
    dpp("v_max_u32", v, "row_bcast:31", "row_mask:0xc bank_mask:0xf")
    if ex: A(f"s_mov_b64 exec, {ex}")
    A(f"""
    v_and_b32 v14, 0x1fff, v{v}
    v_bfe_u32 v15, v{v}, 13, 13
    v_lshl_add_u32 v14, v14, 2, v{pm}
    v_lshl_add_u32 v15, v15, 2, v{pm}
    ds_read_b32 v14, v14
    ds_read_b32 v15, v15
    s_waitcnt lgkmcnt(1)
    v_and_b32 v16, 0x7fff, v14
    v_mad_u32_u24 v16, v16, s60, s60
    v_and_b32 v14, s26, v14
    ds_write2_b32 v13, v16, v14 offset0:{off} offset1:{off+2*R+1}
    s_waitcnt lgkmcnt(1)
    v_and_b32 v17, 0x7fff, v15
    v_lshlrev_b32 v17, 9, v17
    v_and_b32 v15, s26, v15
    ds_write2_b32 v13, v17, v15 offset0:{off+HL//4} offset1:{off+HL//4+2*R+1}
    """)
fill(10, 9)
A(f"s_cmp_gt_u32 s58, {64-R}\ns_cbranch_scc1 L_fill2\nL_filled:\nL_nolist:")
A(f"""
ds_read_b128 v[8:11], v1
ds_read_b128 v[12:15], v1 offset:16
ds_read_b128 v[16:19], v1 offset:32
ds_read_b128 v[20:23], v1 offset:48
""")
ts(12); spot()
A(f"""
s_movk_i32 s60, {-QROW}
v_and_b32 v36, 127, v36
v_and_b32 v37, 127, v37
v_and_b32 v38, 127, v38
v_mad_i32_i24 v36, v36, s60, v39
v_mad_i32_i24 v37, v37, s60, v39
v_mad_i32_i24 v38, v38, s60, v39
s_bitcmp1_b32 s55, 1
s_cbranch_scc1 L_recover
s_cmp_lg_u32 s3, 15
s_cbranch_scc1 L_pfdone
s_cmp_lg_u32 s54, 0
s_cbranch_scc1 L_pfdone
s_mov_b32 s56, 0
s_mov_b64 exec, 0xff00
v_mov_b32 v55, 1
L_pfp:
s_waitcnt vmcnt(0)
v_cmp_ne_u32 vcc, v54, v53
""")
if OPT['FORCE_RECOV'] != 1: A("s_cbranch_vccz L_pfok\ns_mov_b64 exec, vcc"); dbg(56, 1, 54, "L_pfok")
A(f"""
s_sleep {OPT.get('PSL', 1)}
buffer_load_dword v54, v52, s[44:47], s23 offen sc1
s_add_u32 s56, s56, 1
s_cmp_lt_u32 s56, {2 if OPT['FORCE_RECOV'] == 1 else POLLMAX}
s_cbranch_scc1 L_pfp
v_mov_b32 v55, 2
L_pfok:
ds_write_b32 v42, v55 offset:{C_PFA}
s_mov_b64 exec, -1
""")
if TS: A("v_writelane_b32 v41, s56, 41")
A(f"L_pfdone:\nds_read_b32 v43, v42 offset:{C_PFA}")
def gather(p, idx):
    A(f"buffer_load_dwordx4 v[{RING[p]}:{RING[p]+3}], v{idx}, s[40:43], s70 offen {SC}")
for k in range(NS): A(f"ds_read_b128 v[{Q(k)}:{Q(k)+3}], v{36+(k>>1)} offset:{16*(k&1)}")
A(f"""
v_lshrrev_b32 v32, 26, v4
v_lshrrev_b32 v33, 26, v5
v_and_b32 v4, 127, v4
v_and_b32 v5, 127, v5
v_lshl_or_b32 v32, v32, 8, v4
v_lshl_or_b32 v33, v33, 8, v5
s_mul_i32 s80, s3, 6
s_min_u32 s56, s3, 1
s_lshl1_add_u32 s80, s56, s80
s_lshl_b32 s56, s80, 2
v_min_u32 v34, 3, v0
v_lshl_add_u32 v34, v34, 3, s56
s_and_b32 s98, s98, 0x8007
s_waitcnt lgkmcnt(6)
v_readfirstlane_b32 s82, v43
s_cmp_lg_u32 s55, 0
s_cselect_b32 s82, 0, s82
s_cmp_lg_u32 s82, 1
s_cbranch_scc1 L_noring
""")
for p, idx in enumerate((8, 10, 12, 14)): gather(p, idx)
ts(13)
A(f"""
L_noring:
;@spot
s_mov_b64 exec, s[98:99]
ds_write_b64 v34, v[32:33] offset:{ROWI}
s_mov_b64 exec, -1
v_and_b32 v34, 31, v0
v_lshlrev_b32 v34, 5, v34
s_cmp_lg_u32 s3, 0
s_cbranch_scc1 L_noq3
v_readlane_b32 s56, v4, 15
v_readlane_b32 s57, v5, 15
v_mov_b32 v35, s56
s_mov_b32 exec_lo, 0
v_mov_b32 v35, s57
s_mov_b32 exec_lo, -1
v_mad_i32_i24 v35, v35, s60, v39
ds_read_b128 v[{Nn(4)}:{Nn(4)+3}], v35
ds_read_b128 v[{Dd(4)}:{Dd(4)+3}], v35 offset:16
L_noq3:
;@spot
ds_read_b128 v[{Nn(5)}:{Nn(5)+3}], v34 offset:{CB}
ds_read_b128 v[{Dd(5)}:{Dd(5)+3}], v34 offset:{CB+16}
ds_read_b128 v[{WA}:{WA+3}], v34 offset:{CW}
ds_read_b128 v[{WB}:{WB+3}], v34 offset:{CW+16}
v_and_b32 v35, 3, v0
v_lshlrev_b32 v35, 4, v35
v_mov_b32 v36, 0x3f80
v_mov_b32 v37, 0
v_lshlrev_b64 v[2:3], v35, v[36:37]
v_mov_b32 v43, 1
s_mov_b32 s60, 1.0
s_mov_b32 s61, 1.0
s_mov_b32 s56, {NLOG2E}
s_mov_b32 s57, {NLOG2E}
s_mov_b32 s71, 0
s_mov_b32 s83, 0
""")
srd(28, 16, 65536)
LATE = [Nn(4), Dd(4), Nn(5), Dd(5)]
initnd([r for r in ALLND if r not in LATE])
A(f"s_waitcnt lgkmcnt(2)\ns_mov_b64 exec, 1\nds_add_u32 v42, v43 offset:{C_Q}\ns_mov_b64 exec, -1")
ts(28); spot()
def qscale(r, a):
    b = (Nn(5), Dd(5))[a]
    A(f"v_pk_fma_f32 v[{r}:{r+1}], v[{r}:{r+1}], s[56:57], v[{b}:{b+1}]\nv_pk_fma_f32 v[{r+2}:{r+3}], v[{r+2}:{r+3}], s[56:57], v[{b+2}:{b+3}]")
for k in range(NS): qscale(Q(k), k & 1)
A(f"""
s_cmp_lg_u32 s3, 0
s_cbranch_scc1 L_noq3b
s_mov_b32 s58, {Q3P}
v_lshl_add_u32 v35, v0, 4, s58
""")
qscale(Nn(4), 0); qscale(Dd(4), 1)
A(f"""
ds_write_b128 v35, v[{Nn(4)}:{Nn(4)+3}]
ds_write_b128 v35, v[{Dd(4)}:{Dd(4)+3}] offset:1024
s_waitcnt lgkmcnt(0)
L_noq3b:
;@spot
""")
initnd(LATE)
A("s_cmp_eq_u32 s82, 1\ns_cbranch_scc1 L_ringd")
lds_spin(C_PFA, 57, "s_cmp_lg_u32 s57, 0", "L_pfseen", tmp=56)
A("L_pfseen:\ns_cmp_lg_u32 s57, 1\ns_cbranch_scc1 L_recover\ns_cmp_lg_u32 s55, 0\ns_cbranch_scc1 L_safe0")
for p, idx in enumerate((8, 10, 12, 14)): gather(p, idx)
ts(13)
A(f"""
L_ringd:
s_waitcnt lgkmcnt(0)
s_setprio {OPT['PRIO'][0]}
""")
ts(14); spot()
if TS: A("s_memtime s[100:101]\ns_waitcnt lgkmcnt(0)\nv_writelane_b32 v41, s100, 46")
SEL = "op_sel:[1,0,0] op_sel_hi:[1,1,1]"
TT = (8, 32)
def H1a(k, p):
    q = Q(k); a = k & 1; pr = 16 + 2*p; t = TT[a]; w = (WA, WB)[a]
    if a == 0 and p % 2 == 0: A("s_waitcnt lgkmcnt(1)")
    A(f"""
    v_pk_fma_f32 v[{t}:{t+1}], v[{pr}:{pr+1}], v[{w}:{w+1}], v[{q}:{q+1}] {SEL}
    v_pk_fma_f32 v[{t+2}:{t+3}], v[{pr}:{pr+1}], v[{w+2}:{w+3}], v[{q+2}:{q+3}] {SEL}
    """)
def H1b(k, p):
    a = k & 1; qd = 16 + 4*(p >> 1); pr = 16 + 2*p; rg = RING[p] + 2*a; t = TT[a]
    if a == 0: A(f"s_waitcnt vmcnt({R-1})\ns_sub_u32 s56, s56, 1")
    A(f"v_mfma_f32_4x4x4_16b_bf16 v[{t}:{t+3}], v[2:3], v[{rg}:{rg+1}], v[{t}:{t+3}]")
    if a == 1:
        gather(p, pr)
        if p % 2 == 1: A(f"ds_read_b128 v[{qd}:{qd+3}], v1 offset:{64+16*(p>>1)}")
        if p == 3: A("v_add_u32 v1, 32, v1")
def H2a(k):
    t = TT[k & 1]
    if OPT.get('NOV'): return
    A(f"v_exp_f32 v12, v{t}\nv_exp_f32 v13, v{t+1}")
def H2b(k):
    n, d = Nn(k), Dd(k); t = TT[k & 1]
    if OPT.get('NOV'): return
    A(f"""
    v_exp_f32 v14, v{t+2}
    v_exp_f32 v15, v{t+3}
    v_pk_fma_f32 v[{t}:{t+1}], v[{t}:{t+1}], v[{d}:{d+1}], v[{n}:{n+1}]
    v_pk_fma_f32 v[{t+2}:{t+3}], v[{t+2}:{t+3}], v[{d+2}:{d+3}], v[{n+2}:{n+3}]
    v_pk_fma_f32 v[{d}:{d+1}], v[{d}:{d+1}], v[12:13], v[{d}:{d+1}]
    v_pk_fma_f32 v[{n}:{n+1}], v[{n}:{n+1}], v[12:13], v[{t}:{t+1}]
    v_pk_fma_f32 v[{d+2}:{d+3}], v[{d+2}:{d+3}], v[14:15], v[{d+2}:{d+3}]
    v_pk_fma_f32 v[{n+2}:{n+3}], v[{n+2}:{n+3}], v[14:15], v[{t+2}:{t+3}]
    """)
def H2(k): H2a(k); H2b(k)
HK = OPT['HOOK']; PR = OPT['PRIO']
def wrap(p):
    A(f"""
    L_E3_{p}:
    s_mov_b32 s57, {p}
    """)
    if TS: A("s_memrealtime s[100:101]\ns_add_u32 s58, s71, 45\ns_min_u32 s58, s58, 63\ns_mov_b32 m0, s58\ns_waitcnt lgkmcnt(0)\nv_writelane_b32 v41, s100, m0")
    A(f"""
    s_cmp_eq_u32 s71, 3
    s_cbranch_scc1 L_wrap1
    s_setprio {PR[2]}
    s_cmp_eq_u32 s71, 6
    s_cbranch_scc1 L_E0_{p}
    s_setprio {PR[3]}
    s_cmp_eq_u32 s71, 9
    s_cbranch_scc1 L_E0_{p}
    s_mov_b32 exec_hi, 0
    s_cmp_eq_u32 s71, 12
    s_cbranch_scc1 L_E0_{p}
    s_cmp_eq_u32 s71, 18
    s_cbranch_scc1 L_E0_{p}
    s_mov_b32 exec_hi, -1
    s_cmp_lg_u32 s3, s83
    s_cbranch_scc1 L_flush
    s_branch L_rs{p}
    """)
    spot(True)
for p in range(4):
    for q in range(3):
        if q > 0:
            A(f"L_T{q-1}_{p}:"); H2(2*q-1)
        A(f"L_E{q}_{p}:")
        if q == HK: A(f"s_mov_b32 s57, {p}\ns_cmp_eq_u32 s71, {3+HK}\ns_cbranch_scc1 L_hk1\nL_H_{p}:")
        if len(PR) > 4 and q == OPT.get('LQ', 2): A(f"s_cmp_lt_u32 s71, 9\ns_cbranch_scc1 L_np{p}\ns_setprio {PR[4]}\nL_np{p}:")
        A(f"v_readlane_b32 s56, v{VN}, s71\ns_add_u32 s71, s71, 1\ns_sub_u32 s56, s56, 1\ns_cbranch_scc1 L_E{q+1}_{p}")
        H1a(2*q, p); H1a(2*q+1, p); H1b(2*q, p); H1b(2*q+1, p); H2(2*q)
        A(f"s_cbranch_scc0 L_B{q}_{(p+1)&3}\ns_branch L_T{q}_{(p+1)&3}")
        spot(True)
    A(f"L_T2_{p}:"); H2(5)
    wrap(p)
for q in range(3):
    for p in range(4):
        A(f"L_B{q}_{p}:")
        H1a(2*q, p); H1b(2*q, p); H2(2*q+1); H1a(2*q+1, p); H2a(2*q); H1b(2*q+1, p); H2b(2*q)
        A(f"s_cbranch_scc1 L_T{q}_{(p+1)&3}")
    A(f"s_branch L_B{q}_0")
    spot(True)
A(f"""
L_hk1:
s_mov_b64 exec, 1
v_mov_b32 v43, 1
s_waitcnt vmcnt(0)
ds_add_u32 v42, v43 offset:{C_W2}
s_mov_b64 exec, -1
""")
ts(27)
for p in range(4): A(f"s_cmp_eq_u32 s57, {p}\ns_cbranch_scc1 L_H_{p}")
A(f"""
s_branch L_safe
L_wrap1:
s_setprio {PR[1]}
L_wrap1b:
""")
ts(26); spot()
A(f"""
v_lshrrev_b32 v37, 4, v0
v_lshlrev_b32 v38, 2, v37
v_and_b32 v39, 15, v0
v_xor_b32 v38, v38, v39
v_lshlrev_b32 v38, 4, v38
v_lshl_add_u32 v38, v37, 8, v38
""")
lds_spin(C_Q, 60, "s_cmp_ge_u32 s60, 16", "L_qrd")
A(f"L_qrd:\ns_lshl_b32 s58, s3, 12\ns_add_u32 m0, s58, {QB}")
for i in range(4): A(f"buffer_load_dwordx4 v38, s[28:31], s58 offen offset:{1024*i} lds")
for p in range(4): A(f"s_cmp_eq_u32 s57, {p}\ns_cbranch_scc1 L_E0_{p}")
A("s_branch L_hk1")
spot(True)
for p in range(4):
    A(f"""
    L_rs{p}:
    v_readfirstlane_b32 s58, v1
    s_add_u32 s58, s58, {HL}
    s_mov_b32 exec_lo, 0
    v_mov_b32 v1, s58
    s_mov_b32 exec_lo, -1
    ds_read_b128 v[16:19], v1 offset:{32 if p < 2 else 64}
    ds_read_b128 v[20:23], v1 offset:48
    s_mov_b32 s81, {p}
    ds_read2_b32 v[36:37], v1 offset0:{2*p} offset1:{2*p+2}
    ds_read2_b32 v[38:39], v1 offset0:{2*p+4} offset1:{2*p+6}
    s_waitcnt lgkmcnt(0)
    """)
    for i in range(4): gather((p+i) & 3, 36+i)
    if p < 3: A("s_branch L_flush")
A("L_flush:\ns_waitcnt lgkmcnt(0)")
ts(15); spot()
if TS: A("s_memtime s[100:101]\ns_waitcnt lgkmcnt(0)\nv_writelane_b32 v41, s100, 47")
A(f"""
v_lshrrev_b32 v36, 5, v0
v_add_u32 v36, s80, v36
v_mul_u32_u24 v36, {HROW}, v36
v_bfe_u32 v37, v0, 2, 3
v_lshl_add_u32 v36, v37, 6, v36
v_and_b32 v37, 3, v0
v_lshl_add_u32 v36, v37, 3, v36
v_add_u32 v36, {HSB}, v36
s_cmp_lg_u32 s83, 0
s_cbranch_scc1 L_flush2
""")
def guard(ks, ok):
    for k in ks:
        if k == ks[0]: A(f"v_pk_mul_f32 v[32:33], v[{Nn(k)}:{Nn(k)+1}], v[{Dd(k)}:{Dd(k)+1}]\nv_pk_mul_f32 v[34:35], v[{Nn(k)+2}:{Nn(k)+3}], v[{Dd(k)+2}:{Dd(k)+3}]")
        else: A(f"v_pk_fma_f32 v[32:33], v[{Nn(k)}:{Nn(k)+1}], v[{Dd(k)}:{Dd(k)+1}], v[32:33]\nv_pk_fma_f32 v[34:35], v[{Nn(k)+2}:{Nn(k)+3}], v[{Dd(k)+2}:{Dd(k)+3}], v[34:35]")
    A(f"""
    v_pk_add_f32 v[32:33], v[32:33], v[34:35]
    v_add_f32 v32, v32, v33
    v_mov_b32 v33, 0x207
    v_cmp_class_f32 vcc, v32, v33
    s_cmp_lg_u32 s55, 0
    s_cbranch_scc1 {ok}
    """)
    if OPT['FORCE_GUARD'] == 1 and len(ks) > 2: A("s_bitcmp0_b32 s3, 0\ns_cbranch_scc1 L_safe")
    if OPT['FORCE_GUARD'] == 2 and len(ks) == 2: A("s_branch L_safe")
    A(f"s_cbranch_vccnz L_safe\n{ok}:")
def hout(k, off):
    spot()
    n, d = Nn(k), Dd(k); o = 8 + 2*(k & 1)
    for i in range(4): A(f"v_rcp_f32 v{d+i}, v{d+i}")
    A(f"""
    v_pk_mul_f32 v[{n}:{n+1}], v[{n}:{n+1}], v[{d}:{d+1}]
    v_pk_mul_f32 v[{n+2}:{n+3}], v[{n+2}:{n+3}], v[{d+2}:{d+3}]
    v_cvt_pk_bf16_f32 v{o}, v{n}, v{n+1}
    v_cvt_pk_bf16_f32 v{o+1}, v{n+2}, v{n+3}
    ds_write_b64 v36, v[{o}:{o+1}] offset:{off}
    """)
guard(list(range(NS)), "L_fl2")
spot()
for k in range(NS): hout(k, 2*HROW*(k >> 1) + 32*(k & 1))
A(f"""
s_cmp_lg_u32 s3, 0
s_cbranch_scc1 L_fl3
s_mov_b32 s58, {Q3P}
v_lshl_add_u32 v37, v0, 4, s58
ds_read_b128 v[{Q(0)}:{Q(0)+3}], v37
ds_read_b128 v[{Q(1)}:{Q(1)+3}], v37 offset:1024
s_mov_b32 s60, 1.0
s_mov_b32 s61, 1.0
s_mov_b32 s83, 1
""")
initnd([Nn(0), Dd(0), Nn(1), Dd(1)])
A("s_waitcnt lgkmcnt(0)\ns_cmp_lg_u32 s55, 0\ns_cbranch_scc1 L_safe")
for p in range(3): A(f"s_cmp_eq_u32 s81, {p}\ns_cbranch_scc1 L_E0_{p}")
A("s_branch L_E0_3")
spot(True)
A("L_flush2:")
guard([0, 1], "L_fl2b")
for k in range(2): hout(k, 2*HROW*3 + 32*k)
A("L_fl3:")
ts(16); spot()
A(f"""
s_and_b32 s60, s3, 3
s_lshr_b32 s61, s3, 2
s_lshl_b32 s59, s61, 2
v_mov_b32 v2, s59
v_mov_b32 v3, 1
s_waitcnt lgkmcnt(0)
s_mov_b64 exec, 1
ds_add_u32 v2, v3 offset:{C_G}
s_mov_b64 exec, -1
v_lshrrev_b32 v4, 4, v0
v_and_b32 v5, 15, v0
s_lshl_b32 s56, s60, 6
v_lshl_add_u32 v6, v4, 4, s56
global_load_dwordx4 v[124:127], v6, s[18:19]
v_bfe_u32 v7, v0, 2, 2
v_lshl_add_u32 v1, v4, 3, v7
v_lshlrev_b32 v1, 8, v1
v_xor_b32 v7, s60, v7
v_lshl_add_u32 v1, v7, 6, v1
v_and_b32 v7, 3, v0
v_lshl_add_u32 v1, v7, 4, v1
""")
lds_spin(C_W2, 57, "s_cmp_ge_u32 s57, 16", "L_w2ok")
A("L_w2ok:\ns_waitcnt vmcnt(1)")
spot()
for s in range(8):
    for a in range(2):
        for hf in range(2):
            r = 44 + a*32 + s*4 + hf*2
            A(f"ds_read_b64_tr_b16 v[{r}:{r+1}], v1 offset:{QB+8192*s+1024*hf+8*a}")
A(f"""
s_mul_i32 s56, s61, 24
s_min_u32 s57, s61, 1
s_lshl1_add_u32 s56, s57, s56
v_add_u32 v5, s56, v5
v_lshlrev_b32 v3, 2, v5
v_mul_u32_u24 v1, {HROW}, v5
v_lshl_add_u32 v1, v4, 4, v1
v_add_u32 v1, {HSB}, v1
s_mov_b32 s32, s20
s_mov_b32 s33, s21
s_add_u32 s34, s51, s52
s_lshl_b32 s34, s34, 8
s_mov_b32 s35, 0x00020000
s_add_u32 s59, s51, 127
s_lshl_b32 s59, s59, 8
v_add_u32 v6, s59, v6
s_cmp_eq_u32 s61, 0
s_mov_b32 s96, 0x00ff00ff
s_cselect_b32 s96, 0x03ff03ff, s96
s_mov_b32 s97, s96
s_movk_i32 s59, -256
s_mov_b32 s56, {NLN2}
""")
ts(17); spot()
lds_spin(C_G, 57, "s_cmp_ge_u32 s57, 4", "L_gok", av=2)
A("L_gok:")
ts(18)
spot()
A(f"ds_read_b32 v42, v3 offset:{ROWI}\nds_read_b32 v43, v3 offset:{ROWI+64}")
BB = (108, 8)
def rd(qg):
    for t in range(2):
        for h in range(2):
            r = BB[qg & 1] + 8*t + 4*h
            A(f"ds_read_b128 v[{r}:{r+3}], v1 offset:{16*HROW*t + 64*(2*qg+h)}")
rd(0)
for qg in range(4):
    spot()
    if qg < 3: rd(qg+1); A(f"s_waitcnt lgkmcnt(4)")
    else: A("s_waitcnt lgkmcnt(0)")
    for h in range(2):
        s = 2*qg + h
        for t in range(2):
            for a in range(2):
                c = 24 + 8*t + 4*a; ar = 44 + a*32 + s*4; br = BB[qg & 1] + 8*t + 4*h
                A(f"v_mfma_f32_16x16x32_bf16 v[{c}:{c+3}], v[{ar}:{ar+3}], v[{br}:{br+3}], " + ("0" if s == 0 else f"v[{c}:{c+3}]"))
    if qg == 0:
        for t in range(2):
            A(f"v_and_b32 v{4+t}, 127, v{42+t}\nv_lshrrev_b32 v{42+t}, 8, v{42+t}\nv_mad_i32_i24 v{4+t}, v{4+t}, s59, v6\nv_cvt_f32_u32 v{42+t}, v{42+t}")
spot()
A("s_waitcnt vmcnt(0)")
for i in range(4):
    A(f"v_lshlrev_b32 v{44+2*i}, 16, v{124+i}\nv_and_b32 v{45+2*i}, s26, v{124+i}")
for t in range(2):
    for i in range(8): A(f"v_mul_f32 v{52+8*t+i}, v{42+t}, v{44+i}")
for t in range(2):
    c = 24 + 8*t
    for i in range(8): A(f"v_fma_f32 v{c+i}, v{c+i}, s56, v{52+8*t+i}")
    for i in range(4): A(f"v_cvt_pk_bf16_f32 v{68+4*t+i}, v{c+2*i}, v{c+2*i+1}")
    if t == 1: A("s_mov_b64 exec, s[96:97]")
    A(f"buffer_store_dwordx4 v[{68+4*t}:{71+4*t}], v{4+t}, s[32:35], 0 offen {OPT.get('OSC', '').replace('+', ' ')}")
A("L_fin:")
if TS:
    A("s_mov_b64 exec, -1\ns_waitcnt vmcnt(0)")
    ts(19)
    A(f"""
    s_lshl_b32 s56, s2, 4
    s_add_u32 s56, s56, s3
    s_lshl_b32 s56, s56, 8
    s_add_u32 s56, s56, {WS_TS}
    v_lshlrev_b32 v1, 2, v0
    buffer_store_dword v41, v1, s[44:47], s56 offen
    """)
    if 'DIAG' in OPT:
        A(f"s_cmp_lg_u32 s3, {OPT.get('DW', 0)}\ns_cbranch_scc1 L_end\nv_readlane_b32 s56, v41, 0")
        if OPT['DIAG'] >= 100: A(f"s_mov_b32 s57, {OPT['DIAG']*100}")
        else: A(f"v_readlane_b32 s57, v41, {OPT['DIAG']}\ns_sub_u32 s57, s57, s56\ns_mul_i32 s57, s57, {OPT.get('DMUL', 10)}\ns_min_u32 s57, s57, 200000")
        A("""
        L_diag:
        s_sleep 4
        s_memrealtime s[100:101]
        s_waitcnt lgkmcnt(0)
        s_sub_u32 s58, s100, s56
        s_cmp_lt_u32 s58, s57
        s_cbranch_scc1 L_diag
        """)
A("L_end:\ns_endpgm")
A(";@cold")
A(f"""
L_fill2:
v_readlane_b32 s61, v10, 63
v_add_u32 v9, 64, v0
v_min_u32 v9, s56, v9
v_lshl_add_u32 v9, v9, 2, s57
v_add_u32 v13, 512, v13
v_max_u32 v11, s61, v11
""")
fill(11, 9, "0xffffffff")
A(f"""
s_mov_b64 exec, -1
s_branch L_filled
L_recover:
s_setprio 0
s_waitcnt vmcnt(0) lgkmcnt(0)
s_barrier
s_mov_b32 s54, 0
L_recov_step:
s_add_u32 s54, s54, 1
s_add_u32 s48, s2, s54
s_and_b32 s48, s48, 255
""")
bucket_range(48, 56, 49, 50)
A(f"""
s_cmp_lt_u32 s3, 8
s_cbranch_scc1 L_Gfirst
L_recovL:
s_barrier
L_recovG:
s_waitcnt vmcnt(0) lgkmcnt(0)
s_barrier
s_cmp_lt_u32 s54, 256
s_cbranch_scc1 L_recov_step
v_mov_b32 v43, 1
ds_write_b32 v42, v43 offset:{C_ABORT}
ds_write_b32 v42, v43 offset:{C_PFA}
v_mov_b32 v43, 0
ds_write_b32 v42, v43 offset:{C_W2}
ds_write_b32 v42, v43 offset:{C_Q}
""")
prep()
A(f"""
s_waitcnt lgkmcnt(0)
s_barrier
s_branch L_B4
L_safe0:
s_mov_b32 s57, 4
s_branch L_wrap1b
L_safe:
s_mov_b32 s55, 1
s_setprio 0
s_mov_b32 s60, 1.0
s_mov_b32 s61, 1.0
s_mul_i32 s73, s83, 6
s_add_u32 s73, s73, s80
s_lshl_b32 s73, s73, 2
v_lshl_add_u32 v23, v0, 2, s73
s_waitcnt vmcnt(0) lgkmcnt(0)
ds_read_b32 v22, v23 offset:{ROWI}
""")
initnd(ALLND)
srd(28, 10, E*4); srd(32, 8, E*4); srd(36, 6, E*2)
A(f"""
v_lshlrev_b32 v16, 2, v0
v_lshlrev_b32 v17, 1, v0
v_and_b32 v24, 31, v0
v_lshlrev_b32 v24, 4, v24
s_mov_b32 s72, 0
s_movk_i32 s74, {N-1}
s_waitcnt lgkmcnt(0)
v_and_b32 v22, 127, v22
v_sub_u32 v25, 127, v22
""")
for i in range(6): A(f"v_readlane_b32 s{64+i}, v25, {i}")
A("s_cmp_eq_u32 s83, 0\ns_cbranch_scc1 L_sloop")
for i in range(2, 6): A(f"s_mov_b32 s{64+i}, -1")
A(f"""
L_sloop:
s_lshl_b32 s56, s72, 1
buffer_load_dword v18, v16, s[28:31], s56 offen
buffer_load_dword v19, v16, s[32:35], s56 offen
buffer_load_ushort v20, v17, s[36:39], s72 offen
s_waitcnt vmcnt(0)
v_min_u32 v18, s74, v18
v_subrev_u32 v21, s51, v18
v_cmp_gt_u32 s[96:97], s52, v21
s_cmp_eq_u64 s[96:97], 0
s_cbranch_scc1 L_snext
v_mov_b32 v25, 6
""")
for i in range(6): A(f"v_cmp_eq_u32 vcc, s{64+i}, v21\nv_cndmask_b32 v25, v25, {i}, vcc")
A(f"""
v_cmp_gt_u32 vcc, 6, v25
s_and_b64 s[96:97], s[96:97], vcc
L_sbit:
s_mov_b64 exec, -1
s_cmp_eq_u64 s[96:97], 0
s_cbranch_scc1 L_snext
s_ff1_i32_b64 s56, s[96:97]
s_bitset0_b64 s[96:97], s56
v_readlane_b32 s57, v19, s56
v_readlane_b32 s58, v20, s56
v_readlane_b32 s60, v25, s56
s_min_u32 s57, s57, s74
s_lshl_b32 s57, s57, 9
s_add_u32 s57, s57, {PB0}
s_lshl_b32 s58, s58, 16
s_mov_b32 s59, s58
buffer_load_dwordx4 v[28:31], v24, s[44:47], s57 offen sc1
s_lshl_b64 exec, 1, s60
v_add_u32 v22, 0x100, v22
s_bitcmp1_b32 s60, 0
s_cselect_b32 exec_lo, 0, -1
s_cselect_b32 exec_hi, -1, 0
s_lshr_b32 s60, s60, 1
s_waitcnt vmcnt(0)
""")
for qq in range(3):
    if qq < 2: A(f"s_cmp_lg_u32 s60, {qq}\ns_cbranch_scc1 L_sk{qq+1}")
    for a in range(2):
        k = 2*qq + a; q, n = Q(k), Nn(k); w = (WA, WB)[a]
        A(f"""
        v_pk_fma_f32 v[8:9], s[58:59], v[{w}:{w+1}], v[{q}:{q+1}]
        v_pk_fma_f32 v[10:11], s[58:59], v[{w+2}:{w+3}], v[{q+2}:{q+3}]
        v_mfma_f32_4x4x4_16b_bf16 v[8:11], v[2:3], v[{28+2*a}:{29+2*a}], v[8:11]
        v_exp_f32 v12, v8
        v_exp_f32 v13, v9
        v_exp_f32 v14, v10
        v_exp_f32 v15, v11
        v_pk_add_f32 v[12:13], v[12:13], 1.0 op_sel_hi:[1,0]
        v_pk_add_f32 v[14:15], v[14:15], 1.0 op_sel_hi:[1,0]
        v_rcp_f32 v12, v12
        v_rcp_f32 v13, v13
        v_rcp_f32 v14, v14
        v_rcp_f32 v15, v15
        v_pk_fma_f32 v[{n}:{n+1}], v[8:9], v[12:13], v[{n}:{n+1}]
        v_pk_fma_f32 v[{n+2}:{n+3}], v[10:11], v[14:15], v[{n+2}:{n+3}]
        """)
    A("s_branch L_sbit")
    if qq < 2: A(f"L_sk{qq+1}:")
A(f"""
L_snext:
s_add_u32 s72, s72, 128
s_cmp_lt_u32 s72, {2*E}
s_cbranch_scc1 L_sloop
s_cmp_eq_u32 s83, 0
s_cselect_b32 exec_lo, 63, 3
s_mov_b32 exec_hi, 0
ds_write_b32 v23, v22 offset:{ROWI}
s_mov_b64 exec, -1
L_last:
s_branch L_flush
""")

KAL = OPT.get('KAL', 12)
body, npad = pad(L, verbose=bool(OPT.get('V')))
hdr = open('standalone__edge_featured_mpnn_mpnn__graph.s.ref').read().split('; Override')[0]
def emit(body):
    out = hdr + f"; @launch grid=(256,1,1) block=(1024,1,1) lds={LDS}\n"
    out += f'.amdgcn_target "amdgcn-amd-amdhsa--gfx950"\n.text\n.globl {KN}\n.p2align {KAL}\n.type {KN},@function\n'
    out += "\n".join(body) + "\n"
    out += f""".section .rodata,"a"
.p2align 6
.amdhsa_kernel {KN}
  .amdhsa_next_free_vgpr 128
  .amdhsa_next_free_sgpr 102
  .amdhsa_accum_offset 128
  .amdhsa_group_segment_fixed_size 0
  .amdhsa_kernarg_size 88
  .amdhsa_user_sgpr_count 2
  .amdhsa_user_sgpr_kernarg_segment_ptr 1
  .amdhsa_system_sgpr_workgroup_id_x 1
.end_amdhsa_kernel
"""
    return out
import subprocess, re
def offsets(body):
    t = []; k = 0
    for b in body:
        if b.startswith(';@'): t.append(f"M_{k}:"); k += 1
        else: t.append(b)
    open('_m.s', 'w').write(emit(t))
    subprocess.run(["clang", "-x", "assembler", "-target", "amdgcn-amd-amdhsa", "-mcpu=gfx950", "-c", "_m.s", "-o", "_m.o"], check=True)
    o = subprocess.run(["llvm-objdump", "-t", "_m.o"], capture_output=True, text=True).stdout
    d = {int(m.group(2)): int(m.group(1), 16) for m in re.finditer(r"^([0-9a-f]+) .* M_(\d+)$", o, re.M)}
    return [d[i] for i in range(k)]
nb = []
for i, b in enumerate(body):
    nb.append(b)
    if b.strip().startswith('s_branch') and i+1 < len(body) and body[i+1].endswith(':'): nb.append(';@dead')
body = nb
def place(body, chosen, chains):
    out = []; k = 0
    for b in body:
        if not b.startswith(';@'): out.append(b); continue
        out.append(b)
        if k in chosen:
            n = chosen[k]
            out.append(f"L_stub{n}:"); out.append(f"    {'s_branch' if b == ';@dead' else 's_cbranch_execz'} {chains[n]}")
        if b in (';@hopB', ';@hopW') and chosen:
            ws = {';@hopB': range(8, 15), ';@hopW': (15,)}[b]
            if any(w in first for w in ws): out.append("    s_mov_b64 exec, 0")
            for w in ws:
                if w in first:
                    if b == ';@hopW': out.append(f"    s_branch L_stub{first[w]}")
                    else: out.append(f"    s_cmp_eq_u32 s3, {w}"); out.append(f"    s_cbranch_scc1 L_stub{first[w]}")
        k += 1
    return out
if OPT.get('WARM', 1):
    marks = [b for b in body if b.startswith(';@')]
    chosen = {}; chains = {}; first = {}
    COV = OPT.get('COV', 1024)
    for it in range(6):
        off = offsets(place(body, chosen, chains))
        g0 = off[marks.index(';@g0')]; g1 = off[marks.index(';@g1')]; b0 = off[marks.index(';@hopB')]
        sel = []; gap = 0
        for lo, hi, forced in ((b0, g0 - 64, 0), (g0 - 64, off[marks.index(';@cold')], 1)):
            cand = [k for k, m in enumerate(marks) if m in (';@spot', ';@dead') and lo <= off[k] < hi and m != ';@hopB']
            end = min((lo & ~127) + COV, (lo | 4095) + 1)
            if forced: sel.append(cand[0]); end = min((off[cand[0]] & ~127) + COV + 128, (off[cand[0]] | 4095) + 1)
            while end < hi:
                c = [k for k in cand if (off[k] & ~127) <= end and (not sel or off[k] > off[sel[-1]]) and (off[k] >> 12) == (end >> 12) and off[k] > end - 640]
                d = [k for k in c if marks[k] == ';@dead' and off[k] > end - 256]
                if d: k = d[-1]
                elif c: k = c[-1]
                else:
                    c = [k for k in cand if off[k] > end]
                    if not c: break
                    k = c[0]; gap += (off[k] & ~127) - end
                sel.append(k)
                end = min((off[k] & ~127) + COV + 128, (off[k] | 4095) + 1)
        new = {k: n for n, k in enumerate(sel)}
        per = {w: [] for w in range(8, 16)}; j = 0
        for n, k in enumerate(sel):
            if g0 - 64 <= off[k] < g1: per[15].append(n)
            else: per[8 + j % 7].append(n); j += 1
        first = {w: v[0] for w, v in per.items() if v}
        chains = {}
        for w, v in per.items():
            back = 'L_W15cont' if w == 15 else 'L_Bback'
            for i, n in enumerate(v): chains[n] = f"L_stub{v[i+1]}" if i+1 < len(v) else back
        if new == chosen: break
        chosen = new
    print("stubs", len(sel), "gap", gap, [hex(off[k]) + marks[k][2] for k in sel], hex(b0), hex(g0), hex(g1), hex(hi), file=sys.stderr)
    body = place(body, chosen, chains)
body = [b for b in body if not b.startswith(';@')]
open(OPT.get('OUT', 'k.s'), 'w').write(emit(body))
print("pads", npad, "lines", len(body), file=sys.stderr)
```
